```python
import torch

def _softmax(x, axis=-1):
    return torch.softmax(x, dim=axis)
def _gelu(x):
    return torch.nn.functional.gelu(x, approximate="tanh")
def _silu(x):
    return torch.nn.functional.silu(x)
def _sigmoid(x):
    return torch.sigmoid(x)
def _layernorm(x, axis=-1, eps=1e-5):
    m = x.mean(dim=axis, keepdim=True)
    v = x.var(dim=axis, keepdim=True, unbiased=False)
    return (x - m) / torch.sqrt(v + eps)
def _scatter_add(tgt, idx, src, axis=0):
    return tgt.clone().index_add_(axis, idx, src)
def _segment_sum(src, seg, n):
    out = torch.zeros((n,) + src.shape[1:], dtype=src.dtype)
    return out.index_add_(0, seg, src)
def _pad(x, pw):
    flat = tuple(v for pair in reversed(pw) for v in pair)
    return torch.nn.functional.pad(x, flat)

kernel_name = 'interleave_layers__sliding_block_cached__sliding_block_cached__decode'

def setup_inputs():

    _w = (lambda a: (lambda t: t.to(torch.bfloat16) if t.is_floating_point() else t)(torch.as_tensor(a)))
    def _A_setup():
        B, Sq, D = 8, 1, 448
        Hq, Hkv, Sk, Dh = 16, 8, 4096, 256
        assert Hq % Hkv == 0, (Hq, Hkv)
        return {
            "x": _w((lambda *s: torch.randn(*s, dtype=torch.bfloat16) * 0.1)(B, Sq, D)),
            "k_cache": _w((lambda *s: torch.randn(*s, dtype=torch.bfloat16) * 0.8)(B, Hkv, Sk, Dh)),
            "v_cache": _w((lambda *s: torch.randn(*s, dtype=torch.bfloat16) * 3.2)(B, Hkv, Sk, Dh)),
            "wq": _w((lambda *s: torch.randn(*s, dtype=torch.bfloat16) * 0.8)(D, Hq * Dh) * (D ** -0.5)),
            "wo": _w((lambda *s: torch.randn(*s, dtype=torch.bfloat16) * 3.2)(Hq * Dh, D) * ((Hq * Dh) ** -0.5)),
        }
    _A_in = _A_setup()

    def _B_setup():
        B, Sq, D = 8, 1, 448
        Hq, Hkv, Sk, Dh = 16, 8, 4096, 256
        assert Hq % Hkv == 0, (Hq, Hkv)
        return {
            "x": _w((lambda *s: torch.randn(*s, dtype=torch.bfloat16) * 0.1)(B, Sq, D)),
            "k_cache": _w((lambda *s: torch.randn(*s, dtype=torch.bfloat16) * 0.8)(B, Hkv, Sk, Dh)),
            "v_cache": _w((lambda *s: torch.randn(*s, dtype=torch.bfloat16) * 1.6)(B, Hkv, Sk, Dh)),
            "wq": _w((lambda *s: torch.randn(*s, dtype=torch.bfloat16) * 0.8)(D, Hq * Dh) * (D ** -0.5)),
            "wo": _w((lambda *s: torch.randn(*s, dtype=torch.bfloat16) * 1.6)(Hq * Dh, D) * ((Hq * Dh) ** -0.5)),
        }
    _B_in = _B_setup()

    return {
        "A_x": _A_in["x"],
        "A_k_cache": _A_in["k_cache"],
        "A_v_cache": _A_in["v_cache"],
        "A_wq": _A_in["wq"],
        "A_wo": _A_in["wo"],
        "B_x": _B_in["x"],
        "B_k_cache": _B_in["k_cache"],
        "B_v_cache": _B_in["v_cache"],
        "B_wq": _B_in["wq"],
        "B_wo": _B_in["wo"],
    }

def reference(A_x, A_k_cache, A_v_cache, A_wq, A_wo, B_x, B_k_cache, B_v_cache, B_wq, B_wo):
    def _A_ref(x, k_cache, v_cache, wq, wo):
        B, Sq, D = x.shape
        Hq, Dh = 16, 256
        Hkv, Sk = k_cache.shape[1], k_cache.shape[2]
        W = min(4096, max(256, Sk // 4))
        rep = Hq // Hkv
        q = (lambda x, *d: x.permute(*d))((x @ wq).reshape(B, Sq, Hq, Dh), 0, 2, 1, 3)
        k = (lambda x, n, axis: torch.repeat_interleave(x, n, dim=axis))(k_cache[:, :, Sk - W:, :], rep, axis=1)
        v = (lambda x, n, axis: torch.repeat_interleave(x, n, dim=axis))(v_cache[:, :, Sk - W:, :], rep, axis=1)
        scores = torch.einsum("bhqd,bhkd->bhqk", q, k) * (Dh ** -0.5)
        p = _softmax(scores, axis=-1)
        o = torch.einsum("bhqk,bhkd->bhqd", p, v)
        return (lambda x, *d: x.permute(*d))(o, 0, 2, 1, 3).reshape(B, Sq, Hq * Dh) @ wo

    def _B_ref(x, k_cache, v_cache, wq, wo):
        B, Sq, D = x.shape
        Hq, Dh = 16, 256
        Hkv, Sk = k_cache.shape[1], k_cache.shape[2]
        W = min(4096, max(256, Sk // 4))
        rep = Hq // Hkv
        q = (lambda x, *d: x.permute(*d))((x @ wq).reshape(B, Sq, Hq, Dh), 0, 2, 1, 3)
        k = (lambda x, n, axis: torch.repeat_interleave(x, n, dim=axis))(k_cache[:, :, Sk - W:, :], rep, axis=1)
        v = (lambda x, n, axis: torch.repeat_interleave(x, n, dim=axis))(v_cache[:, :, Sk - W:, :], rep, axis=1)
        scores = torch.einsum("bhqd,bhkd->bhqk", q, k) * (Dh ** -0.5)
        p = _softmax(scores, axis=-1)
        o = torch.einsum("bhqk,bhkd->bhqd", p, v)
        return (lambda x, *d: x.permute(*d))(o, 0, 2, 1, 3).reshape(B, Sq, Hq * Dh) @ wo

    x = A_x
    x = x + _A_ref(_layernorm(x, axis=-1), A_k_cache, A_v_cache, A_wq, A_wo)
    x = x + _B_ref(_layernorm(x, axis=-1), B_k_cache, B_v_cache, B_wq, B_wo)
    x = x + _A_ref(_layernorm(x, axis=-1), A_k_cache, A_v_cache, A_wq, A_wo)
    x = x + _B_ref(_layernorm(x, axis=-1), B_k_cache, B_v_cache, B_wq, B_wo)
    return x
```

```python
import re

_REG = re.compile(r'\b([vas])(\d+)\b|\b([vas])\[(\d+):(\d+)\]')
TRANS = ("v_exp_f32", "v_log_f32", "v_rcp_f32", "v_rsq_f32", "v_sqrt_f32", "v_sin_f32", "v_cos_f32")

def regs(op):
    out = []
    op = op.strip()
    for m in _REG.finditer(op):
        if m.group(1):
            out.append((m.group(1), int(m.group(2))))
        else:
            out += [(m.group(3), i) for i in range(int(m.group(4)), int(m.group(5)) + 1)]
    if re.search(r'\bvcc\b', op): out += [("s", "vcc")]
    if re.search(r'\bm0\b', op): out += [("s", "m0")]
    return out

class Asm:
    def __init__(self):
        self.lines = []
        self.t = 0
        self.w_valu = {}
        self.w_trans = {}
        self.w_mfma = {}
        self.r_mfmac = {}
        self.w_sgpr_valu = {}
        self.w_m0 = -100
        self.st_data = {}
        self.nops = 0
    def raw(self, s):
        self.lines.append(s)
    def label(self, s):
        self.lines.append(s + ":")
    def comment(self, s):
        self.lines.append("; " + s)
    def nop(self, n):
        while n > 0:
            k = min(n, 16)
            self.lines.append(f"s_nop {k-1}")
            self.t += k; n -= k; self.nops += k
    def fence(self, n=8):
        self.nop(n)
    def __call__(self, *ins):
        for s in ins:
            self.one(s)
    def one(self, s):
        s = s.strip()
        if not s or s.startswith(";"):
            self.lines.append(s); return
        mn, _, rest = s.partition(" ")
        ops = [o.strip() for o in re.split(r',(?![^\[]*\])', rest)] if rest else []
        is_mfma = mn.startswith("v_mfma") or mn.startswith("v_smfmac")
        is_valu = mn.startswith("v_") and not is_mfma
        is_vmem = mn.startswith("buffer_") or mn.startswith("global_")
        is_ds = mn.startswith("ds_")
        is_dpp = is_valu and bool(re.search(r'quad_perm|row_shl|row_shr|row_ror|row_mirror|row_half_mirror|row_bcast|row_newbcast|wave_', s))
        is_perml = mn.startswith("v_permlane")
        is_rdlane = mn.startswith("v_readlane") or mn.startswith("v_readfirstlane")
        wr, rd = [], []
        if is_mfma:
            wr = regs(ops[0]); rd = regs(ops[1]) + regs(ops[2]) + regs(ops[3])
            if mn.startswith("v_smfmac"): rd += regs(ops[0])
        elif is_valu:
            if is_perml:
                wr = regs(ops[0]) + regs(ops[1]); rd = list(wr)
            else:
                wr = regs(ops[0]); rd = sum((regs(o) for o in ops[1:]), [])
                if mn.startswith("v_fmac") or mn.startswith("v_dot2c") or mn.startswith("v_writelane") or is_dpp:
                    rd += regs(ops[0])
                if mn.startswith("v_cndmask") and len(ops) == 3: rd += [("s", "vcc")]
        elif is_vmem:
            if "_load_" in mn and " lds" not in s and "_lds_" not in mn:
                wr = regs(ops[0]); rd = sum((regs(o) for o in ops[1:]), [])
            elif "atomic" in mn and " sc0" in s:
                wr = regs(ops[0]); rd = sum((regs(o) for o in ops[1:]), [])
            else:
                rd = sum((regs(o) for o in ops), [])
        elif is_ds:
            if mn.startswith("ds_read") or mn.startswith("ds_bpermute") or mn.startswith("ds_swizzle"):
                wr = regs(ops[0]); rd = sum((regs(o) for o in ops[1:]), [])
            else:
                rd = sum((regs(o) for o in ops), [])
        need = 0
        def req(tab, r, n):
            nonlocal need
            if r in tab: need = max(need, tab[r] + n + 1 - self.t)
        vrd = [r for r in rd if r[0] in "va"]; vwr = [r for r in wr if r[0] in "va"]
        srd = [r for r in rd if r[0] == "s"]
        if is_mfma:
            for r in vrd: req(self.w_valu, r, 2)
            cset = set(regs(ops[0]) if mn.startswith("v_smfmac") else regs(ops[3]))
            dset = set(regs(ops[0]))
            for r in vrd:
                if r in cset and cset == dset and r not in set(regs(ops[1]) + regs(ops[2])):
                    continue
                req(self.w_mfma, r, 8)
            if cset != dset:
                for r in vwr: req(self.w_mfma, r, 8)
        else:
            for r in vrd + vwr: req(self.w_mfma, r, 8)
            if is_valu:
                for r in vwr: req(self.r_mfmac, r, 3); req(self.st_data, r, 2)
                for r in srd: req(self.w_sgpr_valu, r, 4 if (is_rdlane or mn.startswith("v_writelane")) else 2)
                if not mn.startswith(TRANS):
                    for r in vrd: req(self.w_trans, r, 1)
                if is_dpp or is_perml:
                    for r in vrd: req(self.w_valu, r, 2)
                if is_rdlane:
                    for r in vrd: req(self.w_valu, r, 1)
            if is_vmem:
                for r in srd: req(self.w_sgpr_valu, r, 5)
                for r in vrd: req(self.w_trans, r, 1)
                if " lds" in s or "_lds_" in mn: need = max(need, self.w_m0 + 2 - self.t)
                for r in vwr: req(self.st_data, r, 1)
            if is_ds:
                for r in vrd: req(self.w_trans, r, 1)
                for r in vwr: req(self.st_data, r, 1)
            if mn.startswith("s_") and not mn.startswith(("s_nop", "s_waitcnt", "s_barrier", "s_branch", "s_cbranch_scc", "s_endpgm")):
                allr = sum((regs(o) for o in ops), [])
                for r in allr:
                    if r[0] == "s": req(self.w_sgpr_valu, r, 3)
        if need > 0: self.nop(need)
        self.lines.append(s)
        if is_mfma:
            for r in vwr: self.w_mfma[r] = self.t
            for r in (regs(ops[0]) if mn.startswith("v_smfmac") else regs(ops[3])): self.r_mfmac[r] = self.t
            if mn.startswith("v_smfmac"):
                for r in regs(ops[3]): self.r_mfmac[r] = self.t
        elif is_valu:
            for r in wr:
                if r[0] == "s": self.w_sgpr_valu[r] = self.t
                else:
                    self.w_valu[r] = self.t; self.w_mfma.pop(r, None)
                    if mn.startswith(TRANS): self.w_trans[r] = self.t
                    else: self.w_trans.pop(r, None)
        elif is_vmem or is_ds:
            for r in vwr: self.w_valu.pop(r, None); self.w_trans.pop(r, None); self.w_mfma.pop(r, None)
            if is_vmem and "store" in mn and ("x4" in mn or "x3" in mn):
                for r in vrd: self.st_data[r] = self.t
        elif mn.startswith("s_"):
            if ops and ops[0] == "m0": self.w_m0 = self.t
            if ops:
                for r in regs(ops[0]):
                    if not mn.startswith(("s_cmp", "s_bitcmp", "s_cbranch", "s_setpc")): self.w_sgpr_valu.pop(r, None)
        if mn == "s_nop":
            self.t += int(ops[0]) + 1
        else:
            self.t += 1
    def text(self):
        return "\n".join(self.lines) + "\n"
```

```python
import sys, struct
sys.path.insert(0, "gen")
from asmlib import Asm

KNAME = "interleave_layers__sliding_block_cached__sliding_block_cached__decode_kernel"
HEADER = open("interleave_layers__sliding_block_cached__sliding_block_cached__decode.s.ref").read().split("; Override launch")[0]

def f2u(x): return struct.unpack("<I", struct.pack("<f", x))[0]

STG = 131072
SCR = 147456
PA = SCR
SL = SCR + 4096
RED = SCR + 4608
QB, OB, X1, X2, ST, WSEND = 0x0, 0x40000, 0x140000, 0x220000, 0x250000, 0x254000
STAMPS = 0x300000
sJ, sC = 34, 35
KV, SW, WS, SX = 36, 40, 44, 48
sW, sSL, sRM, sBLK, sLIM = 52, 53, 54, 55, 56
sY = 57
sRET, sRET2 = 60, 62
sSPEC = 64
sLAY, sFAST, sSPIN = 66, 67, 68
sQB, sOB, sOB2, sST, sX1, sX2 = 69, 70, 71, 72, 73, 74
sM0, sM1 = 75, 76
sT = 77
sMI8, sMQ = 86, 88
sB, sS, sOH, sNQ, sEXP = 90, 91, 92, 93, 94
sX1L = 95
sSTB = 98
vL16, vXOLD, vDBG, vB, vKRD, vPT, vVRD, vIDX = 0, 1, 2, 3, 4, 5, 6, 7
WqA, WoA, WqB = 64, 80, 96
vX0, vX1r, vRW, aD, aCS, aDG, aGS, vQST, vQLD, vPW, vOST, vOLD, vSLD, aOR, vX1ST, vSEL = range(112, 128)
AV = 128

def srd(r): return f"s[{r}:{r+3}]"
def vr(a, n): return f"v[{a}:{a+n-1}]"
def ar(a, n): return f"a[{a}:{a+n-1}]"

def gen(debug=False, opt=None):
    opt = opt or {}
    KFL = opt.get("kvflag", "nt"); WFL = opt.get("wflag", "nt")
    e = Asm()
    uid = [0]
    def L(p):
        uid[0] += 1; return f"L_{p}_{uid[0]}"
    ool = []
    def stamp(i):
        if not debug: return
        e("s_memrealtime s[96:97]", f"s_add_u32 m0, s{sSTB}, {i}", "s_waitcnt lgkmcnt(0)", f"v_writelane_b32 v{vDBG}, s96, m0")
    def call_pump():
        e(f"s_call_b64 s[{sRET}:{sRET+1}], L_PUMP")
    def pump_until(n):
        a, b = L("pu"), L("pud")
        e.label(a)
        e(f"s_cmp_ge_u32 s{sBLK}, {n}", f"s_cbranch_scc1 {b}")
        call_pump()
        e("s_waitcnt vmcnt(4)", f"s_branch {a}")
        e.label(b)
        e("s_waitcnt vmcnt(4)")
    def poll_wait():
        a, b = L("pw"), L("pwd")
        e(f"s_cmp_lt_u32 s{sBLK}, s{sLIM}", f"s_cbranch_scc1 {a}", "s_waitcnt vmcnt(0)")
        e.label(b)
        def f():
            e.label(a); call_pump(); e("s_waitcnt vmcnt(4)", f"s_branch {b}")
        ool.append(f)
    def pump_nowait_if_streaming():
        a, b = L("pn"), L("pnd")
        e(f"s_cmp_lt_u32 s{sBLK}, s{sLIM}", f"s_cbranch_scc1 {a}")
        e.label(b)
        def f():
            e.label(a); call_pump(); e(f"s_branch {b}")
        ool.append(f)
    def ack_wait():
        b = L("ak")
        e(f"s_cmp_lt_u32 s{sBLK}, 36", f"s_cbranch_scc1 {b}", "s_waitcnt vmcnt(0)")
        e.label(b)
    def publish(fmt):
        a, b = L("ps"), L("psd")
        e(f"s_cmp_eq_u32 s{sFAST}, 0", f"s_cbranch_scc1 {a}", fmt.format(fl=""))
        e.label(b)
        def f():
            e.label(a); e(fmt.format(fl="sc1"), f"s_branch {b}")
        ool.append(f)
    def fail_path(name, back, extra=None):
        def f():
            e.label(name)
            if extra: extra()
            e(f"s_sub_u32 s{sSPIN}, s{sSPIN}, 1", f"s_cmp_eq_u32 s{sSPIN}, 0", "s_cbranch_scc1 L_END", f"s_branch {back}")
        ool.append(f)
    def check_max(rs, t):
        rs = list(rs)
        e(f"v_max3_u32 v{t}, v{rs[0]}, v{rs[1]}, v{rs[2]}")
        rest = rs[3:]
        if len(rest) >= 3:
            e(f"v_max3_u32 v{t+1}, v{rest[0]}, v{rest[1]}, v{rest[2]}"); rest = rest[3:]
            k = 0
            while len(rest) >= 2:
                e(f"v_max3_u32 v{t+k}, v{t+k}, v{rest[0]}, v{rest[1]}"); rest = rest[2:]; k ^= 1
            if rest: e(f"v_max3_u32 v{t}, v{t}, v{t+1}, v{rest[0]}")
            else: e(f"v_max_u32 v{t}, v{t}, v{t+1}")
        e(f"v_cmp_eq_u32 vcc, -1, v{t}")

    e.raw(HEADER.rstrip())
    e.raw("; @launch grid=(256,1,1) block=(256,1,1) lds=163840")
    e.raw('.amdgcn_target "amdgcn-amd-amdhsa--gfx950"')
    e.raw(".text"); e.raw(f".globl {KNAME}"); e.raw(".p2align 8"); e.raw(f".type {KNAME},@function")
    e.label(KNAME)
    e("s_cmp_ge_u32 s2, 256", "s_cbranch_scc1 L_EXIT")
    e("s_load_dwordx16 s[8:23], s[0:1], 0", "s_load_dwordx8 s[24:31], s[0:1], 64", "s_load_dwordx2 s[32:33], s[0:1], 96")
    if debug:
        e(f"v_mov_b32 v{vDBG}, 0", f"s_mov_b32 s{sSTB}, 0"); stamp(15)
    e("v_lshrrev_b32 v8, 6, v0", "v_and_b32 v9, 63, v0")
    e(f"s_and_b32 s{sJ}, s2, 7", f"s_lshr_b32 s{sC}, s2, 3")
    e(f"v_readfirstlane_b32 s{sW}, v8")
    e(f"v_lshlrev_b32 v{vL16}, 4, v9")
    e(f"s_and_b32 s{sB}, s{sC}, 7", f"s_lshr_b32 s{sS}, s{sC}, 3")
    e(f"s_lshl_b32 s{sSL}, s{sB}, 3", f"s_add_u32 s{sSL}, s{sSL}, s{sJ}", f"s_lshl_b32 s{sSL}, s{sSL}, 21",
      f"s_lshl_b32 s{sT}, s{sS}, 17", f"s_add_u32 s{sSL}, s{sSL}, s{sT}", f"s_add_u32 s{sSL}, s{sSL}, 0x180000")
    e(f"s_cmp_ge_u32 s{sC}, 14", f"s_cselect_b32 s{sOH}, 1, 0", f"s_mul_i32 s{sT}, s{sOH}, 14", f"s_sub_u32 s{sNQ}, s{sC}, s{sT}")
    e(f"s_mov_b32 s{sBLK}, 0", f"s_mov_b32 s{sLIM}, 13")
    specials = [0, 1, 4, 6, 8, 9, 10, 11, 18, 19, 20, 22, 24, 26, 27, 28]
    m = sum(1 << k for k in specials)
    e(f"s_mov_b32 s{sSPEC}, {m & 0xffffffff}", f"s_mov_b32 s{sSPEC+1}, {m >> 32}")
    e(f"s_mov_b32 s{KV+2}, 0x20000", f"s_mov_b32 s{KV+3}, 0x20000", f"s_mov_b32 s{SW+2}, 3670016", f"s_mov_b32 s{SW+3}, 0x20000")
    e(f"s_mov_b32 s{WS+2}, {WSEND}", f"s_mov_b32 s{WS+3}, 0x20000", f"s_mov_b32 s{SX+2}, 7168", f"s_mov_b32 s{SX+3}, 0x20000")
    e("s_waitcnt lgkmcnt(0)")
    e(f"s_mov_b32 s{WS}, s32", f"s_mov_b32 s{WS+1}, s33", f"s_mov_b32 s{SX}, s8", f"s_mov_b32 s{SX+1}, s9")
    e(f"s_mov_b32 s{KV}, s10", f"s_mov_b32 s{KV+1}, s11", f"s_mov_b32 s{SW}, s14", f"s_mov_b32 s{SW+1}, s15")
    call_pump()
    call_pump()
    e("v_and_b32 v10, 15, v9", "v_lshrrev_b32 v11, 4, v9")
    e(f"s_lshl_b32 s{sT}, s{sW}, 10")
    e("v_lshrrev_b32 v12, 1, v10", "v_lshlrev_b32 v12, 12, v12", "v_and_b32 v13, 1, v10", "v_lshl_add_u32 v12, v13, 9, v12",
      "v_xor_b32 v14, v11, v10", "v_lshl_add_u32 v12, v14, 4, v12", f"v_add_u32 v{vKRD}, s{sT}, v12")
    e("v_mul_u32_u24 v12, 896, v10", "v_lshl_add_u32 v12, v11, 4, v12", f"s_lshl_b32 s{sT+1}, s{sW}, 8", f"v_add_u32 v{vX0}, s{sT+1}, v12")
    e(f"s_cmp_eq_u32 s{sW}, 3", f"s_cselect_b32 s{sT+1}, 0x40000000, 0", f"v_add_u32 v{vX1r}, s{sT+1}, v{vX0}")
    e(f"s_add_u32 s{sT+1}, s{sT}, {RED}", f"v_add_u32 v{vRW}, s{sT+1}, v{vL16}")
    e("v_and_b32 v12, 3, v9", "v_lshlrev_b32 v12, 10, v12", f"v_add_u32 v12, {RED}, v12",
      "v_bfe_u32 v13, v9, 2, 3", "v_lshrrev_b32 v14, 5, v9", f"s_lshl_b32 s{sT+1}, s{sW}, 1", f"v_add_u32 v14, s{sT+1}, v14")
    e("v_lshrrev_b32 v15, 2, v14", "v_lshlrev_b32 v15, 8, v15", "v_and_b32 v16, 3, v14", "v_lshl_add_u32 v15, v16, 2, v15", "v_add_u32 v15, v15, v12")
    e(f"v_lshl_add_u32 v{aD}, v13, 5, v15")
    e(f"v_lshl_add_u32 v{aCS}, v13, 5, v12", f"v_add_u32 v{aCS}, 512, v{aCS}")
    e(f"v_lshl_add_u32 v{aDG}, v14, 4, v15", f"v_add_u32 v{aDG}, 4096, v{aDG}")
    e(f"v_lshl_add_u32 v{aGS}, v14, 4, v12", f"v_add_u32 v{aGS}, {4096+512}, v{aGS}")
    e(f"s_lshr_b32 s{sT+1}, s{sC}, 4", f"s_lshl_b32 s{sT+1}, s{sT+1}, 9", f"s_and_b32 s{sT+2}, s{sC}, 15", f"s_lshl_b32 s{sT+2}, s{sT+2}, 4", f"s_add_u32 s{sT+1}, s{sT+1}, s{sT+2}")
    e("v_lshlrev_b32 v15, 10, v14", "v_and_b32 v16, 1, v13", "v_lshl_add_u32 v15, v16, 8, v15", "v_lshrrev_b32 v16, 1, v13", "v_lshl_add_u32 v15, v16, 2, v15", f"v_add_u32 v{vQST}, s{sT+1}, v15")
    e(f"s_mov_b32 s{sMI8}, 0x00ff00ff", f"s_mov_b32 s{sMI8+1}, 0x00ff00ff", f"s_mov_b32 s{sMQ}, 0x11111111", f"s_mov_b32 s{sMQ+1}, 0x11111111")
    e(f"s_mov_b32 s{sLAY}, 0", f"s_mov_b32 s{sFAST}, 0", f"s_mov_b32 s{sSPIN}, 2000000")
    e(f"s_lshl_b32 s{sQB}, s{sJ}, 13", f"s_lshl_b32 s{sOB}, s{sJ}, 15", f"s_add_u32 s{sOB}, s{sOB}, {OB}", f"s_add_u32 s{sOB2}, s{sOB}, 8192",
      f"s_lshl_b32 s{sST}, s{sJ}, 9", f"s_add_u32 s{sST}, s{sST}, {ST}", f"s_mov_b32 s{sX1}, {X1}", f"s_add_u32 s{sX2}, s{sQB}, {X2}",
      f"s_lshl_b32 s{sX1L}, s{sC}, 13", f"s_add_u32 s{sX1L}, s{sX1L}, {X1}")
    def late_consts():
        e(f"v_lshrrev_b32 v9, 4, v{vL16}", "v_and_b32 v10, 15, v9", "v_lshrrev_b32 v11, 4, v9")
        e("v_lshrrev_b32 v12, 2, v10", "v_and_b32 v13, 3, v9", "v_and_b32 v14, 1, v11", "v_lshrrev_b32 v15, 1, v12", "v_and_b32 v16, 1, v12", "v_lshrrev_b32 v17, 1, v11")
        e("v_lshlrev_b32 v18, 5, v14", "v_lshl_add_u32 v18, v15, 3, v18", "v_lshl_add_u32 v18, v17, 1, v18", "v_add_u32 v18, v18, v16")
        e("v_lshlrev_b32 v19, 3, v14", "v_lshl_add_u32 v19, v15, 2, v19", "v_lshl_add_u32 v19, v16, 1, v19")
        e(f"s_lshl_b32 s{sT}, s{sW}, 3", "v_lshrrev_b32 v20, 1, v13", f"v_add_u32 v20, s{sT}, v20", "v_xor_b32 v20, v20, v19",
          "v_lshlrev_b32 v18, 9, v18", "v_lshl_add_u32 v18, v20, 4, v18", "v_and_b32 v20, 1, v13", f"v_lshl_add_u32 v{vVRD}, v20, 3, v18")
        e("v_and_b32 v14, 1, v9", "v_cmp_eq_u32 vcc, 1, v14", "v_mov_b32 v15, 0x4444", "v_mov_b32 v16, 0xeeee", f"v_cndmask_b32 v{vIDX}, v15, v16, vcc",
          "v_mov_b32 v15, 0x01000504", "v_mov_b32 v16, 0x07060302", f"v_cndmask_b32 v{vSEL}, v15, v16, vcc")
        e("v_bfe_u32 v15, v10, 1, 1", "v_lshlrev_b32 v16, 9, v15", "v_lshl_add_u32 v16, v14, 8, v16", "v_lshl_add_u32 v16, v11, 4, v16",
          f"s_lshl_b32 s{sT}, s{sB}, 10", f"v_add_u32 v{vQLD}, s{sT}, v16")
        e(f"s_mul_i32 s{sT}, s{sW}, 320", f"s_add_u32 s{sT}, s{sT}, {PA}", "v_lshlrev_b32 v16, 10, v11", "v_lshl_add_u32 v16, v15, 4, v16",
          "v_lshl_add_u32 v16, v12, 2, v16", "v_lshl_add_u32 v16, v14, 1, v16", f"v_add_u32 v{vPW}, s{sT}, v16")
        e(f"s_lshl_b32 s{sT}, s{sB}, 2", f"s_add_u32 s{sT}, s{sT}, s{sS}", f"s_lshl_b32 s{sT}, s{sT}, 9", f"s_lshl_b32 s{sT+1}, s{sW}, 7", f"s_add_u32 s{sT}, s{sT}, s{sT+1}",
          "v_and_b32 v16, 62, v9", "v_lshlrev_b32 v16, 1, v16", "v_lshl_add_u32 v16, v14, 14, v16", f"v_add_u32 v{vOST}, s{sT}, v16")
        e(f"s_lshl_b32 s{sT}, s{sOH}, 14", f"s_add_u32 s{sT}, s{sT}, s{sT+1}", "v_lshlrev_b32 v16, 9, v10", "v_lshl_add_u32 v16, v11, 4, v16", f"v_add_u32 v{vOLD}, s{sT}, v16")
        e("v_bfe_u32 v16, v10, 2, 1", "v_lshl_add_u32 v16, v16, 2, v11", "v_lshlrev_b32 v16, 5, v16", "v_lshl_add_u32 v16, v13, 3, v16",
          f"s_lshl_b32 s{sT}, s{sOH}, 8", f"v_add_u32 v{vSLD}, s{sT}, v16")
        e(f"s_and_b32 s{sT}, s{sW}, 1", f"s_lshr_b32 s{sT+1}, s{sW}, 1", f"s_lshl_b32 s{sT+2}, s{sT}, 1", f"s_add_u32 s{sT+2}, s{sT+2}, s{sT+1}", f"s_lshl_b32 s{sT+2}, s{sT+2}, 2",
          f"s_add_u32 s{sT+2}, s{sT+2}, {RED}", f"v_add_u32 v{aOR}, s{sT+2}, v{vL16}")
        e(f"s_lshl_b32 s{sT+2}, s{sNQ}, 1", f"s_add_u32 s{sT+2}, s{sT+2}, s{sT+1}", f"s_lshl_b32 s{sT+2}, s{sT+2}, 13",
          f"s_lshl_b32 s{sT+3}, s{sJ}, 1", f"s_add_u32 s{sT+3}, s{sT+3}, s{sOH}", f"s_lshl_b32 s{sT+3}, s{sT+3}, 9", f"s_add_u32 s{sT+2}, s{sT+2}, s{sT+3}",
          f"s_lshl_b32 s{sT}, s{sT}, 8", f"s_add_u32 s{sT+2}, s{sT+2}, s{sT}", "v_lshlrev_b32 v16, 2, v9", f"v_add_u32 v{vX1ST}, s{sT+2}, v16")
    def x2_voff(d, t):
        e(f"v_bfe_u32 v{d}, v{vL16}, 6, 3", f"v_mul_u32_u24 v{d}, 896, v{d}", f"v_bfe_u32 v{t}, v{vL16}, 4, 2", f"v_lshl_add_u32 v{d}, v{t}, 3, v{d}",
          f"v_lshrrev_b32 v{t}, 9, v{vL16}", f"v_lshl_add_u32 v{d}, v{t}, 2, v{d}", f"s_lshl_b32 s{sT}, s{sC}, 5", f"v_add_u32 v{d}, s{sT}, v{d}")
    def q_prep():
        for i in range(16): e(f"v_mov_b32 v{8+i}, 0x3f803f80")
    q_prep()

    e.label("L_LOOP")
    stamp(0)
    e.label("L_QPOLL")
    e(f"s_mov_b64 exec, s[{sMI8}:{sMI8+1}]")
    for d in range(4):
        e(f"buffer_load_dwordx4 {vr(8+4*d,4)}, v{vX0 if d < 2 else vX1r}, {srd(SX)}, 0 offen offset:{64*d} sc1")
    e("s_mov_b64 exec, -1")
    poll_wait()
    check_max(range(8, 24), 32)
    e("s_cbranch_vccnz L_QFAIL")
    e.label("L_QOK")
    fail_path("L_QFAIL", "L_QPOLL", lambda: e(f"s_cmp_eq_u32 s{sLAY}, 0", "s_cbranch_scc1 L_QOK"))
    stamp(1)
    e(f"s_cmp_lt_u32 s{sLAY}, 2", "s_cbranch_scc1 L_QEARLY")
    e.label("L_QGO")
    def wq_move(dst):
        e(f"v_lshrrev_b32 v{vPT}, 8, v{vL16}", f"v_lshlrev_b32 v{vPT}, 8, v{vPT}")
        e(f"v_bfe_u32 v63, v{vL16}, 4, 4", f"v_lshl_add_u32 v{vPT}, v63, 3, v{vPT}")
        e(f"s_lshl_b32 s{sT}, s{sW}, 12", f"s_add_u32 s{sT}, s{sT}, {STG}", f"v_add_u32 v{vPT}, s{sT}, v{vPT}")
        for d in range(4):
            for hh in range(2):
                e(f"ds_read_b64_tr_b16 {vr(dst+4*d+2*hh,2)}, v{vPT} offset:{d*1024+hh*128}")
        e("s_waitcnt lgkmcnt(0)")
    def qearly():
        e.label("L_QEARLY")
        e(f"s_cmp_eq_u32 s{sLAY}, 0", "s_cbranch_scc0 L_QEARLY1")
        call_pump()
        wq_move(WqA)
        e("s_branch L_QGO")
        e.label("L_QEARLY1")
        pump_until(21)
        pump_nowait_if_streaming()
        e("s_branch L_QGO")
    ool.append(qearly)
    e(f"s_bitcmp1_b32 s{sLAY}, 0", "s_cbranch_scc1 L_QB")
    def qmf(W):
        for d in range(4):
            e(f"v_mfma_f32_16x16x32_bf16 v[24:27], {vr(8+4*d,4)}, {vr(W+4*d,4)}, {'0' if d == 0 else 'v[24:27]'}")
            e(f"v_mfma_f32_16x16x32_bf16 v[28:31], {vr(8+4*d,4)}, {vr(8+4*d,4)}, {'0' if d == 0 else 'v[28:31]'}")
    qmf(WqA)
    e.label("L_QJ")
    def qb():
        e.label("L_QB"); qmf(WqB); e("s_branch L_QJ")
    ool.append(qb)
    e.nop(7)
    e(f"ds_write_b128 v{vRW}, v[24:27]", f"ds_write_b128 v{vRW}, v[28:31] offset:4096", "s_waitcnt lgkmcnt(0)", "s_barrier")
    e(f"ds_read2_b32 v[32:33], v{aD} offset0:0 offset1:4", f"ds_read2_b32 v[34:35], v{aCS} offset0:0 offset1:4", f"ds_read_b32 v36, v{aDG}", f"ds_read_b32 v37, v{aGS}")
    e("s_waitcnt lgkmcnt(0)")
    for qp in ("[1,0,3,2]", "[2,3,0,1]"):
        for r in (37, 36, 32, 33, 34, 35):
            e(f"v_add_f32_dpp v{r}, v{r}, v{r} quad_perm:{qp} row_mask:0xf bank_mask:0xf")
    inv = f2u(1.0 / 448.0)
    e(f"v_mul_f32 v37, {inv}, v37", f"v_mul_f32 v36, {inv}, v36", "v_fma_f32 v36, -v37, v37, v36", "v_max_f32 v36, 0, v36", f"v_add_f32 v36, {f2u(1e-5)}, v36",
      "v_rsq_f32 v36, v36", "v_fma_f32 v32, -v37, v34, v32", "v_fma_f32 v33, -v37, v35, v33", f"v_mul_f32 v36, {f2u(1.4426950408889634/16.0)}, v36",
      "v_mul_f32 v32, v32, v36", "v_mul_f32 v33, v33, v36", "v_cvt_pk_bf16_f32 v32, v32, v33", "v_min_u32 v32, -2, v32")
    e(f"s_mov_b64 exec, s[{sMQ}:{sMQ+1}]")
    publish(f"buffer_store_dword v32, v{vQST}, {srd(WS)}, s{sQB} offen {{fl}}")
    e("s_mov_b64 exec, -1")
    stamp(2)
    e(f"s_cmp_eq_u32 s{sLAY}, 0", "s_cbranch_scc1 L_INIT")
    e.label("L_INITD")
    def init():
        e.label("L_INIT")
        for i in range(4): e(f"v_mov_b32 v{8+i}, -1")
        e(f"s_lshl_b32 s{sT}, s2, 12", f"s_lshl_b32 s{sT+1}, s{sW}, 10", f"s_add_u32 s{sT}, s{sT}, s{sT+1}", f"s_add_u32 s{sT}, s{sT}, 0x10000",
          f"v_add_u32 v12, s{sT}, v{vL16}", f"s_mov_b32 s{sT}, 0x100000", f"s_mov_b32 s{sT+1}, 0x200000")
        e(f"buffer_store_dwordx4 v[8:11], v12, {srd(WS)}, 0 offen sc1", f"buffer_store_dwordx4 v[8:11], v12, {srd(WS)}, s{sT} offen sc1",
          f"buffer_store_dwordx4 v[8:11], v12, {srd(WS)}, s{sT+1} offen sc1")
        x2_voff(24, 25)
        e(f"buffer_load_dword v{vXOLD}, v24, {srd(SX)}, 0 offen")
        call_pump()
        late_consts()
        for i in range(4): e(f"v_mov_b32 v{8+i}, 0")
        e(f"s_lshl_b32 s{sT}, s{sW}, 10", f"s_add_u32 s{sT}, s{sT}, {PA}", f"v_add_u32 v12, s{sT}, v{vL16}", "ds_write_b128 v12, v[8:11]")
        e(f"s_getreg_b32 s{sT}, hwreg(HW_REG_XCC_ID)", f"s_and_b32 s{sT}, s{sT}, 15", f"s_mul_i32 s{sT+1}, s{sT}, s{sT}", f"s_lshl_b32 s{sT}, s{sT}, 6",
          f"s_lshl_b32 s{sT+1}, s{sT+1}, 15", f"s_add_u32 s{sT}, s{sT}, s{sT+1}", f"s_add_u32 s{sT}, s{sT}, 1", f"s_lshl_b32 s{sEXP}, s{sT}, 5")
        e(f"v_mov_b32 v8, s{sT}", f"s_lshl_b32 s{sT+1}, s{sJ}, 5", f"v_mov_b32 v9, s{sT+1}")
        e("s_waitcnt vmcnt(4) lgkmcnt(0)", "s_barrier")
        e(f"s_cmp_lg_u32 s{sW}, 0", "s_cbranch_scc1 L_INIT1")
        e("s_mov_b64 exec, 1", "global_atomic_add v9, v8, s[30:31] sc1", "s_mov_b64 exec, -1")
        e.label("L_INIT1")
        pump_until(opt.get("initblk", 9))
        e(f"v_lshlrev_b32 v9, 1, v{vL16}")
        e.label("L_IPOLL")
        e("s_mov_b64 exec, 0xff", "global_load_dword v8, v9, s[30:31] sc1", "s_mov_b64 exec, -1")
        poll_wait()
        e("s_mov_b64 exec, 0xff", "v_and_b32 v10, 63, v8", "v_cmp_ne_u32 vcc, 32, v10", "s_mov_b64 exec, -1", "s_cbranch_vccnz L_IFAIL")
        e(f"v_readlane_b32 s{sT}, v8, s{sJ}", f"s_cmp_eq_u32 s{sT}, s{sEXP}", f"s_cselect_b32 s{sFAST}, {0 if opt.get('forceslow') else 1}, 0")
        e("s_branch L_INITD")
        fail_path("L_IFAIL", "L_IPOLL")
    ool.append(init)

    for i in range(32): e(f"v_mov_b32 v{24+i}, 0")
    e(f"s_lshl_b32 s{sT}, s{sW}, 2", f"s_add_u32 s{sT}, s{sT}, {SL}", f"v_mov_b32 v61, s{sT}", f"v_add_u32 v62, {PA}, v{vL16}",
      f"v_lshrrev_b32 v63, 8, v{vL16}", f"v_lshlrev_b32 v63, 2, v63", f"v_add_u32 v63, {SL}, v63")
    ack_wait()
    e.label("L_APOLL")
    for u in range(4):
        e(f"buffer_load_dwordx4 {vr(8+4*u,4)}, v{vQLD}, {srd(WS)}, s{sQB} offen offset:{64*u} sc1")
    poll_wait()
    check_max(range(8, 24), 56)
    e("s_cbranch_vccnz L_AFAIL")
    fail_path("L_AFAIL", "L_APOLL")
    stamp(3)
    e(f"s_cmp_lt_u32 s{sLAY}, 2", "s_cbranch_scc1 L_AEARLY")
    e.label("L_AGO")
    def aearly():
        e.label("L_AEARLY")
        e(f"s_cmp_eq_u32 s{sLAY}, 0", "s_cbranch_scc0 L_AEARLY1")
        pump_until(11)
        pump_nowait_if_streaming()
        e("s_branch L_AGO")
        e.label("L_AEARLY1")
        pump_until(29)
        pump_nowait_if_streaming()
        e("s_branch L_AGO")
    ool.append(aearly)
    e(f"s_bitcmp1_b32 s{sLAY}, 0", "s_cbranch_scc1 L_KB")
    def sadd(t):
        for h in range(2):
            e(f"v_add_f32_dpp v{56+h}, v{24+4*t+2*h}, v{25+4*t+2*h} quad_perm:[0,1,2,3] row_mask:{1<<t} bank_mask:0xf")
    def qk(base):
        for t in range(4):
            for u in range(4):
                e(f"v_smfmac_f32_16x16x64_bf16 {vr(24+4*t,4)}, {vr(8+4*u,4)}, {ar(base+32*t+8*u,8)}, v{vIDX}")
            if t == 2: sadd(0)
    qk(0)
    e.label("L_KJ")
    def kb():
        e.label("L_KB"); qk(128); e("s_branch L_KJ")
    ool.append(kb)
    sadd(1); sadd(2); sadd(3)
    steps = ["quad_perm:[1,0,3,2] row_mask:0xf", "quad_perm:[2,3,0,1] row_mask:0xf", "row_half_mirror row_mask:0xf", "row_mirror row_mask:0xf",
             "row_bcast:15 row_mask:0xa", "row_bcast:31 row_mask:0xc"]
    for i, st in enumerate(steps):
        for h in range(2):
            s_ = 56 + h if i == 0 else 58 + h
            e(f"v_max_f32_dpp v{58+h}, v{s_}, v{s_} {st} bank_mask:0xf")
    e(f"v_readlane_b32 s{sM0}, v58, 63", f"v_readlane_b32 s{sM1}, v59, 63")
    e("s_mov_b32 exec_lo, 0", "s_mov_b32 exec_hi, 0x80000000", "ds_write2_b32 v61, v58, v59 offset0:0 offset1:4", "s_mov_b64 exec, -1")
    e(f"v_subrev_f32 v56, s{sM0}, v56", f"v_subrev_f32 v57, s{sM1}, v57", "v_exp_f32 v56, v56", "v_exp_f32 v57, v57", f"v_mov_b32 v24, {SL}",
      "v_cvt_pk_bf16_f32 v60, v56, v57", f"ds_write_b16 v{vPW}, v60", f"ds_write_b16_d16_hi v{vPW}, v60 offset:32")
    e("s_waitcnt lgkmcnt(0)", "s_barrier")
    stamp(4)
    e(f"s_cmp_eq_u32 s{sLAY}, 0", "s_cbranch_scc1 L_VMOVE0")
    e.label("L_PVGO")
    def vmove0():
        e.label("L_VMOVE0")
        e(f"s_mov_b32 s{sLIM}, 19")
        for k in range(4):
            pump_until(13 + 2 * k)
            e("s_waitcnt lgkmcnt(0)", "s_barrier")
            if k == 3:
                e(f"s_mov_b32 s{sLIM}, 25"); call_pump()
            e(f"s_call_b64 s[{sRET2}:{sRET2+1}], L_MOVEV{k}")
        e("s_waitcnt lgkmcnt(0)", "s_barrier", f"s_mov_b32 s{sLIM}, 36")
        call_pump()
        e("s_branch L_PVGO")
    ool.append(vmove0)
    for k in range(4): e(f"ds_read_b128 {vr(8+4*k,4)}, v62 offset:{1024*k}")
    e("ds_read_b128 v[28:31], v24", "ds_read_b128 v[32:35], v24 offset:16", "ds_read2_b32 v[36:37], v63 offset0:0 offset1:4")
    side = []
    side += ["s_waitcnt lgkmcnt(0)"]
    side += ["v_max3_f32 v26, v28, v29, v30", "v_max3_f32 v27, v32, v33, v34", "v_max_f32 v26, v26, v31", "v_max_f32 v27, v27, v35",
             "v_sub_f32 v38, v36, v26", "v_sub_f32 v39, v37, v27", "v_exp_f32 v38, v38", "v_exp_f32 v39, v39", "v_mov_b32 v25, 0", "v_mov_b32 v28, 0x3f803f80"]
    side += [f"v_dot2c_f32_bf16 v25, v{8+i}, v28" for i in range(16)]
    mf = [(tau, k) for tau in range(4) for k in range(4)]
    def tpost(tau):
        return [f"v_add_f32 v{40+4*tau}, v{40+4*tau}, v{41+4*tau}", f"v_add_f32 v{42+4*tau}, v{42+4*tau}, v{43+4*tau}",
                f"v_mul_f32 v{40+4*tau}, v{40+4*tau}, v38", f"v_mul_f32 v{42+4*tau}, v{42+4*tau}, v39"]
    for n_, (tau, k) in enumerate(mf):
        if n_ < 4: e(f"s_waitcnt lgkmcnt({6-n_})")
        e(f"v_smfmac_f32_16x16x64_bf16 {vr(40+4*tau,4)}, {vr(8+4*k,4)}, {vr(AV+32*k+8*tau,8)}, v{vIDX}")
        if n_ >= 3:
            for _ in range(3 if n_ > 3 else 1):
                if side: e(side.pop(0))
    while side: e(side.pop(0))
    e(f"v_and_b32 v29, 32, v{vL16}", "v_cmp_ne_u32 vcc, 0, v29", "v_cndmask_b32 v29, v38, v39, vcc", "v_cndmask_b32 v26, v26, v27, vcc", "v_mul_f32 v25, v25, v29")
    e(f"s_cmp_eq_u32 s{sLAY}, 1", "s_cbranch_scc1 L_PROG")
    e.label("L_POST")
    for tau in range(4): e(*tpost(tau))
    for h in range(2):
        e(f"v_permlane32_swap_b32 v{40+2*h}, v{48+2*h}", f"v_permlane32_swap_b32 v{44+2*h}, v{52+2*h}")
    for h in range(2):
        e(f"v_add_f32 v{40+2*h}, v{40+2*h}, v{48+2*h}", f"v_add_f32 v{44+2*h}, v{44+2*h}, v{52+2*h}")
    for h in range(2): e(f"v_permlane16_swap_b32 v{40+2*h}, v{44+2*h}")
    for h in range(2): e(f"v_add_f32 v{40+2*h}, v{40+2*h}, v{44+2*h}")
    e("v_cvt_pk_bf16_f32 v40, v40, v42", "v_mov_b32_dpp v41, v40 quad_perm:[1,0,3,2] row_mask:0xf bank_mask:0xf",
      f"v_perm_b32 v40, v40, v41, v{vSEL}", "v_min_u32 v40, -2, v40")
    publish(f"buffer_store_dword v40, v{vOST}, {srd(WS)}, s{sOB} offen {{fl}}")
    e(f"s_cmp_lg_u32 s{sW}, 0", "s_cbranch_scc1 L_NOST")
    e("v_add_f32_dpp v25, v25, v25 quad_perm:[1,0,3,2] row_mask:0xf bank_mask:0xf", f"v_bfe_u32 v29, v{vL16}, 5, 1", f"v_bfe_u32 v30, v{vL16}, 4, 1",
      "v_add_f32_dpp v25, v25, v25 row_ror:4 row_mask:0xf bank_mask:0xf", "v_lshlrev_b32 v29, 8, v29", "v_lshl_add_u32 v29, v30, 2, v29",
      "v_add_f32_dpp v25, v25, v25 row_ror:8 row_mask:0xf bank_mask:0xf", f"s_lshl_b32 s{sT}, s{sB}, 5", f"s_lshl_b32 s{sT+1}, s{sS}, 3",
      "v_mov_b32 v31, v25", f"s_add_u32 s{sT}, s{sT}, s{sT+1}", f"v_add_u32 v29, s{sT}, v29", "v_permlane32_swap_b32 v25, v31", "v_add_f32 v25, v25, v31",
      "v_mov_b32 v31, v25", "v_cmp_ne_u32 vcc, 0, v30", "v_permlane16_swap_b32 v25, v31", "v_add_f32 v25, v25, v31",
      "v_cndmask_b32 v25, v26, v25, vcc", "v_min_u32 v25, -2, v25", "s_mov_b64 exec, 15")
    publish(f"buffer_store_dword v25, v29, {srd(WS)}, s{sST} offen {{fl}}")
    e("s_mov_b64 exec, -1")
    e.label("L_NOST")
    stamp(5)
    def prog():
        e.label("L_PROG")
        e.nop(8)
        for i in range(16): e(f"v_mov_b32 v{40+i}, 0")
        e("v_mov_b32 v36, v62", f"s_mov_b32 s{sT+6}, 31")
        e.label("L_PROGL")
        e.label("L_PRA")
        e(f"s_cmp_ge_u32 s{sBLK}, s{sT+6}", "s_cbranch_scc1 L_PRB", f"s_cmp_ge_u32 s{sBLK}, 36", "s_cbranch_scc1 L_PRC")
        call_pump()
        e("s_waitcnt vmcnt(4)", "s_branch L_PRA")
        e.label("L_PRC")
        e("s_waitcnt vmcnt(0)")
        e.label("L_PRB")
        e("s_waitcnt vmcnt(4)", "ds_read_b128 v[32:35], v36", "s_barrier")
        grp = [8, 16, 28 - 28 + 56, 0]
        tmp = [8, 16, 56, None]
        def rd(tau, base):
            e(f"v_xor_b32 v37, {tau << 5}, v{vVRD}")
            for r in range(4):
                e(f"ds_read_b64_tr_b16 {vr(base+2*r,2)}, v37 offset:{(r & 1)*8192 + (r >> 1)*2048}")
        rd(0, 8); rd(1, 16); rd(2, 56)
        e("s_waitcnt lgkmcnt(8)")
        e(f"v_smfmac_f32_16x16x64_bf16 v[40:43], v[32:35], v[8:15], v{vIDX}")
        e.nop(4)
        rd(3, 8)
        e("s_waitcnt lgkmcnt(8)")
        e(f"v_smfmac_f32_16x16x64_bf16 v[44:47], v[32:35], v[16:23], v{vIDX}")
        e("s_waitcnt lgkmcnt(4)")
        e(f"v_smfmac_f32_16x16x64_bf16 v[48:51], v[32:35], v[56:63], v{vIDX}")
        e("s_waitcnt lgkmcnt(0)")
        e(f"v_smfmac_f32_16x16x64_bf16 v[52:55], v[32:35], v[8:15], v{vIDX}")
        e(f"v_add_u32 v{vVRD}, 0x8000, v{vVRD}", "v_add_u32 v36, 1024, v36", f"s_add_u32 s{sT+6}, s{sT+6}, 2", f"s_cmp_le_u32 s{sT+6}, 37", "s_cbranch_scc1 L_PROGL")
        e(f"v_subrev_u32 v{vVRD}, 0x20000, v{vVRD}")
        e.nop(4)
        e("s_branch L_POST")
    ool.append(prog)

    e(f"s_cmp_ge_u32 s{sC}, 28", "s_cbranch_scc1 L_NOO")
    e(f"s_bitcmp1_b32 s{sLAY}, 0", "s_cbranch_scc1 L_OWB")
    for i in range(16): e(f"v_mov_b32 v{24+i}, v{WoA+i}")
    e.label("L_OWJ")
    def wo_move(dst, t):
        e(f"v_lshrrev_b32 v{t}, 8, v{vL16}", f"v_lshlrev_b32 v{t}, 3, v{t}", f"v_bfe_u32 v63, v{vL16}, 6, 2", f"v_add_u32 v{t}, v{t}, v63", f"v_lshlrev_b32 v{t}, 6, v{t}",
          f"v_bfe_u32 v63, v{vL16}, 4, 2", f"v_lshl_add_u32 v{t}, v63, 3, v{t}",
          f"s_lshl_b32 s{sT}, s{sW}, 12", f"s_add_u32 s{sT}, s{sT}, {STG}", f"v_add_u32 v{t}, s{sT}, v{t}")
        for ks in range(2):
            for nt in range(2):
                for hh in range(2):
                    e(f"ds_read_b64_tr_b16 {vr(dst+8*ks+4*nt+2*hh,2)}, v{t} offset:{ks*2048+hh*256+nt*32}")
        e("s_waitcnt lgkmcnt(0)")
    def owb():
        e.label("L_OWB"); e.nop(2); wo_move(24, 62); e("s_branch L_OWJ")
    ool.append(owb)
    ack_wait()
    e.label("L_OPOLL")
    for mt in range(2):
        for ks in range(2):
            e(f"buffer_load_dwordx4 {vr(8+8*mt+4*ks,4)}, v{vOLD}, {srd(WS)}, s{sOB2 if mt else sOB} offen offset:{64*ks} sc1")
    e(f"buffer_load_dwordx2 v[56:57], v{vSLD}, {srd(WS)}, s{sST} offen sc1")
    poll_wait()
    check_max(list(range(8, 24)) + [56, 57], 58)
    e("s_cbranch_vccnz L_OFAIL")
    fail_path("L_OFAIL", "L_OPOLL")
    stamp(6)
    pump_nowait_if_streaming()
    side = ["v_max_f32_dpp v58, v56, v56 quad_perm:[1,0,3,2] row_mask:0xf bank_mask:0xf", "v_max_f32_dpp v58, v58, v58 quad_perm:[2,3,0,1] row_mask:0xf bank_mask:0xf",
            "v_sub_f32 v58, v56, v58", "v_exp_f32 v58, v58", "v_mul_f32 v57, v57, v58",
            "v_add_f32_dpp v57, v57, v57 quad_perm:[1,0,3,2] row_mask:0xf bank_mask:0xf", "v_add_f32_dpp v57, v57, v57 quad_perm:[2,3,0,1] row_mask:0xf bank_mask:0xf",
            "v_rcp_f32 v57, v57", "v_mul_f32 v58, v58, v57"]
    for ks in range(2):
        for mt in range(2):
            for nt in range(2):
                d = vr(40 + 8 * mt + 4 * nt, 4)
                e(f"v_mfma_f32_16x16x32_bf16 {d}, {vr(8+8*mt+4*ks,4)}, {vr(24+8*ks+4*nt,4)}, {'0' if ks == 0 else d}")
                if side: e(side.pop(0))
    while side: e(side.pop(0))
    for mt in range(2):
        for nt in range(2):
            d = 40 + 8 * mt + 4 * nt; o = 60 + 2 * mt + nt
            e(f"v_mul_f32_dpp v{o}, v58, v{d} row_newbcast:{4*mt} row_mask:0xf bank_mask:0xf")
            for s_ in range(1, 4):
                e(f"v_fmac_f32_dpp v{o}, v58, v{d+s_} row_newbcast:{4*mt+s_} row_mask:0xf bank_mask:0xf")
    e(f"ds_write_b128 v{vRW}, v[60:63]", "s_waitcnt lgkmcnt(0)", "s_barrier")
    e(f"ds_read2st64_b32 v[8:9], v{aOR} offset0:0 offset1:4", f"ds_read2st64_b32 v[10:11], v{aOR} offset0:8 offset1:12", "s_waitcnt lgkmcnt(0)")
    e("v_add_f32 v8, v8, v9", "v_add_f32 v10, v10, v11", "v_add_f32 v8, v8, v10", "v_min_u32 v8, -2, v8")
    e(f"buffer_store_dword v8, v{vX1ST}, {srd(WS)}, s{sX1} offen sc1")
    e.label("L_NOO")
    stamp(7)
    e(f"s_cmp_eq_u32 s{sLAY}, 2", "s_cbranch_scc1 L_PRELOAD")
    e.label("L_PRELD")
    def preload():
        e.label("L_PRELOAD")
        for k in range(4): e(f"s_call_b64 s[{sRET2}:{sRET2+1}], L_MOVEV{k}")
        e("s_branch L_PRELD")
    ool.append(preload)
    e(f"s_cmp_ge_u32 s{sC}, 28", f"s_cselect_b32 s{sT}, 1, s{sW}", f"s_cmp_eq_u32 s{sLAY}, 3", f"s_cselect_b32 s{sT+1}, s{sJ}, 0", f"s_or_b32 s{sT}, s{sT}, s{sT+1}",
      "s_cbranch_scc1 L_NOX")
    x2_voff(40, 41)
    e(f"v_lshlrev_b32 v42, 16, v{vXOLD}", f"v_and_b32 v43, 0xffff0000, v{vXOLD}", f"v_add_u32 v44, 4096, v{vL16}")
    ack_wait()
    e.label("L_XPOLL")
    pump_nowait_if_streaming()
    for i in range(8):
        e(f"buffer_load_dwordx4 {vr(8+4*i,4)}, v{vL16 if i < 4 else 44}, {srd(WS)}, s{sX1L} offen offset:{1024*(i&3)} sc1")
    for i in range(1, 8):
        e(f"s_waitcnt vmcnt({7-i})")
        for r in range(4):
            e(f"v_add_f32 v{48+r}, v{(8 if i == 1 else 48)+r}, v{8+4*i+r}")
    e("v_permlane32_swap_b32 v48, v50", "v_permlane32_swap_b32 v49, v51", "v_add_f32 v48, v48, v50", "v_add_f32 v49, v49, v51")
    e("v_cmp_u_f32 vcc, v48, v49", "s_cbranch_vccnz L_XNAN")
    e.label("L_XOK")
    def xnan():
        e.label("L_XNAN")
        check_max(range(8, 40), 52)
        e("s_cbranch_vccz L_XOK")
    ool.append(xnan)
    fail_path("L_XFAIL", "L_XPOLL")
    e("v_cvt_pk_bf16_f32 v48, v48, v49", "v_lshlrev_b32 v49, 16, v48", "v_and_b32 v48, 0xffff0000, v48", "v_add_f32 v42, v42, v49", "v_add_f32 v43, v43, v48",
      f"v_cvt_pk_bf16_f32 v{vXOLD}, v42, v43")
    e(f"s_cmp_eq_u32 s{sLAY}, 3", "s_cbranch_scc1 L_FINAL")
    e(f"v_min_u32 v{vXOLD}, -2, v{vXOLD}")
    publish(f"buffer_store_dword v{vXOLD}, v40, {srd(WS)}, s{sX2} offen {{fl}}")
    e.label("L_NOX")
    stamp(8)
    e(f"s_cmp_eq_u32 s{sLAY}, 3", "s_cbranch_scc1 L_END")
    q_prep()
    e(f"s_add_u32 s{SX}, s32, s{sX2}", f"s_addc_u32 s{SX+1}, s33, 0")
    e(f"s_add_u32 s{sQB}, s{sQB}, 0x10000", f"s_add_u32 s{sOB}, s{sOB}, 0x40000", f"s_add_u32 s{sOB2}, s{sOB2}, 0x40000", f"s_add_u32 s{sST}, s{sST}, 0x1000",
      f"s_add_u32 s{sX1}, s{sX1}, 0x38000", f"s_add_u32 s{sX1L}, s{sX1L}, 0x38000", f"s_add_u32 s{sX2}, s{sX2}, 0x10000", f"s_add_u32 s{sLAY}, s{sLAY}, 1")
    if debug: e(f"s_add_u32 s{sSTB}, s{sSTB}, 16")
    e(f"s_cmp_eq_u32 s{sLAY}, 1", "s_cbranch_scc1 L_LOOP")
    e("s_waitcnt vmcnt(0) lgkmcnt(0)", "s_barrier", "s_branch L_LOOP")
    e.label("L_FINAL")
    e(f"global_store_dword v40, v{vXOLD}, s[28:29]")
    stamp(8)
    e.label("L_END")
    if debug:
        e("s_mov_b64 exec, -1"); stamp(9)
        e(f"s_lshl_b32 s{sT}, s2, 2", f"s_add_u32 s{sT}, s{sT}, s{sW}", f"s_lshl_b32 s{sT}, s{sT}, 8", f"s_add_u32 s{sT}, s{sT}, {STAMPS}",
          f"v_lshrrev_b32 v8, 2, v{vL16}", f"v_add_u32 v8, s{sT}, v8", f"global_store_dword v8, v{vDBG}, s[32:33]")
    e.label("L_EXIT")
    e("s_endpgm")

    i = 0
    while i < len(ool):
        e.nop(0); ool[i](); i += 1

    for k in range(4):
        e.label(f"L_MOVEV{k}")
        for tau in range(4):
            e(f"v_xor_b32 v{vPT}, {(tau << 5) | ((k >> 1) << 16)}, v{vVRD}")
            for r in range(4):
                e(f"ds_read_b64_tr_b16 {vr(AV+32*k+8*tau+2*r,2)}, v{vPT} offset:{(k & 1)*32768 + (r & 1)*8192 + (r >> 1)*2048}")
        e(f"s_setpc_b64 s[{sRET2}:{sRET2+1}]")

    e.label("L_PUMP")
    e(f"s_cmp_ge_u32 s{sBLK}, s{sLIM}", "s_cbranch_scc1 L_PRET")
    e(f"s_bitcmp1_b64 s[{sSPEC}:{sSPEC+1}], s{sBLK}", "s_cbranch_scc1 L_PSPEC")
    e.label("L_PGEN")
    for q in range(4):
        e(f"s_mov_b32 m0, s{sRM}", f"s_add_u32 s{sRM}, s{sRM}, 4096")
        if q: e(f"v_xor_b32 v{vPT}, s{sY+q-1}, v{vB}")
        e(f"buffer_load_dwordx4 v{vPT if q else vB}, {srd(KV)}, m0 offen {KFL} lds")
    e(f"v_xor_b32 v{vB}, 0x80, v{vB}")
    e.label("L_PDONE")
    e(f"s_add_u32 s{sBLK}, s{sBLK}, 1")
    e.label("L_PRET")
    e(f"s_setpc_b64 s[{sRET}:{sRET+1}]")
    e.label("L_PSPEC")
    for k in specials:
        e(f"s_cmp_eq_u32 s{sBLK}, {k}", f"s_cbranch_scc1 L_SP{k}")
    e("s_branch L_PGEN")
    def switch(ptr, isK):
        e(f"s_add_u32 s{KV}, s{ptr}, s{sSL}", f"s_addc_u32 s{KV+1}, s{ptr+1}, 0", f"s_lshl_b32 s{sRM}, s{sW}, 10")
        if isK:
            e(f"v_lshrrev_b32 v{vPT}, 5, v{vL16}", f"v_and_b32 v{vPT}, 16, v{vPT}", f"v_xor_b32 v{vB}, v{vPT}, v{vL16}", f"s_mov_b32 s{sY}, 32", f"s_mov_b32 s{sY+1}, 64", f"s_mov_b32 s{sY+2}, 96")
        else:
            e(f"v_lshrrev_b32 v{vPT}, 4, v{vL16}", f"v_and_b32 v{vPT}, 32, v{vPT}", f"v_xor_b32 v{vB}, v{vPT}, v{vL16}", f"s_mov_b32 s{sY}, 64", f"s_mov_b32 s{sY+1}, 0", f"s_mov_b32 s{sY+2}, 64")
    def kmove(base, t):
        e("s_waitcnt vmcnt(4)")
        for jj in range(4):
            e(f"v_xor_b32 v{vPT}, {(jj << 6) | ((t >> 1) << 16)}, v{vKRD}")
            e(f"ds_read_b128 {ar(base+32*t+4*jj,4)}, v{vPT} offset:{(t & 1)*32768}", f"ds_read_b128 {ar(base+32*t+16+4*jj,4)}, v{vPT} offset:{(t & 1)*32768+256}")
        e("s_waitcnt lgkmcnt(0)")
    def wdma(ptr, isQ):
        e(f"s_mov_b32 s{SW}, s{ptr}", f"s_mov_b32 s{SW+1}, s{ptr+1}")
        if isQ:
            e(f"v_lshrrev_b32 v{vPT}, 5, v{vL16}", f"v_lshlrev_b32 v{vPT}, 13, v{vPT}", f"v_and_b32 v{vB}, 16, v{vL16}", f"v_add_u32 v{vPT}, v{vPT}, v{vB}",
              f"s_lshl_b32 s{sT}, s{sW}, 20", f"s_lshl_b32 s{sT+1}, s{sJ}, 10", f"s_add_u32 s{sT}, s{sT}, s{sT+1}", f"s_lshl_b32 s{sT+1}, s{sC}, 5", f"s_add_u32 s{sT}, s{sT}, s{sT+1}")
            step = 262144
        else:
            e(f"v_lshrrev_b32 v{vPT}, 6, v{vL16}", f"v_mul_u32_u24 v{vPT}, 896, v{vPT}", f"v_and_b32 v{vB}, 48, v{vL16}", f"v_add_u32 v{vPT}, v{vPT}, v{vB}",
              f"s_lshl_b32 s{sT}, s{sJ}, 9", f"s_lshl_b32 s{sT+1}, s{sOH}, 8", f"s_add_u32 s{sT}, s{sT}, s{sT+1}", f"s_lshl_b32 s{sT+1}, s{sW}, 6", f"s_add_u32 s{sT}, s{sT}, s{sT+1}",
              f"s_mul_i32 s{sT}, s{sT}, 896", f"s_lshl_b32 s{sT+1}, s{sNQ}, 6", f"s_add_u32 s{sT}, s{sT}, s{sT+1}",
              f"s_cmp_ge_u32 s{sC}, 28", f"s_cselect_b32 s{sT}, 0x40000000, s{sT}")
            step = 14336
        e(f"s_lshl_b32 s{sT+1}, s{sW}, 12", f"s_add_u32 s{sT+1}, s{sT+1}, {STG}")
        for d in range(4):
            e(f"s_add_u32 m0, s{sT+1}, {1024*d}", f"s_add_u32 s{sT+2}, s{sT}, {step*d}")
            e(f"buffer_load_dwordx4 v{vPT}, {srd(SW)}, s{sT+2} offen {WFL} lds")
        e("s_branch L_PDONE")
    act = {
        0: lambda: wdma(14, True),
        1: lambda: switch(10, True),
        4: lambda: kmove(0, 0), 6: lambda: kmove(0, 1), 8: lambda: kmove(0, 2),
        9: lambda: wdma(16, False),
        10: lambda: (kmove(0, 3), switch(12, False)),
        11: lambda: None,
        18: lambda: wdma(24, True),
        19: lambda: switch(20, True),
        20: lambda: None,
        22: lambda: kmove(128, 0), 24: lambda: kmove(128, 1), 26: lambda: kmove(128, 2),
        27: lambda: wdma(26, False),
        28: lambda: (kmove(128, 3), switch(22, False)),
    }
    for k in specials:
        e.label(f"L_SP{k}")
        if k in (11, 20):
            e("s_waitcnt vmcnt(4)", f"v_accvgpr_write_b32 a255, v63") if False else None
        if k == 11:
            e("s_waitcnt vmcnt(4)"); wmove_safe(e, "o")
        elif k == 20:
            e("s_waitcnt vmcnt(4)"); wmove_safe(e, "q")
        else:
            act[k]()
        if k not in (0, 9, 18, 27): e("s_branch L_PGEN")
    e.raw('.section .rodata,"a"'); e.raw(".p2align 6"); e.raw(f".amdhsa_kernel {KNAME}")
    for l in (".amdhsa_next_free_vgpr 512", ".amdhsa_next_free_sgpr 102", ".amdhsa_accum_offset 256", ".amdhsa_group_segment_fixed_size 0",
              ".amdhsa_kernarg_size 104", ".amdhsa_user_sgpr_count 2", ".amdhsa_user_sgpr_kernarg_segment_ptr 1", ".amdhsa_system_sgpr_workgroup_id_x 1",
              ".amdhsa_float_denorm_mode_32 3"):
        e.raw("  " + l)
    e.raw(".end_amdhsa_kernel")
    return e.text()

def wmove_safe(e, kind):
    if kind == "q":
        dst = WqB
        e(f"v_lshrrev_b32 v{vPT}, 8, v{vL16}", f"v_lshlrev_b32 v{vPT}, 8, v{vPT}", f"v_bfe_u32 v{dst}, v{vL16}, 4, 4", f"v_lshl_add_u32 v{vPT}, v{dst}, 3, v{vPT}",
          f"s_lshl_b32 s{sT}, s{sW}, 12", f"s_add_u32 s{sT}, s{sT}, {STG}", f"v_add_u32 v{vPT}, s{sT}, v{vPT}")
        for d in range(4):
            for hh in range(2):
                e(f"ds_read_b64_tr_b16 {vr(dst+4*d+2*hh,2)}, v{vPT} offset:{d*1024+hh*128}")
    else:
        dst = WoA; t = vPT
        e(f"v_lshrrev_b32 v{t}, 8, v{vL16}", f"v_lshlrev_b32 v{t}, 3, v{t}", f"v_bfe_u32 v{dst}, v{vL16}, 6, 2", f"v_add_u32 v{t}, v{t}, v{dst}", f"v_lshlrev_b32 v{t}, 6, v{t}",
          f"v_bfe_u32 v{dst}, v{vL16}, 4, 2", f"v_lshl_add_u32 v{t}, v{dst}, 3, v{t}",
          f"s_lshl_b32 s{sT}, s{sW}, 12", f"s_add_u32 s{sT}, s{sT}, {STG}", f"v_add_u32 v{t}, s{sT}, v{t}")
        for ks in range(2):
            for nt in range(2):
                for hh in range(2):
                    e(f"ds_read_b64_tr_b16 {vr(dst+8*ks+4*nt+2*hh,2)}, v{t} offset:{ks*2048+hh*256+nt*32}")
    e("s_waitcnt lgkmcnt(0)")

if __name__ == "__main__":
    dbg = "--debug" in sys.argv
    out = [a for a in sys.argv[1:] if not a.startswith("--")]
    txt = gen(dbg)
    open(out[0] if out else "k.s", "w").write(txt)
```

```python
import re

_REG = re.compile(r'\b([vas])(\d+)\b|\b([vas])\[(\d+):(\d+)\]')
TRANS = ("v_exp_f32", "v_log_f32", "v_rcp_f32", "v_rsq_f32", "v_sqrt_f32", "v_sin_f32", "v_cos_f32")

def regs(op):
    out = []
    op = op.strip()
    for m in _REG.finditer(op):
        if m.group(1):
            out.append((m.group(1), int(m.group(2))))
        else:
            out += [(m.group(3), i) for i in range(int(m.group(4)), int(m.group(5)) + 1)]
    if re.search(r'\bvcc\b', op): out += [("s", "vcc")]
    if re.search(r'\bm0\b', op): out += [("s", "m0")]
    return out

class Asm:
    def __init__(self):
        self.lines = []
        self.t = 0
        self.w_valu = {}
        self.w_trans = {}
        self.w_mfma = {}
        self.r_mfmac = {}
        self.w_sgpr_valu = {}
        self.w_m0 = -100
        self.st_data = {}
        self.nops = 0
        self.last_mfma = -100
    def raw(self, s):
        self.lines.append(s)
    def label(self, s):
        self.lines.append(s + ":")
        self.last_mfma = -100
    def comment(self, s):
        self.lines.append("; " + s)
    def nop(self, n):
        while n > 0:
            k = min(n, 16)
            self.lines.append(f"s_nop {k-1}")
            self.t += k; n -= k; self.nops += k
    def fence(self, n=8):
        self.nop(n)
    def __call__(self, *ins):
        for s in ins:
            self.one(s)
    def one(self, s):
        s = s.strip()
        if not s or s.startswith(";"):
            self.lines.append(s); return
        mn, _, rest = s.partition(" ")
        ops = [o.strip() for o in re.split(r',(?![^\[]*\])', rest)] if rest else []
        is_mfma = mn.startswith("v_mfma") or mn.startswith("v_smfmac")
        is_valu = mn.startswith("v_") and not is_mfma
        is_vmem = mn.startswith("buffer_") or mn.startswith("global_")
        is_ds = mn.startswith("ds_")
        is_dpp = is_valu and bool(re.search(r'quad_perm|row_shl|row_shr|row_ror|row_mirror|row_half_mirror|row_bcast|row_newbcast|wave_', s))
        is_perml = mn.startswith("v_permlane")
        is_rdlane = mn.startswith("v_readlane") or mn.startswith("v_readfirstlane")
        wr, rd = [], []
        if is_mfma:
            wr = regs(ops[0]); rd = regs(ops[1]) + regs(ops[2]) + regs(ops[3])
            if mn.startswith("v_smfmac"): rd += regs(ops[0])
        elif is_valu:
            if is_perml:
                wr = regs(ops[0]) + regs(ops[1]); rd = list(wr)
            else:
                wr = regs(ops[0]); rd = sum((regs(o) for o in ops[1:]), [])
                if mn.startswith("v_fmac") or mn.startswith("v_dot2c") or mn.startswith("v_writelane") or is_dpp:
                    rd += regs(ops[0])
                if mn.startswith("v_cndmask") and len(ops) == 3: rd += [("s", "vcc")]
        elif is_vmem:
            if "_load_" in mn and " lds" not in s and "_lds_" not in mn:
                wr = regs(ops[0]); rd = sum((regs(o) for o in ops[1:]), [])
            elif "atomic" in mn and " sc0" in s:
                wr = regs(ops[0]); rd = sum((regs(o) for o in ops[1:]), [])
            else:
                rd = sum((regs(o) for o in ops), [])
        elif is_ds:
            if mn.startswith("ds_read") or mn.startswith("ds_bpermute") or mn.startswith("ds_swizzle"):
                wr = regs(ops[0]); rd = sum((regs(o) for o in ops[1:]), [])
            else:
                rd = sum((regs(o) for o in ops), [])
        need = 0
        def req(tab, r, n):
            nonlocal need
            if r in tab: need = max(need, tab[r] + n + 1 - self.t)
        vrd = [r for r in rd if r[0] in "va"]; vwr = [r for r in wr if r[0] in "va"]
        srd = [r for r in rd if r[0] == "s"]
        if is_mfma:
            for r in vrd: req(self.w_valu, r, 2)
            cset = set(regs(ops[0]) if mn.startswith("v_smfmac") else regs(ops[3]))
            dset = set(regs(ops[0]))
            for r in vrd:
                if r in cset and cset == dset and r not in set(regs(ops[1]) + regs(ops[2])):
                    continue
                req(self.w_mfma, r, 8)
            if cset != dset:
                for r in vwr: req(self.w_mfma, r, 8)
        else:
            for r in vrd + vwr: req(self.w_mfma, r, 8)
            if is_valu:
                for r in vwr: req(self.r_mfmac, r, 3); req(self.st_data, r, 2)
                for r in srd: req(self.w_sgpr_valu, r, 4 if (is_rdlane or mn.startswith("v_writelane")) else 2)
                if not mn.startswith(TRANS):
                    for r in vrd: req(self.w_trans, r, 1)
                if is_dpp or is_perml:
                    for r in vrd: req(self.w_valu, r, 2)
                if is_rdlane:
                    for r in vrd: req(self.w_valu, r, 1)
            if is_vmem:
                for r in srd: req(self.w_sgpr_valu, r, 5)
                for r in vrd: req(self.w_trans, r, 1)
                if " lds" in s or "_lds_" in mn: need = max(need, self.w_m0 + 2 - self.t)
                for r in vwr: req(self.st_data, r, 1)
            if is_ds:
                for r in vrd: req(self.w_trans, r, 1)
                for r in vwr: req(self.st_data, r, 1)
            if mn.startswith("s_") and not mn.startswith(("s_nop", "s_waitcnt", "s_barrier", "s_branch", "s_cbranch_scc", "s_endpgm")):
                allr = sum((regs(o) for o in ops), [])
                for r in allr:
                    if r[0] == "s": req(self.w_sgpr_valu, r, 3)
        if need > 0: self.nop(need)
        if is_mfma:
            self.t = max(self.t, self.last_mfma + 4); self.last_mfma = self.t
        self.lines.append(s)
        if is_mfma:
            for r in vwr: self.w_mfma[r] = self.t
            for r in (regs(ops[0]) if mn.startswith("v_smfmac") else regs(ops[3])): self.r_mfmac[r] = self.t
            if mn.startswith("v_smfmac"):
                for r in regs(ops[3]): self.r_mfmac[r] = self.t
        elif is_valu:
            for r in wr:
                if r[0] == "s": self.w_sgpr_valu[r] = self.t
                else:
                    self.w_valu[r] = self.t; self.w_mfma.pop(r, None)
                    if mn.startswith(TRANS): self.w_trans[r] = self.t
                    else: self.w_trans.pop(r, None)
        elif is_vmem or is_ds:
            for r in vwr: self.w_valu.pop(r, None); self.w_trans.pop(r, None); self.w_mfma.pop(r, None)
            if is_vmem and "store" in mn and ("x4" in mn or "x3" in mn):
                for r in vrd: self.st_data[r] = self.t
        elif mn.startswith("s_"):
            if ops and ops[0] == "m0": self.w_m0 = self.t
            if ops:
                for r in regs(ops[0]):
                    if not mn.startswith(("s_cmp", "s_bitcmp", "s_cbranch", "s_setpc")): self.w_sgpr_valu.pop(r, None)
        if mn == "s_nop":
            self.t += int(ops[0]) + 1
        else:
            self.t += 1
    def text(self):
        return "\n".join(self.lines) + "\n"
```

```python
import sys, struct
sys.path.insert(0, "gen")
from asmlib import Asm

KNAME = "interleave_layers__sliding_block_cached__sliding_block_cached__decode_kernel"
HEADER = open("interleave_layers__sliding_block_cached__sliding_block_cached__decode.s.ref").read().split("; Override launch")[0]

def f2u(x): return struct.unpack("<I", struct.pack("<f", x))[0]

STG = 131072
SCR = 147456
PA = SCR
SL = SCR + 4096
FLAG = SCR + 4160
RED = SCR + 4608
RS = 2048 + 64
QB0 = 0x0
BLK = 0x10000
BSZ = 0xD000
X1 = BLK + 32 * BSZ
WSEND = X1 + 4 * 0x38000
STAMPS = 0x300000
WX = 0x400000
assert WSEND <= STAMPS
sJ, sC = 34, 35
KV, SF, WS, SX, SS = 36, 40, 44, 48, 4
sW, sSL, sRM, sIT, sLIM = 52, 53, 54, 55, 56
sSTOP, sNSP = 57, 59
sRET, sRET2 = 60, 62
sY, sCNT = 64, 65
sLAY, sSPIN = 66, 68
sQB, sOB, sOB2, sST, sX1, sBK = 69, 70, 71, 72, 73, 74
sA0, sA1 = 75, 76
sT = 77
sMI8, sMQ = 86, 88
sB, sS, sOH, sNQ, sEXP = 90, 91, 92, 93, 94
sX1L = 95
sSTB = 98
sODD = 8
sLIMX = 58
sXO = 67
vL16, vXOLD, vDBG, vB, vKRD, vPT, vVRD, vIDX = 0, 1, 2, 3, 4, 5, 6, 7
WqA, WoA, WqB = 64, 80, 96
vX0, vX1r, vRW, aD, aCS, aDG, aGS, vQST, vQLD, vPW, vOST, vOLD, vSLD, aOR, vX1ST, vSEL = range(112, 128)
AV = 128

def srd(r): return f"s[{r}:{r+3}]"
def vr(a, n): return f"v[{a}:{a+n-1}]"
def ar(a, n): return f"a[{a}:{a+n-1}]"
DPP = "row_mask:0xf bank_mask:0xf"

def gen(debug=False, opt=None):
    opt = opt or {}
    KFL = opt.get("kvflag", "nt"); WFL = opt.get("wflag", "nt")
    DS = opt.get("ds", 6)
    DP = opt.get("dp", 4)
    PRE = opt.get("pre", 2)
    XPRE = opt.get("xpre", 8)
    ROLL = opt.get("roll", 1)
    W0 = opt.get("w0", 4)
    WQA = opt.get("wqa", [])
    WQB = opt.get("wqb", [66, 70, 74, 78])
    EB = opt.get("eb", 0)
    if EB: WQB = []
    SPEC0 = min(WQA + [14])
    LIM0 = 26
    QROT = opt.get("qrot", 16)
    RW = opt.get("rw", 0)
    WOA = [44, 48, 52, 56] if RW else [26, 34, 42, 50]
    WOB = [112, 116, 120, 124] if RW else [90, 98, 106, 114]
    if RW: WQB = []
    MB = opt.get("mb", 1)
    if MB:
        WQB = opt.get("wqb", [26, 32, 38, 44]); WOA = [WQB[3] + 10 + 2 * d for d in range(4)]
    WQBM = WQB[3] + 8 if WQB else 0
    e = Asm()
    uid = [0]
    def L(p):
        uid[0] += 1; return f"L_{p}_{uid[0]}"
    ool = []
    SP = [0, 18, 84, 96, 100]
    sset = opt.get("stamps", [])
    clk = opt.get("clk", "s_memrealtime")
    def stamp(i):
        if not debug: return
        if i in (15, 9):
            e("s_memrealtime s[96:97]", f"s_add_u32 m0, s{sSTB}, {i}", "s_waitcnt lgkmcnt(0)", f"v_writelane_b32 v{vDBG}, s96, m0")
        elif i in sset:
            p = SP[sset.index(i)]
            e(f"{clk} s[{p}:{p+1}]")
    def collect():
        if not debug or not sset: return
        e("s_waitcnt lgkmcnt(0)")
        for n_, i in enumerate(sset):
            e(f"s_add_u32 m0, s{sSTB}, {i if i < 15 else i - 10}", "s_nop 0", f"v_writelane_b32 v{vDBG}, s{SP[n_]}, m0", f"s_mov_b32 s{SP[n_]}, 0")
    def pair():
        e(f"s_lshr_b32 s{sY}, s{sRM}, 7", f"s_mov_b32 m0, s{sRM}", f"s_and_b32 s{sY}, s{sY}, 0xc0", f"v_xor_b32 v{vPT}, s{sY}, v{vB}",
          f"buffer_load_dwordx4 v{vPT}, {srd(KV)}, m0 offen {KFL} lds", f"s_add_u32 m0, s{sRM}, 4096", f"v_xor_b32 v{vPT}, 32, v{vPT}", f"s_add_u32 s{sRM}, s{sRM}, 8192",
          f"buffer_load_dwordx4 v{vPT}, {srd(KV)}, m0 offen {KFL} lds", f"s_add_u32 s{sIT}, s{sIT}, 2")
    def spin_down(): e(f"s_sub_u32 s{sSPIN}, s{sSPIN}, 1", "s_cbranch_scc1 L_END")
    def call_pump():
        e(f"s_call_b64 s[{sRET}:{sRET+1}], L_PUMP")
    def pump_until(n, D):
        a, b = L("pu"), L("pud")
        e.label(a)
        e(f"s_cmp_ge_u32 s{sIT}, {n}", f"s_cbranch_scc1 {b}", f"s_waitcnt vmcnt({D-2})")
        call_pump()
        e(f"s_branch {a}")
        e.label(b)
    def landed(m, D):
        pump_until(m + D, D); e(f"s_waitcnt vmcnt({D})")
    DC = opt.get("dc", 4)
    DO = opt.get("do", 4); BX = opt.get("bx", 0); BF = opt.get("bf", 2); D2 = opt.get("d2", 6)
    POST = opt.get("post", 1)
    IPR = opt.get("ipr", 2)
    NR = opt.get("nr", 2)
    SITE = dict(QA=(IPR, NR), Q=(IPR, NR), A=(IPR, NR), OP=(IPR, NR), X=(IPR, NR), XP=(IPR, NR))
    SITE.update({k: tuple(v) for k, v in opt.get("site", {}).items()})
    def stream_round(a, again, chk, P, site):
        ipr, nr = SITE[site]
        def f():
            e.label(a)
            if ipr == 0:
                e("s_waitcnt vmcnt(0)", f"s_branch {chk}"); return
            for _ in range(ipr // 2):
                e(f"s_waitcnt vmcnt({ipr*nr-2+nr*P})"); call_pump()
            e(f"s_waitcnt vmcnt({(nr-1)*(P+ipr)+ipr})", f"s_cmp_lt_u32 s{sIT}, s{sLIM}", f"s_cbranch_scc1 {a}_w", "s_waitcnt vmcnt(0)", f"s_branch {chk}")
            e.label(a + "_w")
            e(f"s_sub_u32 s{sCNT}, s{sCNT}, 1", f"s_cbranch_scc0 {again}", f"s_mov_b32 s{sCNT}, 0", f"s_branch {chk}")
        ool.append(f)
    def arm(site): return f"s_mov_b32 s{sCNT}, {SITE[site][1]-1}"
    def probe(name, load, lanes, done, site):
        e(arm(site))
        e.label(name)
        e(f"s_mov_b32 exec_lo, {lanes}", "s_mov_b32 exec_hi, 0", load, "s_mov_b64 exec, -1", f"s_branch {name}S")
        e.label(name + "C")
        e(f"s_mov_b32 exec_lo, {lanes}", "s_mov_b32 exec_hi, 0", "v_cmp_eq_u32 vcc, -1, v46", "s_mov_b64 exec, -1", f"s_cbranch_vccz {done}")
        spin_down(); e(f"s_branch {name}")
        stream_round(name + "S", name, name + "C", 1, site)
    def flag_wait(name, val):
        e(f"v_mov_b32 v47, {FLAG}")
        e.label(name)
        if DC:
            e(f"s_waitcnt vmcnt({DC-2})"); call_pump()
        e("ds_read_b32 v46, v47")
        spin_down()
        e("s_waitcnt lgkmcnt(0)", f"v_readfirstlane_b32 s{sT}, v46", f"s_cmp_lt_u32 s{sT}, {val}", f"s_cbranch_scc1 {name}")
    def drain_stream(D=None, P=8):
        D = D or DS
        b_ = L("dr")
        for _ in range(D // 2):
            e(f"s_waitcnt vmcnt({D-2+P})"); call_pump()
        e(f"s_waitcnt vmcnt({D})", f"s_cmp_lt_u32 s{sIT}, s{sLIM}", f"s_cbranch_scc1 {b_}", "s_waitcnt vmcnt(0)")
        e.label(b_)
    def poll(name, issue, P, check, first, undo=None, special=None, gate=None, cond=f"s_cmp_lt_u32 s{sLAY}, 2"):
        e.label(f"L_{name}P")
        issue()
        e(cond, f"s_cbranch_scc1 L_{name}S")
        if gate: gate()
        elif ROLL: e(f"s_waitcnt vmcnt({P})")
        e.label(f"L_{name}R")
        if ROLL:
            issue(); e(f"s_waitcnt vmcnt({P})")
        else:
            e("s_waitcnt vmcnt(0)")
        e.label(f"L_{name}C")
        check()
        first()
        e(f"s_cbranch_vccnz L_{name}F")
        e.label(f"L_{name}OK")
        stream_round(f"L_{name}S", f"L_{name}P", f"L_{name}C", P, name if name in SITE else name[0])
        def f():
            e.label(f"L_{name}F")
            if special: special()
            if undo: undo()
            spin_down()
            e(cond)
            if ROLL:
                e(f"s_cbranch_scc0 L_{name}R", f"s_branch L_{name}P")
            else:
                e(f"s_cbranch_scc1 L_{name}P"); issue(); e(f"s_branch L_{name}R")
        ool.append(f)
    def pre_issue(n=None):
        n = PRE if n is None else n
        if n == 0: return
        a, b = L("pn"), L("pnd")
        e(f"s_cmp_lt_u32 s{sIT}, s{sLIM}", f"s_cbranch_scc1 {a}")
        e.label(b)
        def f():
            e.label(a)
            for _ in range(n // 2): call_pump()
            e(f"s_branch {b}")
        ool.append(f)
    def publish(fmt):
        e(fmt.format(r=srd(SF), fl=""), fmt.format(r=srd(SS), fl="sc1"))
    def check_max(rs, t):
        rs = list(rs)
        e(f"v_max3_u32 v{t}, v{rs[0]}, v{rs[1]}, v{rs[2]}")
        rest = rs[3:]
        while len(rest) >= 2:
            e(f"v_max3_u32 v{t}, v{t}, v{rest[0]}, v{rest[1]}"); rest = rest[2:]
        if rest: e(f"v_max_u32 v{t}, v{t}, v{rest[0]}")
        e(f"v_cmp_eq_u32 vcc, -1, v{t}")
    def switch(ptr, isK):
        e(f"s_add_u32 s{KV}, s{ptr}, s{sSL}", f"s_addc_u32 s{KV+1}, s{ptr+1}, 0", f"s_mov_b32 s{KV+2}, 0x20000", f"s_lshl_b32 s{sRM}, s{sW}, 10")
        e(f"v_lshrrev_b32 v{vPT}, 5, v{vL16}", f"v_and_b32 v{vPT}, 16, v{vPT}", f"v_xor_b32 v{vB}, v{vPT}, v{vL16}")
    def wdma_addr(isQ, t0):
        if isQ:
            e(f"v_lshrrev_b32 v{t0}, 5, v{vL16}", f"v_lshlrev_b32 v{t0}, 13, v{t0}", f"v_and_or_b32 v{t0}, v{vL16}, 16, v{t0}",
              f"s_lshl_b32 s{sT}, s{sW}, 20", f"s_lshl_b32 s{sT+1}, s{sJ}, 10", f"s_add_u32 s{sT}, s{sT}, s{sT+1}", f"s_xor_b32 s{sT+1}, s{sC}, {QROT}", f"s_lshl_b32 s{sT+1}, s{sT+1}, 5", f"s_add_u32 s{sT}, s{sT}, s{sT+1}")
        else:
            e(f"v_lshrrev_b32 v{t0}, 6, v{vL16}", f"v_mul_u32_u24 v{t0}, 896, v{t0}", f"v_and_or_b32 v{t0}, v{vL16}, 48, v{t0}",
              f"s_lshl_b32 s{sT}, s{sJ}, 9", f"s_lshl_b32 s{sT+1}, s{sOH}, 8", f"s_add_u32 s{sT}, s{sT}, s{sT+1}", f"s_lshl_b32 s{sT+1}, s{sW}, 6", f"s_add_u32 s{sT}, s{sT}, s{sT+1}",
              f"s_mul_i32 s{sT}, s{sT}, 896", f"s_lshl_b32 s{sT+1}, s{sNQ}, 6", f"s_add_u32 s{sT}, s{sT}, s{sT+1}",
              f"s_cmp_ge_u32 s{sC}, 28", f"s_cselect_b32 s{sT}, 0x40000000, s{sT}")
        e(f"s_lshl_b32 s{sT+1}, s{sW}, 12", f"s_add_u32 s{sT+1}, s{sT+1}, {STG}")
    def wdma_issue(ptr, isQ, t0, ds):
        step = 262144 if isQ else 14336
        e(f"s_mov_b32 s{KV}, s{ptr}", f"s_mov_b32 s{KV+1}, s{ptr+1}", f"s_mov_b32 s{KV+2}, {0 if (opt.get('now') or (opt.get('nowqb') and ptr == 24)) else 3670016}")
        for d in ds:
            e(f"s_add_u32 m0, s{sT+1}, {1024*d}", f"s_add_u32 s{sT+2}, s{sT}, {step*d}")
            e(f"buffer_load_dwordx4 v{t0}, {srd(KV)}, s{sT+2} offen {WFL} lds")
    def wq_move(dst, t, stg=STG):
        e(f"v_lshrrev_b32 v{t}, 8, v{vL16}", f"v_lshlrev_b32 v{t}, 8, v{t}", f"v_bfe_u32 v{dst}, v{vL16}, 4, 4", f"v_lshl_add_u32 v{t}, v{dst}, 3, v{t}",
          f"s_lshl_b32 s{sT}, s{sW}, 12", f"s_add_u32 s{sT}, s{sT}, {stg}", f"v_add_u32 v{t}, s{sT}, v{t}")
        for d in range(4):
            for hh in range(2):
                e(f"ds_read_b64_tr_b16 {vr(dst+4*d+2*hh,2)}, v{t} offset:{d*1024+hh*128}")
        e("s_waitcnt lgkmcnt(0)")
    def wo_move(dst, t):
        e(f"v_lshrrev_b32 v{t}, 8, v{vL16}", f"v_lshlrev_b32 v{t}, 3, v{t}", f"v_bfe_u32 v{dst}, v{vL16}, 6, 2", f"v_add_u32 v{t}, v{t}, v{dst}", f"v_lshlrev_b32 v{t}, 6, v{t}",
          f"v_bfe_u32 v{dst}, v{vL16}, 4, 2", f"v_lshl_add_u32 v{t}, v{dst}, 3, v{t}",
          f"s_lshl_b32 s{sT}, s{sW}, 12", f"s_add_u32 s{sT}, s{sT}, {STG}", f"v_add_u32 v{t}, s{sT}, v{t}")
        for ks in range(2):
            for nt in range(2):
                for hh in range(2):
                    e(f"ds_read_b64_tr_b16 {vr(dst+8*ks+4*nt+2*hh,2)}, v{t} offset:{ks*2048+hh*256+nt*32}")
        e("s_waitcnt lgkmcnt(0)")
    def x2_voff(d, t):
        e(f"v_bfe_u32 v{d}, v{vL16}, 6, 3", f"v_mul_u32_u24 v{d}, 896, v{d}", f"v_bfe_u32 v{t}, v{vL16}, 4, 2", f"v_lshl_add_u32 v{d}, v{t}, 3, v{d}",
          f"v_lshrrev_b32 v{t}, 9, v{vL16}", f"v_lshl_add_u32 v{d}, v{t}, 2, v{d}", f"s_lshl_b32 s{sT}, s{sC}, 5", f"v_add_u32 v{d}, s{sT}, v{d}")
    def q_prep():
        for i in range(16): e(f"v_mov_b32 v{8+i}, 0x3f803f80")

    e.raw(HEADER.rstrip())
    e.raw("; @launch grid=(256,1,1) block=(256,1,1) lds=163840")
    e.raw('.amdgcn_target "amdgcn-amd-amdhsa--gfx950"')
    e.raw(".text"); e.raw(f".globl {KNAME}"); e.raw(".p2align 8"); e.raw(f".type {KNAME},@function")
    e.label(KNAME)
    e("s_cmp_ge_u32 s2, 256", "s_cbranch_scc1 L_EXIT")
    e("s_load_dwordx16 s[8:23], s[0:1], 0", "s_load_dwordx8 s[24:31], s[0:1], 64", "s_load_dwordx2 s[32:33], s[0:1], 96")
    e("s_getpc_b64 s[80:81]")
    if debug:
        e(f"v_mov_b32 v{vDBG}, 0", f"s_mov_b32 s{sSTB}, 0"); stamp(15)
    e("v_lshrrev_b32 v8, 6, v0", "v_and_b32 v9, 63, v0", "v_lshlrev_b32 v30, 4, v0")
    e(f"s_and_b32 s{sJ}, s2, 7", f"s_lshr_b32 s{sC}, s2, 3")
    e(f"v_readfirstlane_b32 s{sW}, v8")
    e(f"v_lshlrev_b32 v{vL16}, 4, v9")
    if opt.get("codepf", 0):
        e("global_load_dwordx4 a[200:203], v30, s[80:81]", "v_add_u32 v11, 4096, v30", "global_load_dwordx4 a[204:207], v11, s[80:81]",
          "v_add_u32 v11, 8192, v30", "global_load_dwordx4 a[208:211], v11, s[80:81]")
    e(f"s_and_b32 s{sB}, s{sC}, 7", f"s_lshr_b32 s{sS}, s{sC}, 3")
    e(f"s_lshl_b32 s{sSL}, s{sB}, 3", f"s_add_u32 s{sSL}, s{sSL}, s{sJ}", f"s_lshl_b32 s{sSL}, s{sSL}, 21",
      f"s_lshl_b32 s{sT}, s{sS}, 17", f"s_add_u32 s{sSL}, s{sSL}, s{sT}", f"s_add_u32 s{sSL}, s{sSL}, 0x180000")
    e(f"s_mov_b32 s{KV+3}, 0x20000")
    wdma_addr(True, 12)
    e(f"v_lshrrev_b32 v{vPT}, 5, v{vL16}", f"v_and_b32 v{vPT}, 16, v{vPT}", f"v_xor_b32 v{vB}, v{vPT}, v{vL16}",
      f"s_lshl_b32 s{sRM}, s{sW}, 10")
    for i in range(4): e(f"v_mov_b32 v{24+i}, -1")
    e(f"s_lshl_b32 s{sA0}, s2, 12", f"s_add_u32 s{sA0}, s{sA0}, {BLK}", f"s_add_u32 s{sA1}, s{sA0}, 0x100000", f"s_add_u32 s{sCNT}, s{sA0}, 0x200000",
      f"s_mov_b32 s{WS+2}, {WSEND}", f"s_mov_b32 s{WS+3}, 0x20000")
    e("v_bfe_u32 v13, v9, 2, 3", "v_lshrrev_b32 v14, 5, v9", f"v_lshl_add_u32 v14, v8, 1, v14",
      f"s_and_b32 s{sY}, s{sC}, 16", f"s_xor_b32 s{sY}, s{sY}, {QROT}", f"s_and_b32 s{sIT}, s{sC}, 15", f"s_lshl_b32 s{sIT}, s{sIT}, 6", f"s_add_u32 s{sY}, s{sY}, s{sIT}",
      "v_lshlrev_b32 v15, 10, v14", "v_and_b32 v16, 1, v13", "v_lshl_add_u32 v15, v16, 5, v15", "v_lshrrev_b32 v16, 1, v13", "v_lshl_add_u32 v15, v16, 2, v15", f"v_add_u32 v{vQST}, s{sY}, v15",
      f"s_lshl_b32 s{sQB}, s{sJ}, 13")
    e("s_waitcnt lgkmcnt(0)")
    e(f"s_mov_b32 s{WS}, s32", f"s_mov_b32 s{WS+1}, s33")
    if not opt.get("noclear"):
        for r in (sA0, sA1, sCNT): e(f"buffer_store_dwordx4 v[24:27], v30, {srd(WS)}, s{r} offen sc1")
    e(f"buffer_store_dword v24, v{vQST}, {srd(WS)}, s{sQB} offen sc1")
    wdma_issue(14, True, 12, range(W0))
    if EB:
        e(f"s_sub_u32 s{sT+1}, s{sT+1}, 16384")
        wdma_issue(24, True, 12, range(4))
    e(f"s_add_u32 s{KV}, s10, s{sSL}", f"s_addc_u32 s{KV+1}, s11, 0", f"s_mov_b32 s{KV+2}, 0x20000")
    NK0 = opt.get("nk0", 8)
    for q in range(NK0):
        e(f"s_mov_b32 m0, s{sRM}", f"s_add_u32 s{sRM}, s{sRM}, 4096")
        if q & 7: e(f"v_xor_b32 v{vPT}, {(q & 7) << 5}, v{vB}")
        e(f"buffer_load_dwordx4 v{vPT if q & 7 else vB}, {srd(KV)}, m0 offen {KFL} lds")
    if debug:
        for p in SP: e(f"s_mov_b32 s{p}, 0")
    e(f"s_mov_b32 s{sIT}, {NK0}", f"s_mov_b32 s{sLIM}, {LIM0}", f"s_mov_b32 s{sNSP}, {SPEC0}", f"s_mov_b32 s{sSTOP}, {SPEC0}", f"s_mov_b32 s{sLIMX}, {WOB[0] if RW else 128}")
    for r, n in ((SF, 0), (SS, WSEND)):
        e(f"s_mov_b32 s{r}, s32", f"s_mov_b32 s{r+1}, s33", f"s_mov_b32 s{r+2}, {n}", f"s_mov_b32 s{r+3}, 0x20000")
    e(f"s_mov_b32 s{SX}, s8", f"s_mov_b32 s{SX+1}, s9", f"s_mov_b32 s{SX+2}, 7168", f"s_mov_b32 s{SX+3}, 0x20000")
    x2_voff(28, 29)
    e(f"buffer_load_dword v{vXOLD}, v28, {srd(SX)}, 0 offen")
    e(f"s_cmp_ge_u32 s{sC}, 14", f"s_cselect_b32 s{sOH}, 1, 0", f"s_mul_i32 s{sT}, s{sOH}, 14", f"s_sub_u32 s{sNQ}, s{sC}, s{sT}")
    e("v_and_b32 v10, 15, v9", "v_lshrrev_b32 v11, 4, v9")
    e(f"s_lshl_b32 s{sT}, s{sW}, 10")
    e("v_mul_u32_u24 v12, 896, v10", "v_lshl_add_u32 v12, v11, 4, v12", f"s_lshl_b32 s{sT+1}, s{sW}, 8", f"v_add_u32 v12, s{sT+1}, v12")
    e(f"s_cmp_eq_u32 s{sW}, 3", f"s_cselect_b32 s{sT+1}, 0x40000000, 0", f"v_add_u32 v13, s{sT+1}, v12")
    e("s_mov_b32 exec_lo, 0x00ff00ff", "s_mov_b32 exec_hi, 0x00ff00ff")
    for d in range(4): e(f"buffer_load_dwordx4 {vr(40+4*d,4)}, v{12 if d < 2 else 13}, {srd(SX)}, 0 offen offset:{64*d}")
    e("s_mov_b64 exec, -1")
    e("v_lshlrev_b32 v12, 4, v10", "v_lshl_add_u32 v12, v11, 7, v12", f"s_lshl_b32 s{sT+1}, s{sW}, 11", f"v_add_u32 v{vX0}, s{sT+1}, v12")
    e("v_lshrrev_b32 v12, 1, v10", "v_lshlrev_b32 v12, 12, v12", "v_and_b32 v13, 1, v10", "v_lshl_add_u32 v12, v13, 9, v12",
      "v_xor_b32 v14, v11, v10", "v_lshl_add_u32 v12, v14, 4, v12", f"v_add_u32 v{vKRD}, s{sT}, v12")
    e(f"s_mul_i32 s{sT+1}, s{sW}, {RS}", f"s_add_u32 s{sT+1}, s{sT+1}, {RED}", "v_lshlrev_b32 v12, 2, v9", f"v_add_u32 v{vRW}, s{sT+1}, v12")
    e("v_and_b32 v12, 3, v9", f"v_mul_u32_u24 v12, {RS}, v12", f"v_add_u32 v12, {RED}, v12",
      "v_bfe_u32 v13, v9, 2, 3", "v_lshrrev_b32 v14, 5, v9", f"s_lshl_b32 s{sT+1}, s{sW}, 1", f"v_add_u32 v14, s{sT+1}, v14")
    e("v_lshrrev_b32 v15, 2, v14", "v_lshlrev_b32 v15, 6, v15", "v_and_b32 v16, 3, v14", "v_lshl_add_u32 v15, v16, 8, v15", "v_add_u32 v15, v15, v12")
    e(f"v_lshl_add_u32 v{aD}, v13, 3, v15")
    e(f"v_lshl_add_u32 v{aCS}, v13, 3, v12")
    e(f"v_lshl_add_u32 v{aDG}, v14, 2, v15")
    e(f"v_lshl_add_u32 v{aGS}, v14, 2, v12")
    e(f"s_mov_b32 s{sMI8}, 0x00ff00ff", f"s_mov_b32 s{sMI8+1}, 0x00ff00ff", f"s_mov_b32 s{sMQ}, 0x11111111", f"s_mov_b32 s{sMQ+1}, 0x11111111")
    e(f"s_mov_b32 s{sLAY}, 0", f"s_mov_b32 s{sSPIN}, 300000")
    e(f"s_mul_i32 s{sBK}, s{sJ}, {BSZ}", f"s_add_u32 s{sBK}, s{sBK}, {BLK}", f"s_add_u32 s{sOB}, s{sBK}, 0x4000",
      f"s_add_u32 s{sST}, s{sBK}, 0xC000", f"s_mov_b32 s{sX1}, {X1}", f"s_lshl_b32 s{sX1L}, s{sC}, 13", f"s_add_u32 s{sX1L}, s{sX1L}, {X1}")
    e("v_lshrrev_b32 v12, 2, v10", "v_and_b32 v13, 3, v9", "v_and_b32 v14, 1, v11", "v_lshrrev_b32 v17, 1, v11")
    e("v_lshlrev_b32 v18, 5, v14", "v_lshl_add_u32 v18, v12, 3, v18", "v_lshl_add_u32 v18, v17, 1, v18")
    e("v_lshlrev_b32 v19, 3, v14", "v_lshl_add_u32 v19, v12, 1, v19")
    e(f"s_lshl_b32 s{sT}, s{sW}, 3", "v_lshrrev_b32 v20, 1, v13", f"v_add_u32 v20, s{sT}, v20", "v_xor_b32 v20, v20, v19",
      "v_lshlrev_b32 v18, 9, v18", "v_lshl_add_u32 v18, v20, 4, v18", "v_and_b32 v20, 1, v13", f"v_lshl_add_u32 v{vVRD}, v20, 3, v18")
    e("v_and_b32 v14, 1, v9", "v_bfe_u32 v15, v10, 1, 1", "v_cmp_eq_u32 vcc, 1, v15", "v_mov_b32 v16, 0x4444", "v_mov_b32 v17, 0xeeee", f"v_cndmask_b32 v{vIDX}, v16, v17, vcc",
      "v_cmp_eq_u32 vcc, 1, v14", "v_mov_b32 v16, 0x01000504", "v_mov_b32 v17, 0x07060302", f"v_cndmask_b32 v{vSEL}, v16, v17, vcc")
    e("v_lshlrev_b32 v16, 4, v13", "v_lshl_add_u32 v16, v11, 6, v16", f"s_lshl_b32 s{sT}, s{sB}, 10", f"v_add_u32 v{vQLD}, s{sT}, v16")
    e(f"s_mul_i32 s{sT}, s{sW}, 320", f"s_add_u32 s{sT}, s{sT}, {PA}", "v_lshlrev_b32 v16, 10, v11", "v_bfe_u32 v17, v10, 2, 1", "v_lshl_add_u32 v16, v17, 5, v16",
      "v_and_b32 v17, 8, v10", "v_add_u32 v16, v16, v17", "v_lshl_add_u32 v16, v14, 2, v16", "v_lshl_add_u32 v16, v15, 1, v16", f"v_add_u32 v{vPW}, s{sT}, v16")
    e(f"s_and_b32 s{sT}, s{sB}, 3", f"s_lshl_b32 s{sT}, s{sT}, 2", f"s_add_u32 s{sT}, s{sT}, s{sS}", f"s_lshl_b32 s{sT}, s{sT}, 4", f"s_lshr_b32 s{sT+1}, s{sB}, 2", f"s_lshl_b32 s{sT+1}, s{sT+1}, 10",
      f"s_add_u32 s{sT}, s{sT}, s{sT+1}", f"s_lshl_b32 s{sT+1}, s{sW}, 12", f"s_add_u32 s{sT}, s{sT}, s{sT+1}",
      "v_and_b32 v16, 6, v9", "v_lshlrev_b32 v16, 1, v16", "v_lshl_add_u32 v16, v14, 14, v16", "v_lshrrev_b32 v17, 5, v9", "v_lshl_add_u32 v16, v17, 11, v16",
      "v_bfe_u32 v17, v9, 3, 2", "v_lshl_add_u32 v16, v17, 8, v16", f"v_add_u32 v{vOST}, s{sT}, v16")
    e(f"s_lshl_b32 s{sT}, s{sOH}, 14", f"s_add_u32 s{sT}, s{sT}, s{sT+1}", f"v_add_u32 v{vOLD}, s{sT}, v{vL16}")
    e("v_and_b32 v16, 7, v9", "v_lshlrev_b32 v16, 4, v16", "v_lshl_add_u32 v16, v11, 7, v16", f"s_lshl_b32 s{sT}, s{sOH}, 10", f"v_add_u32 v{vSLD}, s{sT}, v16")
    e(f"s_and_b32 s{sT}, s{sW}, 1", f"s_lshr_b32 s{sT+1}, s{sW}, 1", f"s_lshl_b32 s{sT+2}, s{sT}, 1", f"s_add_u32 s{sT+2}, s{sT+2}, s{sT+1}", f"s_lshl_b32 s{sT+2}, s{sT+2}, 8",
      f"s_add_u32 s{sT+2}, s{sT+2}, {RED}", "v_lshlrev_b32 v16, 2, v9", f"v_add_u32 v{aOR}, s{sT+2}, v16")
    e(f"s_lshl_b32 s{sT+2}, s{sNQ}, 1", f"s_add_u32 s{sT+2}, s{sT+2}, s{sT+1}", f"s_lshl_b32 s{sT+2}, s{sT+2}, 13",
      f"s_lshl_b32 s{sT+3}, s{sJ}, 1", f"s_add_u32 s{sT+3}, s{sT+3}, s{sOH}", f"s_lshl_b32 s{sT+3}, s{sT+3}, 9", f"s_add_u32 s{sT+2}, s{sT+2}, s{sT+3}",
      f"s_lshl_b32 s{sT}, s{sT}, 8", f"s_add_u32 s{sT+2}, s{sT+2}, s{sT}", "v_lshlrev_b32 v16, 2, v9", f"v_add_u32 v{vX1ST}, s{sT+2}, v16")
    e(f"s_and_b32 s{sT}, s{sB}, 3", f"s_lshl_b32 s{sT}, s{sT}, 7", f"s_lshr_b32 s{sB}, s{sB}, 2", f"s_lshl_b32 s{sB}, s{sB}, 6", f"s_add_u32 s{sB}, s{sB}, s{sT}",
      f"s_lshl_b32 s{sS}, s{sS}, 4", f"s_add_u32 s{sB}, s{sB}, s{sS}", f"s_lshr_b32 s{sT}, s{sW}, 1", f"s_lshl_b32 s{sT}, s{sT}, 9", f"s_add_u32 s{sB}, s{sB}, s{sT}",
      f"s_and_b32 s{sT}, s{sW}, 1", f"s_lshl_b32 s{sT}, s{sT}, 3", f"s_add_u32 s{sB}, s{sB}, s{sT}", f"s_mov_b32 s{sS}, {(-62*1024) & 0xffffffff}",
      f"s_mov_b32 s{sODD}, 0xaaaaaaaa", f"s_mov_b32 s{sODD+1}, 0xaaaaaaaa")
    e("v_bfe_u32 v16, v9, 1, 1", "v_lshlrev_b32 v16, 7, v16", "v_bfe_u32 v17, v9, 2, 3", "v_lshl_add_u32 v16, v17, 4, v16", "v_lshl_add_u32 v16, v14, 3, v16",
      "v_lshrrev_b32 v17, 5, v9", "v_lshl_add_u32 v16, v17, 2, v16", f"s_lshl_b32 s{sT}, s{sC}, 8",
      f"s_cmp_eq_u32 s{sW}, 0", f"s_cselect_b32 s{sT}, s{sT}, 0x40000000", f"v_add_u32 v{vX1r}, s{sT}, v16")
    for i in range(4): e(f"v_mov_b32 v{24+i}, 0")
    e(f"v_add_u32 v12, {PA}, v30", "ds_write_b128 v12, v[24:27]", f"v_mov_b32 v12, {FLAG}", "ds_write_b32 v12, v24")
    e(f"s_getreg_b32 s{sT}, hwreg(HW_REG_XCC_ID)", f"s_and_b32 s{sT}, s{sT}, 15", f"s_mul_i32 s{sT+1}, s{sT}, s{sT}", f"s_lshl_b32 s{sT}, s{sT}, 6",
      f"s_lshl_b32 s{sT+1}, s{sT+1}, 15", f"s_add_u32 s{sT}, s{sT}, s{sT+1}", f"s_add_u32 s{sT}, s{sT}, 1", f"s_lshl_b32 s{sEXP}, s{sT}, 5")
    e(f"v_mov_b32 v28, s{sT}", f"s_lshl_b32 s{sT+1}, s{sJ}, 5", f"v_mov_b32 v29, s{sT+1}")
    q_prep()
    e(f"s_waitcnt vmcnt({W0+4*EB+NK0+5})", "s_barrier", f"s_cmp_lg_u32 s{sW}, 0", "s_cbranch_scc1 L_ARR")
    e("s_mov_b64 exec, 1", "global_atomic_add v29, v28, s[30:31] sc1", "s_mov_b64 exec, -1")
    e.label("L_ARR")
    e("v_mov_b32 v8, -1", f"s_mov_b32 s{sCNT}, 0")
    stamp(0)

    def qsec(v, W):
        def issue():
            e(f"s_mov_b64 exec, s[{sMI8}:{sMI8+1}]")
            for d in range(4):
                e(f"buffer_load_dwordx4 {vr(8+4*d,4)}, v{vX0}, {srd(SX)}, 0 offen offset:{512*d} sc1")
            e("s_mov_b64 exec, -1")
        def first_layer():
            e(f"s_cmp_lg_u32 s{sLAY}, 0", "s_cbranch_scc1 L_QNOT0")
            pump_until(max(WQA + [0]) + 2, DS)
            drain_stream()
            for _ in range(PRE // 2): call_pump()
            e("v_mov_b32 v8, 0x3f803f80", f"s_mov_b64 exec, s[{sMI8}:{sMI8+1}]")
            for i in range(16): e(f"v_mov_b32 v{8+i}, v{40+i}")
            e("s_mov_b64 exec, -1")
            wq_move(WqA, vPT)
            if EB: wq_move(WqB, vPT, STG - 16384)
            e("v_mfma_f32_16x16x32_bf16 v[28:31], v[8:11], v[8:11], 0", "s_branch L_QAOK")
            e.label("L_QNOT0")
        poll(f"Q{v}", issue, 4, lambda: check_max(range(8, 24), 32),
             lambda: e("v_mfma_f32_16x16x32_bf16 v[28:31], v[8:11], v[8:11], 0"),
             special=first_layer if v == "A" else None, gate=lambda: e("s_waitcnt vmcnt(4) lgkmcnt(0)", "s_barrier"))
        stamp(1)
        for d in range(4):
            if d: e(f"v_mfma_f32_16x16x32_bf16 v[28:31], {vr(8+4*d,4)}, {vr(8+4*d,4)}, v[28:31]")
            e(f"v_mfma_f32_16x16x32_bf16 v[24:27], {vr(8+4*d,4)}, {vr(W+4*d,4)}, {'0' if d == 0 else 'v[24:27]'}")
    qsec("A", WqA)
    e.label("L_QJ")
    def qb():
        qsec("B", WqB); e("s_branch L_QJ")
    ool.append(qb)
    if not POST: pre_issue()
    stamp(20)
    e(f"ds_write2st64_b32 v{vRW}, v28, v29 offset0:4 offset1:5", f"ds_write2st64_b32 v{vRW}, v30, v31 offset0:6 offset1:7",
      f"ds_write2st64_b32 v{vRW}, v24, v25 offset0:0 offset1:1", f"ds_write2st64_b32 v{vRW}, v26, v27 offset0:2 offset1:3", "s_waitcnt lgkmcnt(0)")
    stamp(21)
    e("s_barrier")
    stamp(22)
    e(f"ds_read_b32 v37, v{aGS} offset:{1024+128}", f"ds_read_b32 v36, v{aDG} offset:1024", f"ds_read_b64 v[32:33], v{aD}", f"ds_read_b64 v[34:35], v{aCS} offset:128")
    inv = f2u(1.0 / 448.0)
    X1_, X2_ = f"quad_perm:[1,0,3,2] {DPP}", f"quad_perm:[2,3,0,1] {DPP}"
    e("s_waitcnt lgkmcnt(2)")
    e(f"v_add_f32_dpp v37, v37, v37 {X1_}", f"v_add_f32_dpp v36, v36, v36 {X1_}", "s_waitcnt lgkmcnt(0)")
    stamp(23)
    e(f"v_add_f32_dpp v37, v37, v37 {X2_}", f"v_add_f32_dpp v36, v36, v36 {X2_}",
      f"v_mul_f32 v37, {inv}, v37", f"v_mul_f32 v36, {inv}, v36",
      "v_pk_fma_f32 v[32:33], v[34:35], v[36:37], v[32:33] op_sel:[0,1,0] op_sel_hi:[1,1,1] neg_lo:[1,0,0] neg_hi:[1,0,0]",
      "v_fma_f32 v36, -v37, v37, v36", "v_max_f32 v36, 0, v36",
      f"v_add_f32_dpp v32, v32, v32 {X1_}", f"v_add_f32_dpp v33, v33, v33 {X1_}", f"v_add_f32 v36, {f2u(1e-5)}, v36", "v_rsq_f32 v36, v36",
      f"v_add_f32_dpp v32, v32, v32 {X2_}", f"v_add_f32_dpp v33, v33, v33 {X2_}", f"v_mul_f32 v36, {f2u(1.4426950408889634/16.0)}, v36",
      f"s_mov_b64 exec, s[{sMQ}:{sMQ+1}]", "v_pk_mul_f32 v[32:33], v[32:33], v[36:37] op_sel:[0,0] op_sel_hi:[1,0]",
      "v_cvt_pk_bf16_f32 v56, v32, v33", "v_min_u32 v56, -2, v56")
    publish(f"buffer_store_dword v56, v{vQST}, {{r}}, s{sQB} offen {{fl}}")
    e("s_mov_b64 exec, -1")
    stamp(2)
    e(f"s_cmp_lt_u32 s{sLAY}, 2", "s_cbranch_scc1 L_INIT")
    e.label("L_INITD")
    def init():
        e.label("L_INIT")
        e(f"s_cmp_eq_u32 s{sLAY}, 0", "s_cbranch_scc1 L_INIT0")
        pump_until(103, D2)
        e("s_branch L_INITD")
        e.label("L_INIT0")
        e(f"s_mov_b32 s{sLIM}, 64", f"s_min_u32 s{sSTOP}, s{sNSP}, s{sLIM}")
        pump_until(opt.get('ipos', 30), DS)
        if opt.get("streamonly"):
            e(f"s_mov_b32 s{sLIM}, 128", f"s_min_u32 s{sSTOP}, s{sNSP}, s{sLIM}")
            pump_until(128, DS)
            e("s_waitcnt vmcnt(0)", "s_memrealtime s[96:97]", "s_waitcnt lgkmcnt(0)", f"v_writelane_b32 v{vDBG}, s96, 28", "s_branch L_END")
        e(f"v_lshlrev_b32 v41, 1, v{vL16}", f"v_mov_b32 v42, {FLAG}", f"s_cmp_lg_u32 s{sW}, 0", "s_cbranch_scc1 L_IWAIT")
        e.label("L_IPOLL")
        e("s_mov_b64 exec, 0xff", "global_load_dword v8, v41, s[30:31] sc1", "s_mov_b64 exec, -1")
        drain_stream()
        e("s_mov_b64 exec, 0xff", "v_and_b32 v9, 63, v8", "v_cmp_ne_u32 vcc, 32, v9", "s_mov_b64 exec, -1", "s_cbranch_vccnz L_IFAIL")
        e(f"v_readlane_b32 s{sT}, v8, s{sJ}", f"s_cmp_eq_u32 s{sT}, s{sEXP}")
        if opt.get("forceslow"): e("s_cmp_eq_u32 0, 1")
        e(f"s_cselect_b32 s{sT}, 2, 1", f"v_mov_b32 v9, s{sT}", "ds_write_b32 v42, v9", "s_branch L_IGOT")
        e.label("L_IFAIL")
        spin_down(); e("s_branch L_IPOLL")
        e.label("L_IWAIT")
        e(f"s_waitcnt vmcnt({DS-2})"); call_pump()
        e("ds_read_b32 v9, v42")
        spin_down()
        e("s_waitcnt lgkmcnt(0)", f"v_readfirstlane_b32 s{sT}, v9", f"s_cmp_eq_u32 s{sT}, 0", "s_cbranch_scc1 L_IWAIT")
        e.label("L_IGOT")
        e(f"s_mov_b32 s{sT+5}, s{sT}")
        pump_until(39, DS)
        e(f"s_mov_b32 s{sT}, s{sT+5}")
        e(f"s_cmp_eq_u32 s{sT}, 2", f"s_cselect_b32 s{SF+2}, {WSEND}, 0", f"s_cselect_b32 s{SS+2}, 0, {WSEND}")
        if opt.get("touch0", 1):
            e(f"s_cmp_lg_u32 s{sW}, 1", "s_cbranch_scc1 L_INITD")
            e(f"s_mul_i32 s{sT}, s{sC}, {13*128}", f"s_add_u32 s{sT}, s{sT}, s{sBK}", f"v_lshlrev_b32 v41, 3, v{vL16}", "s_mov_b64 exec, 0x1fff",
              f"buffer_load_dword v9, v41, {srd(WS)}, s{sT} offen sc1", "s_mov_b64 exec, -1")
        e("s_branch L_INITD")
    ool.append(init)

    for i in range(32): e(f"v_mov_b32 v{24+i}, 0")
    e(f"s_lshl_b32 s{sT}, s{sW}, 3", f"s_add_u32 s{sT}, s{sT}, {SL}", f"v_mov_b32 v61, s{sT}", f"v_add_u32 v62, {PA}, v{vL16}",
      f"v_lshrrev_b32 v63, 8, v{vL16}", f"v_lshlrev_b32 v63, 3, v63", f"v_add_u32 v63, {SL}, v63", arm("A"))
    e(f"s_bitcmp1_b32 s{sLAY}, 0", "s_cbranch_scc1 L_ABP")
    def sadd1(t, h): return f"v_add_f32_dpp v{56+h}, v{24+4*t+h}, v{26+4*t+h} quad_perm:[0,1,2,3] row_mask:{1<<t} bank_mask:0xf"
    def asec(v, base):
        def issue():
            for u in range(4):
                e(f"buffer_load_dwordx4 {vr(8+4*u,4)}, v{vQLD}, {srd(WS)}, s{sQB} offen offset:{256*u} sc1")
        def sm(t, u): e(f"v_smfmac_f32_16x16x64_bf16 {vr(24+4*t,4)}, {vr(8+4*u,4)}, {ar(base+32*t+8*u,8)}, v{vIDX}")
        def undo():
            e.nop(8)
            for i in range(4): e(f"v_mov_b32 v{24+i}, 0")
        poll(f"A{v}", issue, 4, lambda: check_max(range(8, 24), 58), lambda: sm(0, 0), undo=undo)
        stamp(3)
        for t in range(4):
            for u in range(4):
                if t or u: sm(t, u)
                if t and u >= 2: e(sadd1(t - 1, u - 2))
    asec("A", 0)
    e.label("L_KJ")
    def kb():
        asec("B", 128); e("s_branch L_KJ")
    ool.append(kb)
    pre_issue()
    e(f"v_bfe_u32 v24, v{vL16}, 4, 2", f"v_lshlrev_b32 v24, 3, v24", f"v_add_u32 v24, {SL}, v24", f"s_add_u32 s{sOB2}, s{sST}, s{sB}", sadd1(3, 0), sadd1(3, 1))
    steps = ["quad_perm:[1,0,3,2] row_mask:0xf", "quad_perm:[2,3,0,1] row_mask:0xf", "row_half_mirror row_mask:0xf", "row_mirror row_mask:0xf",
             "row_bcast:15 row_mask:0xa", "row_bcast:31 row_mask:0xc"]
    fill = [f"s_cmp_lt_u32 s{sLAY}, 2", f"v_lshl_add_u32 v25, v{vL16}, 6, s{sS}"]
    for i, st in enumerate(steps):
        for h in range(2):
            s_ = 56 + h if i == 0 else 58 + h
            e(f"v_max_f32_dpp v{58+h}, v{s_}, v{s_} {st} bank_mask:0xf")
        if fill: e(fill.pop(0))
    e(f"v_readlane_b32 s{sA0}, v58, 63", f"v_readlane_b32 s{sA1}, v59, 63")
    e("s_mov_b32 exec_lo, 0", "s_mov_b32 exec_hi, 0x80000000", "ds_write_b64 v61, v[58:59]", "s_mov_b64 exec, -1")
    e(f"v_subrev_f32 v56, s{sA0}, v56", f"v_subrev_f32 v57, s{sA1}, v57", "v_exp_f32 v56, v56", "v_exp_f32 v57, v57",
      "v_cvt_pk_bf16_f32 v60, v56, v57", f"ds_write_b16 v{vPW}, v60", f"ds_write_b16_d16_hi v{vPW}, v60 offset:16")
    V = []
    for i, st in enumerate(steps):
        for h in range(2): V.append(f"v_add_f32_dpp v{56+h}, v{56+h}, v{56+h} {st} bank_mask:0xf")
    e(f"s_cbranch_scc1 L_VEARLY", "s_waitcnt vmcnt(0)")
    e.label("L_VB")
    e(V.pop(0), V.pop(0), f"v_cndmask_b32 v27, v58, v59, s[{sODD}:{sODD+1}]", V.pop(0), V.pop(0))
    e("s_waitcnt lgkmcnt(0)", "s_barrier")
    stamp(4)
    def vearly():
        e.label("L_VEARLY")
        e(f"s_cmp_eq_u32 s{sLAY}, 0", "s_cbranch_scc1 L_VMOVE0")
        drain_stream()
        e("s_branch L_VB")
        e.label("L_VMOVE0")
        for k in range(4):
            landed(40 + 8 * k, DS)
            e("s_waitcnt lgkmcnt(0)", "s_barrier")
            if k: e(f"s_mov_b32 s{sLIM}, {64 + 8 * k}", f"s_min_u32 s{sSTOP}, s{sNSP}, s{sLIM}")
            e(f"s_call_b64 s[{sRET2}:{sRET2+1}], L_MOVEV{k}")
        if not POST:
            for _ in range(PRE // 2): call_pump()
        e("s_branch L_VB")
    ool.append(vearly)
    for k in range(4): e(f"ds_read_b128 {vr(8+4*k,4)}, v62 offset:{1024*k}")
    e("ds_read_b64 v[28:29], v24", "ds_read_b64 v[36:37], v63")
    e(f"s_mov_b32 s{sLIM}, s{sLIMX}", V.pop(0), V.pop(0), "v_min_u32 v27, -2, v27", V.pop(0), V.pop(0), f"s_min_u32 s{sSTOP}, s{sNSP}, s{sLIM}", V.pop(0), V.pop(0))
    def tpost(tau):
        return [f"v_pk_add_f32 {vr(40+4*tau,2)}, {vr(40+4*tau,2)}, {vr(42+4*tau,2)}", f"v_pk_mul_f32 {vr(40+4*tau,2)}, {vr(40+4*tau,2)}, v[38:39]"]
    V += [f"v_max_f32_dpp v28, v28, v28 {X1_}", f"v_max_f32_dpp v29, v29, v29 {X1_}", f"v_cndmask_b32 v26, v56, v57, s[{sODD}:{sODD+1}]", "v_min_u32 v26, -2, v26", "PUBST",
          f"v_max_f32_dpp v28, v28, v28 {X2_}", f"v_max_f32_dpp v29, v29, v29 {X2_}", "v_sub_f32 v38, v36, v28", "v_sub_f32 v39, v37, v29", "v_exp_f32 v38, v38", "v_exp_f32 v39, v39"]
    V += [tpost(0)[0], tpost(0)[1], tpost(2)[0]]
    order = [0, 2, 1, 3]
    n_ = 0
    for tau in order:
        for k in range(4):
            if n_ < 2: e(f"s_waitcnt lgkmcnt({5-n_})")
            if n_ == 2: e("s_waitcnt lgkmcnt(0)")
            e(f"v_smfmac_f32_16x16x64_bf16 {vr(40+4*tau,4)}, {vr(8+4*k,4)}, {vr(AV+32*k+8*tau,8)}, v{vIDX}")
            if n_ == 0: stamp(10)
            if n_ == 3: stamp(11)
            if V: e(V.pop(0))
            if V and V[0] == "PUBST":
                V.pop(0); publish(f"buffer_store_dwordx2 v[26:27], v25, {{r}}, s{sOB2} offen {{fl}}")
            n_ += 1
    assert not V, V
    stamp(12)
    e(f"s_cmp_eq_u32 s{sLAY}, 1", "s_cbranch_scc1 L_PROG")
    e.label("L_POST")
    e(tpost(2)[1]); e(*tpost(1))
    e("v_permlane32_swap_b32 v40, v48", "v_permlane32_swap_b32 v41, v49")
    e(*tpost(3))
    e("v_pk_add_f32 v[40:41], v[40:41], v[48:49]")
    e("v_permlane32_swap_b32 v44, v52", "v_permlane32_swap_b32 v45, v53", "v_pk_add_f32 v[44:45], v[44:45], v[52:53]")
    e("v_permlane16_swap_b32 v40, v44", "v_permlane16_swap_b32 v41, v45", "v_pk_add_f32 v[40:41], v[40:41], v[44:45]")
    e("v_cvt_pk_bf16_f32 v40, v40, v41", f"v_mov_b32_dpp v41, v40 {X1_}", f"v_perm_b32 v40, v40, v41, v{vSEL}", "v_min_u32 v40, -2, v40")
    stamp(13)
    publish(f"buffer_store_dword v40, v{vOST}, {{r}}, s{sOB} offen {{fl}}")
    stamp(5)
    def prog():
        e.label("L_PROG")
        e.nop(8)
        for i in range(16): e(f"v_mov_b32 v{40+i}, 0")
        e("v_mov_b32 v36, v62", f"s_mov_b32 s{sT+6}, {104+D2}")
        e.label("L_PROGL")
        e.label("L_PRA")
        e(f"s_cmp_ge_u32 s{sIT}, s{sT+6}", "s_cbranch_scc1 L_PRB", f"s_cmp_ge_u32 s{sIT}, 128", "s_cbranch_scc1 L_PRC", f"s_waitcnt vmcnt({D2-2})")
        call_pump()
        e("s_branch L_PRA")
        e.label("L_PRC")
        e("s_waitcnt vmcnt(0)")
        if debug and opt.get("pstamps"):
            e("s_memrealtime s[96:97]", "s_waitcnt lgkmcnt(0)", f"v_writelane_b32 v{vDBG}, s96, 28")
        e.label("L_PRB")
        e(f"s_waitcnt vmcnt({D2})", "ds_read_b128 v[32:35], v36", "s_barrier")
        def rd(tau, base):
            for r0 in range(2):
                e(f"v_xor_b32 v37, {(tau << 5) | (r0 << 4)}, v{vVRD}")
                for r in (r0, r0 + 2):
                    e(f"ds_read_b64_tr_b16 {vr(base+2*r,2)}, v37 offset:{(r & 1)*512 + (r >> 1)*2048}")
        rd(0, 8); rd(2, 16); rd(1, 56)
        e("s_waitcnt lgkmcnt(8)")
        e(f"v_smfmac_f32_16x16x64_bf16 v[40:43], v[32:35], v[8:15], v{vIDX}")
        e.nop(4)
        rd(3, 8)
        e("s_waitcnt lgkmcnt(8)")
        e(f"v_smfmac_f32_16x16x64_bf16 v[48:51], v[32:35], v[16:23], v{vIDX}")
        e("s_waitcnt lgkmcnt(4)")
        e(f"v_smfmac_f32_16x16x64_bf16 v[44:47], v[32:35], v[56:63], v{vIDX}")
        e("s_waitcnt lgkmcnt(0)")
        e(f"v_smfmac_f32_16x16x64_bf16 v[52:55], v[32:35], v[8:15], v{vIDX}")
        e(f"v_add_u32 v{vVRD}, 0x8000, v{vVRD}", "v_add_u32 v36, 1024, v36", f"s_add_u32 s{sT+6}, s{sT+6}, 8", f"s_cmp_le_u32 s{sT+6}, {128+D2}", "s_cbranch_scc1 L_PROGL")
        e(f"v_subrev_u32 v{vVRD}, 0x20000, v{vVRD}", *tpost(0), tpost(2)[0])
        e("s_branch L_POST")
    ool.append(prog)

    e(f"s_cmp_ge_u32 s{sC}, 28", "s_cbranch_scc1 L_NOO0")
    def sissue():
        e(f"buffer_load_dwordx4 v[56:59], v{vSLD}, {srd(WS)}, s{sST} offen sc1", f"buffer_load_dwordx4 v[60:63], v{vSLD}, {srd(WS)}, s{sST} offen offset:512 sc1")
    def oissue():
        for mt in range(2):
            for ks in range(2):
                e(f"buffer_load_dwordx4 {vr(8+8*mt+4*ks,4)}, v{vOLD}, {srd(WS)}, s{sOB} offen offset:{2048*ks+1024*mt} sc1")
    def omf(ks, mt, nt):
        d = vr(40 + 8 * mt + 4 * nt, 4)
        e(f"v_mfma_f32_16x16x32_bf16 {d}, {vr(8+8*mt+4*ks,4)}, {vr(24+8*ks+4*nt,4)}, {'0' if ks == 0 else d}")
    ostream = f"s_cmp_lt_u32 s{sIT}, 128"
    sissue()
    e(f"s_bitcmp1_b32 s{sLAY}, 0", "s_cbranch_scc1 L_OWB")
    for i in range(16): e(f"v_mov_b32 v{24+i}, v{WoA+i}")
    def owb():
        e.label("L_OWB"); e.nop(2); wo_move(24, 55); e("s_branch L_OWJ")
    ool.append(owb)
    e.label("L_OWJ")
    e(ostream, "s_cbranch_scc1 L_OS0", "s_waitcnt vmcnt(0)")
    oissue()
    e.label("L_OSC")
    check_max([56, 58, 60, 62, 57, 59, 61, 63], 40)
    e("v_max3_f32 v41, v57, v59, v61", "s_cbranch_vccnz L_OSF", "v_max_f32 v41, v41, v63")
    e(f"v_max_f32_dpp v42, v41, v41 {X1_}", f"v_max_f32_dpp v42, v42, v42 {X2_}")
    e("v_sub_f32 v43, v57, v42", "v_sub_f32 v44, v59, v42", "v_sub_f32 v45, v61, v42", "v_sub_f32 v46, v63, v42", "v_sub_f32 v41, v41, v42",
      "v_exp_f32 v43, v43", "v_exp_f32 v44, v44", "v_exp_f32 v45, v45", "v_exp_f32 v46, v46", "v_exp_f32 v41, v41",
      "v_mul_f32 v43, v43, v56", "v_fmac_f32 v43, v44, v58", "v_fmac_f32 v43, v45, v60", "v_fmac_f32 v43, v46, v62",
      f"v_add_f32_dpp v43, v43, v43 {X1_}", f"v_add_f32_dpp v43, v43, v43 {X2_}", "v_rcp_f32 v43, v43", f"v_mul_f32 v{vPT}, v41, v43")
    e(ostream, "s_cbranch_scc1 L_OC")
    e.label("L_OR")
    if ROLL:
        oissue(); e("s_waitcnt vmcnt(4)")
    else:
        e("s_waitcnt vmcnt(0)")
    e.label("L_OC")
    check_max(range(8, 24), 48)
    omf(0, 0, 0)
    e("s_cbranch_vccnz L_OF")
    def ofail():
        e.label("L_OSF")
        spin_down(); e(ostream, "s_cbranch_scc1 L_OS1"); sissue(); e("s_waitcnt vmcnt(0)", "s_branch L_OSC")
        e.label("L_OF")
        spin_down(); e(ostream, "s_cbranch_scc1 L_OS1")
        if not ROLL: oissue()
        e("s_branch L_OR")
        e.label("L_OSA")
        check_max(range(8, 24), 48)
        e("s_cbranch_vccz L_OSC")
        spin_down()
        e("s_branch L_OS1")
        e.label("L_OS0")
        e(f"v_and_b32 v47, 0xf0, v{vL16}", f"v_and_b32 v46, 0x100, v{vL16}", "v_lshl_add_u32 v47, v46, 2, v47", f"v_sub_u32 v46, v{vOLD}, v{vL16}", "v_add_u32 v47, v47, v46")
        probe("L_OPR", f"buffer_load_dword v46, v47, {srd(WS)}, s{sOB} offen sc1", "-1", "L_OPD", "OP")
        e.label("L_NOO0")
        e(f"s_cmp_eq_u32 s{sLAY}, 0", "s_cbranch_scc1 L_OS0", "s_branch L_NOO")
        e.label("L_OPD")
        if RW:
            e(f"s_mov_b32 s{sT+3}, s{KV}", f"s_mov_b32 s{sT+4}, s{KV+1}",
              f"s_lshl_b32 s{sT}, s{sJ}, 19", f"s_lshl_b32 s{sT+1}, s{sC}, 14", f"s_add_u32 s{sT}, s{sT}, s{sT+1}", f"s_add_u32 s{sT}, s{sT}, {WX}",
              f"s_add_u32 s{KV}, s32, s{sT}", f"s_addc_u32 s{KV+1}, s33, 0", f"s_mov_b32 s{KV+2}, 14336", f"s_lshl_b32 s{sT}, s{sW}, 12")
            for d in range(4):
                e(f"s_add_u32 m0, s{sT}, {STG+1024*d}", f"s_add_u32 s{sT+1}, s{sT}, {1024*d}", f"buffer_load_dwordx4 v{vL16}, {srd(KV)}, s{sT+1} offen sc1 lds")
            e(f"s_mov_b32 s{KV}, s{sT+3}", f"s_mov_b32 s{KV+1}, s{sT+4}", f"s_mov_b32 s{KV+2}, 0x20000")
        e(f"s_cmp_ge_u32 s{sC}, 28", "s_cbranch_scc0 L_OS1")
        if RW: drain_stream(DC, 4)
        e("s_branch L_NOO")
        e.label("L_OS1")
        if debug and 14 in sset:
            e(f"s_cmp_lg_u32 s{SP[sset.index(14)]}, 0", "s_cbranch_scc1 L_OS1b"); stamp(14); e("s_waitcnt lgkmcnt(0)"); e.label("L_OS1b")
        sissue()
        oissue()
        if DO: drain_stream(DO, 6)
        else: e("s_waitcnt vmcnt(0)")
        e("s_branch L_OSA")
    ool.append(ofail)
    stamp(6)
    def ws(o, mt, nt, s_, first):
        d = 40 + 8 * mt + 4 * nt
        return f"v_{'mul' if first else 'fmac'}_f32_dpp v{o}, v{vPT}, v{d+s_} row_newbcast:{4*mt+s_} {DPP}"
    omf(1, 0, 0); omf(0, 0, 1); omf(1, 0, 1); omf(0, 1, 0); omf(1, 1, 0)
    e(ws(24, 0, 0, 0, 1), ws(25, 0, 1, 0, 1)); omf(0, 1, 1)
    e(ws(24, 0, 0, 1, 0), ws(25, 0, 1, 1, 0)); omf(1, 1, 1)
    e(ws(24, 0, 0, 2, 0), ws(25, 0, 1, 2, 0), ws(26, 1, 0, 0, 1), ws(28, 1, 0, 2, 1), ws(24, 0, 0, 3, 0), ws(25, 0, 1, 3, 0), ws(26, 1, 0, 1, 0), ws(28, 1, 0, 3, 0))
    e(ws(27, 1, 1, 0, 1), ws(29, 1, 1, 2, 1), f"ds_write2st64_b32 v{vRW}, v24, v25 offset0:0 offset1:1", ws(27, 1, 1, 1, 0), ws(29, 1, 1, 3, 0),
      "v_pk_add_f32 v[26:27], v[26:27], v[28:29]", f"ds_write2st64_b32 v{vRW}, v26, v27 offset0:2 offset1:3")
    if not POST: pre_issue()
    e("s_waitcnt lgkmcnt(0)", "s_barrier")
    e(f"ds_read_b32 v28, v{aOR}", f"ds_read_b32 v29, v{aOR} offset:{RS}", f"ds_read_b32 v30, v{aOR} offset:{2*RS}", f"ds_read_b32 v31, v{aOR} offset:{3*RS}", "s_waitcnt lgkmcnt(0)")
    e("v_pk_add_f32 v[28:29], v[28:29], v[30:31]", "v_add_f32 v28, v28, v29", "v_min_u32 v28, -2, v28")
    e(f"buffer_store_dword v28, v{vX1ST}, {srd(WS)}, s{sX1} offen sc1")
    e.label("L_NOO")
    stamp(7)
    e(f"s_add_u32 s{sBK}, s{sBK}, {8*BSZ}", f"s_mov_b32 s{sXO}, s{sBK}", f"s_add_u32 s{sOB2}, s{sX1L}, 4096")
    e(f"s_cmp_eq_u32 s{sLAY}, 3", "s_cbranch_scc1 L_LAST")
    def last():
        e.label("L_LAST")
        e(f"s_cmp_ge_u32 s{sC}, 28", f"s_cselect_b32 s{sT}, 1, s{sW}", f"s_or_b32 s{sT}, s{sT}, s{sJ}", "s_cbranch_scc1 L_END")
        e(f"s_mov_b32 s{SF}, s28", f"s_mov_b32 s{SF+1}, s29", f"s_mov_b32 s{SF+2}, 7168", f"s_mov_b32 s{SS+2}, 0", f"s_mov_b32 s{sXO}, 0")
        x2_voff(vX1r, 41)
        e("s_branch L_XGO")
    ool.append(last)
    if opt.get("touch", 1):
        e(f"s_cmp_lg_u32 s{sW}, 1", "s_cbranch_scc1 L_NOTOUCH")
        e(f"s_mul_i32 s{sT}, s{sC}, {13*128}", f"s_add_u32 s{sT}, s{sT}, s{sBK}", f"v_lshlrev_b32 v32, 3, v{vL16}", "s_mov_b64 exec, 0x1fff",
          f"buffer_load_dword v63, v32, {srd(WS)}, s{sT} offen sc1", "s_mov_b64 exec, -1")
        e.label("L_NOTOUCH")
    e(f"s_cmp_eq_u32 s{sLAY}, 2", "s_cbranch_scc1 L_PRELOAD")
    e.label("L_PRELD")
    def preload():
        e.label("L_PRELOAD")
        for k in range(4): e(f"s_call_b64 s[{sRET2}:{sRET2+1}], L_MOVEV{k}")
        e("s_branch L_PRELD")
    ool.append(preload)
    e(f"s_cmp_ge_u32 s{sC}, 28", f"s_cselect_b32 s{sT}, 7, s{sW}", f"s_cmp_eq_u32 s{sLAY}, 0", "s_cbranch_scc1 L_X0", f"s_cmp_lg_u32 s{sT}, 0", "s_cbranch_scc1 L_NOX")
    e.label("L_XGO")
    e("s_waitcnt vmcnt(0)")
    def xissue():
        for i in range(8):
            e(f"buffer_load_dwordx4 {vr(24+4*i,4)}, v{vL16}, {srd(WS)}, s{sX1L if i < 4 else sOB2} offen offset:{1024*(i&3)} sc1")
    def xprep(): e(f"v_lshlrev_b32 v58, 16, v{vXOLD}", f"v_and_b32 v59, 0xffff0000, v{vXOLD}")
    e.label("L_XPOLL")
    xissue(); xprep()
    for i in range(1, 8):
        e(f"s_waitcnt vmcnt({7-i})")
        for r in range(2):
            e(f"v_pk_add_f32 {vr(60+2*r,2)}, {vr((24 if i == 1 else 60)+2*r,2)}, {vr(24+4*i+2*r,2)}")
    e.label("L_XSUM")
    e("v_permlane32_swap_b32 v60, v62", "v_permlane32_swap_b32 v61, v63", "v_pk_add_f32 v[60:61], v[60:61], v[62:63]")
    e("v_cmp_u_f32 vcc, v60, v61", "v_cvt_pk_bf16_f32 v62, v60, v61", "s_cbranch_vccnz L_XNAN")
    e.label("L_XOK")
    def wqb_in():
        if RW:
            wq_move(WqB, vPT)
            e(f"s_mov_b32 s{sLIMX}, 128", f"s_mov_b32 s{sLIM}, 128", f"s_min_u32 s{sSTOP}, s{sNSP}, s{sLIM}")
    def xool():
        e.label("L_XNAN")
        check_max(range(24, 56), 57)
        e("s_cbranch_vccz L_XOK")
        spin_down(); e("s_branch L_XPOLL")
        e.label("L_XS2")
        spin_down()
        if SITE["X"][0] == 0:
            for _ in range(BF // 2): call_pump()
            e("s_branch L_XS1")
        e.label("L_XS0")
        if SITE["X"][0] == 0: e("s_waitcnt vmcnt(0)")
        e.label("L_XS1")
        xissue(); e("s_branch L_XS")
        e.label("L_XSC")
        check_max(range(24, 56), 57)
        e("s_cbranch_vccnz L_XS2")
        xprep()
        for i in range(1, 8):
            for r in range(2):
                e(f"v_pk_add_f32 {vr(60+2*r,2)}, {vr((24 if i == 1 else 60)+2*r,2)}, {vr(24+4*i+2*r,2)}")
        e.nop(2); e("s_branch L_XSUM")
        e.label("L_X0")
        e(f"s_mov_b32 s{sT+5}, s{sT}")
        for _ in range(BX // 2): call_pump()
        e(arm("X"), f"s_cmp_eq_u32 s{sT+5}, 0", "s_cbranch_scc1 L_XS0", f"s_cmp_eq_u32 s{sW}, 0", "s_cbranch_scc1 L_X0P")
        wqb_in()
        flag_wait("L_XFW", 4)
        e("s_branch L_NODR2")
        e.label("L_X0P")
        e(f"v_lshlrev_b32 v47, 4, v{vL16}")
        probe("L_XPR", f"buffer_load_dword v46, v47, {srd(WS)}, s{sBK} offen sc1", "0x0fffffff", "L_X0F", "XP")
        e.label("L_X0F")
        e(f"v_mov_b32 v57, {FLAG}", "v_mov_b32 v58, 4", "ds_write_b32 v57, v58")
        wqb_in()
        e("s_branch L_NODR2")
    ool.append(xool)
    stream_round("L_XS", "L_XS1", "L_XSC", 8, "X")
    e("v_lshlrev_b32 v60, 16, v62", "v_and_b32 v61, 0xffff0000, v62", "v_pk_add_f32 v[58:59], v[58:59], v[60:61]",
      f"v_cvt_pk_bf16_f32 v{vXOLD}, v58, v59", f"v_min_u32 v57, -2, v{vXOLD}")
    publish(f"buffer_store_dword v57, v{vX1r}, {{r}}, s{sXO} offen {{fl}}")
    stamp(8)
    e(f"s_cmp_eq_u32 s{sLAY}, 3", "s_cbranch_scc1 L_END", f"s_cmp_eq_u32 s{sLAY}, 0", "s_cbranch_scc1 L_X0F", "s_branch L_NODR2")
    e.label("L_NOX")
    e("s_waitcnt vmcnt(0)")
    e.label("L_NODR2")
    e(arm("Q"))
    q_prep()
    e(f"s_add_u32 s{SX}, s32, s{sBK}", f"s_addc_u32 s{SX+1}, s33, 0")
    e(f"s_add_u32 s{sQB}, s{sBK}, 0x2000", f"s_add_u32 s{sOB}, s{sBK}, 0x4000", f"s_add_u32 s{sST}, s{sBK}, 0xC000",
      f"s_add_u32 s{sX1}, s{sX1}, 0x38000", f"s_add_u32 s{sX1L}, s{sX1L}, 0x38000", f"s_add_u32 s{sLAY}, s{sLAY}, 1")
    collect()
    if debug: e(f"s_add_u32 s{sSTB}, s{sSTB}, 16")
    stamp(0)
    e(f"s_cmp_eq_u32 s{sLAY}, 2", "s_cbranch_scc1 L_QAP", f"s_cmp_eq_u32 s{sLAY}, 3", "s_cbranch_scc1 L_QBP")
    if not EB and not RW and not MB: pump_until(WQBM + 1, DS)
    e("s_branch L_QBP")
    e.label("L_END")
    if debug:
        e("s_mov_b64 exec, -1"); collect(); stamp(9); e("s_waitcnt vmcnt(0)")
        e(f"s_lshl_b32 s{sT}, s2, 2", f"s_add_u32 s{sT}, s{sT}, s{sW}", f"s_lshl_b32 s{sT}, s{sT}, 8", f"s_add_u32 s{sT}, s{sT}, {STAMPS}",
          f"v_lshrrev_b32 v8, 2, v{vL16}", f"v_add_u32 v8, s{sT}, v8", f"global_store_dword v8, v{vDBG}, s[32:33]")
    e.label("L_EXIT")
    e("s_endpgm")

    e.label("L_PUMP")
    e(f"s_cmp_ge_u32 s{sIT}, s{sSTOP}", "s_cbranch_scc1 L_PSPEC")
    e.label("L_PGEN")
    pair()
    e.label("L_PRET")
    e(f"s_setpc_b64 s[{sRET}:{sRET+1}]")

    i = 0
    while i < len(ool):
        ool[i](); i += 1

    for k in range(4):
        e.label(f"L_MOVEV{k}")
        for tau in range(4):
            for r0 in range(2):
                e(f"v_xor_b32 v{vPT}, {(tau << 5) | (r0 << 4) | ((k >> 1) << 16)}, v{vVRD}")
                for r in (r0, r0 + 2):
                    e(f"ds_read_b64_tr_b16 {vr(AV+32*k+8*tau+2*r,2)}, v{vPT} offset:{(k & 1)*32768 + (r & 1)*512 + (r >> 1)*2048}")
        e(f"s_setpc_b64 s[{sRET2}:{sRET2+1}]")

    def kmove(base, t):
        if opt.get("nokmove"): return
        e("s_waitcnt vmcnt(6)")
        for jj in range(4):
            e(f"v_xor_b32 v{vPT}, {(jj << 6) | ((t >> 1) << 16)}, v{vKRD}")
            e(f"ds_read_b128 {ar(base+32*t+4*jj,4)}, v{vPT} offset:{(t & 1)*32768}", f"ds_read_b128 {ar(base+32*t+16+4*jj,4)}, v{vPT} offset:{(t & 1)*32768+256}")
        e("s_waitcnt lgkmcnt(0)")
    def pst(l):
        if debug and opt.get("pstamps"):
            e("s_memrealtime s[96:97]", "s_waitcnt lgkmcnt(0)", f"v_writelane_b32 v{vDBG}, s96, {l}")
    def wone(ptr, isQ, d):
        e(f"s_mov_b32 s{sT+3}, s{KV}", f"s_mov_b32 s{sT+4}, s{KV+1}")
        wdma_addr(isQ, vPT); wdma_issue(ptr, isQ, vPT, [d])
        e(f"s_mov_b32 s{KV}, s{sT+3}", f"s_mov_b32 s{KV+1}, s{sT+4}", f"s_mov_b32 s{KV+2}, 0x20000")
    act = {}
    def at(k, f): act.setdefault(k, []).append(f)
    for t in range(4):
        at(14 + 8 * t, lambda t=t: kmove(0, t)); at(78 + 8 * t, lambda t=t: kmove(128, t))
    at(32, lambda: switch(12, False)); at(64, lambda: switch(20, True)); at(96, lambda: switch(22, False))
    at(WOA[3] + 8, lambda: (e("s_waitcnt vmcnt(6)"), wo_move(WoA, vPT)))
    def kv_save(): e(f"s_mov_b32 s{sT+3}, s{KV}", f"s_mov_b32 s{sT+4}, s{KV+1}")
    def kv_back(): e(f"s_mov_b32 s{KV}, s{sT+3}", f"s_mov_b32 s{KV+1}, s{sT+4}", f"s_mov_b32 s{KV+2}, 0x20000")
    def row0():
        e(f"s_lshl_b32 s{sT}, s{sC}, 2", f"s_add_u32 s{sT}, s{sT}, s{sW}", f"s_lshl_b32 s{sT}, s{sT}, 2")
    def brow(d):
        kv_save(); row0()
        e(f"s_add_u32 s{sT}, s{sT}, {d}", f"s_lshl_b32 s{sT}, s{sT}, 13", f"s_lshl_b32 s{sT+1}, s{sJ}, 10", f"s_add_u32 s{sT}, s{sT}, s{sT+1}", f"s_lshl_b32 s{sT+1}, s{sW}, 12",
          f"s_add_u32 m0, s{sT+1}, {STG+1024*d}", f"s_mov_b32 s{KV}, s24", f"s_mov_b32 s{KV+1}, s25", f"s_mov_b32 s{KV+2}, 3670016",
          f"buffer_load_dwordx4 v{vL16}, {srd(KV)}, s{sT} offen {WFL} lds")
        kv_back()
    def bstore():
        e("s_waitcnt vmcnt(6)", f"s_cmp_ge_u32 s{sC}, 28", "s_cbranch_scc1 L_BSTX")
        e(f"v_bfe_u32 v{vPT}, v{vL16}, 5, 2", f"v_lshlrev_b32 v{vPT}, 10, v{vPT}", f"v_and_or_b32 v{vPT}, v{vL16}, 16, v{vPT}", f"v_lshrrev_b32 v{WqB}, 7, v{vL16}",
          f"v_lshl_add_u32 v{vPT}, v{WqB}, 5, v{vPT}", f"s_lshl_b32 s{sT}, s{sW}, 12", f"s_add_u32 s{sT}, s{sT}, {STG}", f"v_add_u32 v{vPT}, s{sT}, v{vPT}")
        for k in range(4): e(f"ds_read_b128 {ar(200+4*k,4)}, v{vPT} offset:{256*k}")
        kv_save()
        e(f"s_lshl_b32 s{sT}, s{sJ}, 19", f"s_add_u32 s{sT}, s{sT}, {WX}", f"s_add_u32 s{KV}, s32, s{sT}", f"s_addc_u32 s{KV+1}, s33, 0", f"s_mov_b32 s{KV+2}, 0x80000",
          f"v_lshlrev_b32 v{WqB}, 14, v{WqB}", f"v_and_b32 v{vPT}, 0x70, v{vL16}", f"v_add_u32 v{vPT}, v{vPT}, v{WqB}")
        row0()
        e(f"s_lshl_b32 s{sT}, s{sT}, 5", "s_waitcnt lgkmcnt(0)")
        for k in range(4):
            e(f"buffer_store_dwordx4 {ar(200+4*k,4)}, v{vPT}, {srd(KV)}, s{sT} offen {opt.get('bsf', 'sc1')}", f"s_add_u32 s{sT}, s{sT}, 0x20000")
        kv_back()
        e.label("L_BSTX")
    if RW:
        for d in range(4): at(26 + 2 * d, lambda d=d: brow(d))
        at(40, bstore)
    if not EB and not RW: at(WQBM, lambda: (e("s_waitcnt vmcnt(6)"), wq_move(WqB, vPT)))
    for i, k in enumerate(WQA): at(k, lambda d=W0 + i: wone(14, True, d))
    for d in range(4):
        at(WOA[d], lambda d=d: wone(16, False, d)); (at(WQB[d], lambda d=d: wone(24, True, d)) if WQB else None); at(WOB[d], lambda d=d: wone(26, False, d))
    specials = sorted(act)
    wq_items = set(WQA) | set(WQB)
    XW = opt.get("xw", 1)
    PST = {14: 10, 32: 11, 42: 12, 40: 12, 64: 13, 78: 14, 96: 26, 102: 27}
    e.label("L_PSPEC")
    e(f"s_cmp_ge_u32 s{sIT}, s{sLIM}", "s_cbranch_scc1 L_PRET")
    half = len(specials) // 2
    e(f"s_cmp_ge_u32 s{sIT}, {specials[half]}", "s_cbranch_scc1 L_PSPEC2")
    for k in specials[:half]:
        e(f"s_cmp_eq_u32 s{sIT}, {k}", f"s_cbranch_scc1 L_SP{k}")
    e.label("L_PSPEC2")
    for k in specials[half:-1]:
        e(f"s_cmp_eq_u32 s{sIT}, {k}", f"s_cbranch_scc1 L_SP{k}")
    for k in [specials[-1]] + specials[:-1]:
        e.label(f"L_SP{k}")
        if k in PST: pst(PST[k])
        for f in act[k]: f()
        nxt = specials[specials.index(k) + 1] if k != specials[-1] else 999
        e(f"s_mov_b32 s{sNSP}, {nxt}", f"s_min_u32 s{sSTOP}, s{sNSP}, s{sLIM}")
        if k in wq_items and XW:
            for x in range(XW):
                if x: e(f"s_cmp_ge_u32 s{sIT}, s{sSTOP}", "s_cbranch_scc1 L_PRET")
                pair()
            e("s_branch L_PUMP")
        else:
            e("s_branch L_PGEN")
    e.raw('.section .rodata,"a"'); e.raw(".p2align 6"); e.raw(f".amdhsa_kernel {KNAME}")
    for l in (".amdhsa_next_free_vgpr 512", ".amdhsa_next_free_sgpr 102", ".amdhsa_accum_offset 256", ".amdhsa_group_segment_fixed_size 0",
              ".amdhsa_kernarg_size 104", ".amdhsa_user_sgpr_count 2", ".amdhsa_user_sgpr_kernarg_segment_ptr 1", ".amdhsa_system_sgpr_workgroup_id_x 1",
              ".amdhsa_float_denorm_mode_32 3"):
        e.raw("  " + l)
    e.raw(".end_amdhsa_kernel")
    return e.text()

if __name__ == "__main__":
    dbg = "--debug" in sys.argv
    out = [a for a in sys.argv[1:] if not a.startswith("--")]
    txt = gen(dbg)
    open(out[0] if out else "k.s", "w").write(txt)
```

```python
import sys, struct
sys.path.insert(0, "gen")
from asmlib import Asm

KNAME = "interleave_layers__sliding_block_cached__sliding_block_cached__decode_kernel"
HEADER = open("interleave_layers__sliding_block_cached__sliding_block_cached__decode.s.ref").read().split("; Override launch")[0]

def f2u(x): return struct.unpack("<I", struct.pack("<f", x))[0]

STG = 131072
SCR = 147456
PA = SCR
SL = SCR + 4096
FLAG = SCR + 4160
RED = SCR + 4608
RS = 2048 + 64
QB0 = 0x0
BLK = 0x10000
BSZ = 0xD000
X1 = BLK + 32 * BSZ
GFL = X1 + 4 * 0x38000
WSEND = GFL + 1024
HINT = 0xC800
STAMPS = 0x300000
WX = 0x400000
assert WSEND <= STAMPS
sJ, sC = 34, 35
KV, SF, WS, SX, SS = 36, 40, 44, 48, 4
sW, sSL, sRM, sIT, sLIM = 52, 53, 54, 55, 56
sSTOP, sNSP = 57, 59
sRET, sRET2 = 60, 62
sY, sCNT = 64, 65
sLAY, sSPIN = 66, 68
sQB, sOB, sOB2, sST, sX1, sBK = 69, 70, 71, 72, 73, 74
sA0, sA1 = 75, 76
sT = 77
sMI8, sMQ = 86, 88
sB, sS, sOH, sNQ, sEXP = 90, 91, 92, 93, 94
sX1L = 95
sSTB = 98
sODD = 8
sLIMX = 58
sXO = 67
vL16, vXOLD, vDBG, vB, vKRD, vPT, vVRD, vIDX = 0, 1, 2, 3, 4, 5, 6, 7
WqA, WoA, WqB = 64, 80, 96
vX0, vX1r, vRW, aD, aCS, aDG, aGS, vQST, vQLD, vPW, vOST, vOLD, vSLD, aOR, vX1ST, vSEL = range(112, 128)
AV = 128

def srd(r): return f"s[{r}:{r+3}]"
def vr(a, n): return f"v[{a}:{a+n-1}]"
def ar(a, n): return f"a[{a}:{a+n-1}]"
DPP = "row_mask:0xf bank_mask:0xf"

def gen(debug=False, opt=None):
    opt = opt or {}
    KFL = opt.get("kvflag", "nt"); WFL = opt.get("wflag", "nt")
    DS = opt.get("ds", 6)
    DP = opt.get("dp", 4)
    PRE = opt.get("pre", 2)
    XPRE = opt.get("xpre", 8)
    ROLL = opt.get("roll", 1)
    W0 = opt.get("w0", 4)
    WQA = opt.get("wqa", [])
    WQB = opt.get("wqb", [66, 70, 74, 78])
    EB = opt.get("eb", 0)
    if EB: WQB = []
    SPEC0 = min(WQA + [14])
    LIM0 = 26
    HG = opt.get("hg", 0)
    HQ = opt.get("hq", 0)
    QROT = opt.get("qrot", 16)
    RW = opt.get("rw", 0)
    WOA = [44, 48, 52, 56] if RW else [26, 34, 42, 50]
    WOB = [112, 116, 120, 124] if RW else [90, 98, 106, 114]
    if RW: WQB = []
    MB = opt.get("mb", 1)
    if MB:
        WQB = opt.get("wqb", [26, 30, 34, 38]); WOA = [WQB[3] + 10 + 2 * d for d in range(4)]
    WQBM = WQB[3] + 8 if WQB else 0
    SPLITB = opt.get("splitb", 1) and MB
    WQH = opt.get("wqh", [66, 68, 70, 72])
    e = Asm()
    uid = [0]
    def L(p):
        uid[0] += 1; return f"L_{p}_{uid[0]}"
    ool = []
    SP = [0, 18, 84, 96, 100]
    sset = opt.get("stamps", [])
    clk = opt.get("clk", "s_memrealtime")
    def stamp(i):
        if not debug: return
        if i in (15, 9):
            e("s_memrealtime s[96:97]", f"s_add_u32 m0, s{sSTB}, {i}", "s_waitcnt lgkmcnt(0)", f"v_writelane_b32 v{vDBG}, s96, m0")
        elif i in sset:
            p = SP[sset.index(i)]
            e(f"{clk} s[{p}:{p+1}]")
    def collect():
        if not debug or not sset: return
        e("s_waitcnt lgkmcnt(0)")
        for n_, i in enumerate(sset):
            e(f"s_add_u32 m0, s{sSTB}, {i if i < 15 else i - 10}", "s_nop 0", f"v_writelane_b32 v{vDBG}, s{SP[n_]}, m0", f"s_mov_b32 s{SP[n_]}, 0")
    def pair():
        e(f"s_lshr_b32 s{sY}, s{sRM}, 7", f"s_mov_b32 m0, s{sRM}", f"s_and_b32 s{sY}, s{sY}, 0xc0", f"v_xor_b32 v{vPT}, s{sY}, v{vB}",
          f"buffer_load_dwordx4 v{vPT}, {srd(KV)}, m0 offen {KFL} lds", f"s_add_u32 m0, s{sRM}, 4096", f"v_xor_b32 v{vPT}, 32, v{vPT}", f"s_add_u32 s{sRM}, s{sRM}, 8192",
          f"buffer_load_dwordx4 v{vPT}, {srd(KV)}, m0 offen {KFL} lds", f"s_add_u32 s{sIT}, s{sIT}, 2")
    def spin_down(): e(f"s_sub_u32 s{sSPIN}, s{sSPIN}, 1", "s_cbranch_scc1 L_END")
    def call_pump():
        e(f"s_call_b64 s[{sRET}:{sRET+1}], L_PUMP")
    def pump_until(n, D):
        a, b = L("pu"), L("pud")
        e.label(a)
        e(f"s_cmp_ge_u32 s{sIT}, {n}", f"s_cbranch_scc1 {b}", f"s_waitcnt vmcnt({D-2})")
        call_pump()
        e(f"s_branch {a}")
        e.label(b)
    def landed(m, D):
        pump_until(m + D, D); e(f"s_waitcnt vmcnt({D})")
    XW2 = opt.get("xw2", 0)
    D3 = opt.get("d3", 8); P1 = opt.get("p1", 2)
    DC = opt.get("dc", 6)
    DO = opt.get("do", 6); BX = opt.get("bx", 0); BF = opt.get("bf", 2); D2 = opt.get("d2", 8)
    POST = opt.get("post", 1)
    IPR = opt.get("ipr", 2)
    NR = opt.get("nr", 3)
    SITE = dict(QA=(IPR, NR), Q=(IPR, NR), A=(IPR, NR), OP=(IPR, NR), X=(IPR, NR), XP=(IPR, NR), XW=(IPR, NR), AP=(2, 4), AB=(IPR, NR))
    SITE.update({k: tuple(v) for k, v in opt.get("site", {}).items()})
    def stream_round(a, again, chk, P, site):
        ipr, nr = SITE[site]
        def f():
            e.label(a)
            if ipr == 0:
                e("s_waitcnt vmcnt(0)", f"s_branch {chk}"); return
            for _ in range(ipr // 2):
                e(f"s_waitcnt vmcnt({ipr*nr-2+nr*P})"); call_pump()
            e(f"s_waitcnt vmcnt({(nr-1)*(P+ipr)+ipr})", f"s_cmp_lt_u32 s{sIT}, s{sLIM}", f"s_cbranch_scc1 {a}_w", "s_waitcnt vmcnt(0)", f"s_branch {chk}")
            e.label(a + "_w")
            e(f"s_sub_u32 s{sCNT}, s{sCNT}, 1", f"s_cbranch_scc0 {again}", f"s_mov_b32 s{sCNT}, 0", f"s_branch {chk}")
        ool.append(f)
    def arm(site): return f"s_mov_b32 s{sCNT}, {SITE[site][1]-1}"
    def probe(name, load, lanes, done, site, data=46):
        e(arm(site))
        e.label(name)
        e(f"s_mov_b32 exec_lo, {lanes}", "s_mov_b32 exec_hi, 0", load, "s_mov_b64 exec, -1", f"s_branch {name}S")
        e.label(name + "C")
        e(f"s_mov_b32 exec_lo, {lanes}", "s_mov_b32 exec_hi, 0", f"v_cmp_eq_u32 vcc, -1, v{data}", "s_mov_b64 exec, -1", f"s_cbranch_vccz {done}")
        spin_down(); e(f"s_branch {name}")
        stream_round(name + "S", name, name + "C", 1, site)
    def flag_wait(name, val):
        e(f"v_mov_b32 v47, {FLAG}")
        e.label(name)
        if XW2:
            e("ds_read_b32 v46, v47")
            spin_down()
            e("s_waitcnt lgkmcnt(0)", f"v_readfirstlane_b32 s{sT}, v46", f"s_cmp_ge_u32 s{sT}, 5", f"s_cbranch_scc1 {name}x", f"s_cmp_lg_u32 s{sT}, 3", f"s_cbranch_scc1 {name}")
            e(f"s_waitcnt vmcnt({DC-2})"); call_pump(); e(f"s_branch {name}")
            e.label(name + "x")
            return
        if DC:
            e(f"s_waitcnt vmcnt({DC-2})"); call_pump()
        e("ds_read_b32 v46, v47")
        spin_down()
        e("s_waitcnt lgkmcnt(0)", f"v_readfirstlane_b32 s{sT}, v46", f"s_cmp_lt_u32 s{sT}, {val}", f"s_cbranch_scc1 {name}")
    def drain_stream(D=None, P=8):
        D = D or DS
        b_ = L("dr")
        for _ in range(D // 2):
            e(f"s_waitcnt vmcnt({D-2+P})"); call_pump()
        e(f"s_waitcnt vmcnt({D})", f"s_cmp_lt_u32 s{sIT}, s{sLIM}", f"s_cbranch_scc1 {b_}", "s_waitcnt vmcnt(0)")
        e.label(b_)
    def poll(name, issue, P, check, first, filler, gate, undo=None, special=None, cond=f"s_cmp_lt_u32 s{sLAY}, 2"):
        e.label(f"L_{name}P")
        e(cond, f"s_cbranch_scc1 L_{name}S0")
        gate()
        issue()
        filler()
        e.label(f"L_{name}R")
        if ROLL:
            issue(); e(f"s_waitcnt vmcnt({P})")
        else:
            e("s_waitcnt vmcnt(0)")
        e.label(f"L_{name}C")
        check()
        first()
        e(f"s_cbranch_vccnz L_{name}F")
        e.label(f"L_{name}OK")
        def f():
            e.label(f"L_{name}F")
            if special: special()
            if undo: undo()
            spin_down()
            e(cond)
            if ROLL:
                e(f"s_cbranch_scc0 L_{name}R", f"s_branch L_{name}S1")
            else:
                e(f"s_cbranch_scc1 L_{name}S1"); issue(); e(f"s_branch L_{name}R")
            e.label(f"L_{name}S0")
            e(arm(name if name in SITE else name[0]))
            filler()
            e.label(f"L_{name}S1")
            issue()
        ool.append(f)
        stream_round(f"L_{name}S", f"L_{name}S1", f"L_{name}C", P, name if name in SITE else name[0])
    def pre_issue(n=None):
        n = PRE if n is None else n
        if n == 0: return
        a, b = L("pn"), L("pnd")
        e(f"s_cmp_lt_u32 s{sIT}, s{sLIM}", f"s_cbranch_scc1 {a}")
        e.label(b)
        def f():
            e.label(a)
            for _ in range(n // 2): call_pump()
            e(f"s_branch {b}")
        ool.append(f)
    def publish(fmt, pre=None):
        if pre: e(pre)
        e(fmt.format(r=srd(SF), fl=""), fmt.format(r=srd(SS), fl="sc1"))
    def check_max(rs, t):
        rs = list(rs)
        e(f"v_max3_u32 v{t}, v{rs[0]}, v{rs[1]}, v{rs[2]}")
        rest = rs[3:]
        while len(rest) >= 2:
            e(f"v_max3_u32 v{t}, v{t}, v{rest[0]}, v{rest[1]}"); rest = rest[2:]
        if rest: e(f"v_max_u32 v{t}, v{t}, v{rest[0]}")
        e(f"v_cmp_eq_u32 vcc, -1, v{t}")
    def switch(ptr, isK):
        e(f"s_add_u32 s{KV}, s{ptr}, s{sSL}", f"s_addc_u32 s{KV+1}, s{ptr+1}, 0", f"s_mov_b32 s{KV+2}, 0x20000", f"s_lshl_b32 s{sRM}, s{sW}, 10")
        e(f"v_lshrrev_b32 v{vPT}, 5, v{vL16}", f"v_and_b32 v{vPT}, 16, v{vPT}", f"v_xor_b32 v{vB}, v{vPT}, v{vL16}")
    def wdma_addr(isQ, t0):
        if isQ:
            e(f"v_lshrrev_b32 v{t0}, 5, v{vL16}", f"v_lshlrev_b32 v{t0}, 13, v{t0}", f"v_and_or_b32 v{t0}, v{vL16}, 16, v{t0}",
              f"s_lshl_b32 s{sT}, s{sW}, 20", f"s_lshl_b32 s{sT+1}, s{sJ}, 10", f"s_add_u32 s{sT}, s{sT}, s{sT+1}", f"s_xor_b32 s{sT+1}, s{sC}, {QROT}", f"s_lshl_b32 s{sT+1}, s{sT+1}, 5", f"s_add_u32 s{sT}, s{sT}, s{sT+1}")
        else:
            e(f"v_lshrrev_b32 v{t0}, 6, v{vL16}", f"v_mul_u32_u24 v{t0}, 896, v{t0}", f"v_and_or_b32 v{t0}, v{vL16}, 48, v{t0}",
              f"s_lshl_b32 s{sT}, s{sJ}, 9", f"s_lshl_b32 s{sT+1}, s{sOH}, 8", f"s_add_u32 s{sT}, s{sT}, s{sT+1}", f"s_lshl_b32 s{sT+1}, s{sW}, 6", f"s_add_u32 s{sT}, s{sT}, s{sT+1}",
              f"s_mul_i32 s{sT}, s{sT}, 896", f"s_lshl_b32 s{sT+1}, s{sNQ}, 6", f"s_add_u32 s{sT}, s{sT}, s{sT+1}",
              f"s_cmp_ge_u32 s{sC}, 28", f"s_cselect_b32 s{sT}, 0x40000000, s{sT}")
        e(f"s_lshl_b32 s{sT+1}, s{sW}, 12", f"s_add_u32 s{sT+1}, s{sT+1}, {STG}")
    def wdma_issue(ptr, isQ, t0, ds):
        step = 262144 if isQ else 14336
        e(f"s_mov_b32 s{KV}, s{ptr}", f"s_mov_b32 s{KV+1}, s{ptr+1}", f"s_mov_b32 s{KV+2}, {0 if (opt.get('now') or (opt.get('nowqb') and ptr == 24)) else 3670016}")
        for d in ds:
            e(f"s_add_u32 m0, s{sT+1}, {1024*d}", f"s_add_u32 s{sT+2}, s{sT}, {step*d}")
            e(f"buffer_load_dwordx4 v{t0}, {srd(KV)}, s{sT+2} offen {WFL} lds")
    def wq_move(dst, t, stg=STG):
        e(f"v_lshrrev_b32 v{t}, 8, v{vL16}", f"v_lshlrev_b32 v{t}, 8, v{t}", f"v_bfe_u32 v{dst}, v{vL16}, 4, 4", f"v_lshl_add_u32 v{t}, v{dst}, 3, v{t}",
          f"s_lshl_b32 s{sT}, s{sW}, 12", f"s_add_u32 s{sT}, s{sT}, {stg}", f"v_add_u32 v{t}, s{sT}, v{t}")
        for d in range(4):
            for hh in range(2):
                e(f"ds_read_b64_tr_b16 {vr(dst+4*d+2*hh,2)}, v{t} offset:{d*1024+hh*128}")
        e("s_waitcnt lgkmcnt(0)")
    def wo_move(dst, t):
        e(f"v_lshrrev_b32 v{t}, 8, v{vL16}", f"v_lshlrev_b32 v{t}, 3, v{t}", f"v_bfe_u32 v{dst}, v{vL16}, 6, 2", f"v_add_u32 v{t}, v{t}, v{dst}", f"v_lshlrev_b32 v{t}, 6, v{t}",
          f"v_bfe_u32 v{dst}, v{vL16}, 4, 2", f"v_lshl_add_u32 v{t}, v{dst}, 3, v{t}",
          f"s_lshl_b32 s{sT}, s{sW}, 12", f"s_add_u32 s{sT}, s{sT}, {STG}", f"v_add_u32 v{t}, s{sT}, v{t}")
        for ks in range(2):
            for nt in range(2):
                for hh in range(2):
                    e(f"ds_read_b64_tr_b16 {vr(dst+8*ks+4*nt+2*hh,2)}, v{t} offset:{ks*2048+hh*256+nt*32}")
        e("s_waitcnt lgkmcnt(0)")
    def x2_voff(d, t):
        e(f"v_bfe_u32 v{d}, v{vL16}, 6, 3", f"v_mul_u32_u24 v{d}, 896, v{d}", f"v_bfe_u32 v{t}, v{vL16}, 4, 2", f"v_lshl_add_u32 v{d}, v{t}, 3, v{d}",
          f"v_lshrrev_b32 v{t}, 9, v{vL16}", f"v_lshl_add_u32 v{d}, v{t}, 2, v{d}", f"s_lshl_b32 s{sT}, s{sC}, 5", f"v_add_u32 v{d}, s{sT}, v{d}")
    def q_prep():
        e(f"s_not_b64 exec, s[{sMI8}:{sMI8+1}]")
        for i in range(16): e(f"v_mov_b32 v{8+i}, 0x3f803f80")
        e("s_mov_b64 exec, -1")

    e.raw(HEADER.rstrip())
    e.raw("; @launch grid=(256,1,1) block=(256,1,1) lds=163840")
    e.raw('.amdgcn_target "amdgcn-amd-amdhsa--gfx950"')
    e.raw(".text"); e.raw(f".globl {KNAME}"); e.raw(".p2align 8"); e.raw(f".type {KNAME},@function")
    e.label(KNAME)
    e("s_cmp_ge_u32 s2, 256", "s_cbranch_scc1 L_EXIT")
    e("s_load_dwordx16 s[8:23], s[0:1], 0", "s_load_dwordx8 s[24:31], s[0:1], 64", "s_load_dwordx2 s[32:33], s[0:1], 96")
    e("s_getpc_b64 s[80:81]")
    if debug:
        e(f"v_mov_b32 v{vDBG}, 0", f"s_mov_b32 s{sSTB}, 0"); stamp(15)
    e("v_lshrrev_b32 v8, 6, v0", "v_and_b32 v9, 63, v0", "v_lshlrev_b32 v30, 4, v0")
    e(f"s_and_b32 s{sJ}, s2, 7", f"s_lshr_b32 s{sC}, s2, 3")
    e(f"v_readfirstlane_b32 s{sW}, v8")
    e(f"v_lshlrev_b32 v{vL16}, 4, v9")
    if opt.get("codepf", 0):
        e("global_load_dwordx4 a[200:203], v30, s[80:81]", "v_add_u32 v11, 4096, v30", "global_load_dwordx4 a[204:207], v11, s[80:81]",
          "v_add_u32 v11, 8192, v30", "global_load_dwordx4 a[208:211], v11, s[80:81]")
    e(f"s_and_b32 s{sB}, s{sC}, 7", f"s_lshr_b32 s{sS}, s{sC}, 3")
    e(f"s_lshl_b32 s{sSL}, s{sB}, 3", f"s_add_u32 s{sSL}, s{sSL}, s{sJ}", f"s_lshl_b32 s{sSL}, s{sSL}, 21",
      f"s_lshl_b32 s{sT}, s{sS}, 17", f"s_add_u32 s{sSL}, s{sSL}, s{sT}", f"s_add_u32 s{sSL}, s{sSL}, 0x180000")
    e(f"s_mov_b32 s{KV+3}, 0x20000")
    wdma_addr(True, 12)
    e(f"v_lshrrev_b32 v{vPT}, 5, v{vL16}", f"v_and_b32 v{vPT}, 16, v{vPT}", f"v_xor_b32 v{vB}, v{vPT}, v{vL16}",
      f"s_lshl_b32 s{sRM}, s{sW}, 10")
    for i in range(4): e(f"v_mov_b32 v{24+i}, -1")
    e(f"s_lshl_b32 s{sA0}, s2, 12", f"s_add_u32 s{sA0}, s{sA0}, {BLK}", f"s_add_u32 s{sA1}, s{sA0}, 0x100000", f"s_add_u32 s{sCNT}, s{sA0}, 0x200000",
      f"s_mov_b32 s{WS+2}, {WSEND}", f"s_mov_b32 s{WS+3}, 0x20000")
    e("v_bfe_u32 v13, v9, 2, 3", "v_lshrrev_b32 v14, 5, v9", f"v_lshl_add_u32 v14, v8, 1, v14",
      f"s_and_b32 s{sY}, s{sC}, 16", f"s_xor_b32 s{sY}, s{sY}, {QROT}", f"s_and_b32 s{sIT}, s{sC}, 15", f"s_lshl_b32 s{sIT}, s{sIT}, 6", f"s_add_u32 s{sY}, s{sY}, s{sIT}",
      "v_lshlrev_b32 v15, 10, v14", "v_and_b32 v16, 1, v13", "v_lshl_add_u32 v15, v16, 5, v15", "v_lshrrev_b32 v16, 1, v13", "v_lshl_add_u32 v15, v16, 2, v15", f"v_add_u32 v{vQST}, s{sY}, v15",
      f"s_lshl_b32 s{sQB}, s{sJ}, 13")
    e("s_waitcnt lgkmcnt(0)")
    e(f"s_mov_b32 s{WS}, s32", f"s_mov_b32 s{WS+1}, s33")
    LATE = opt.get("late", 0)
    if not LATE:
        if not opt.get("noclear"):
            for r in (sA0, sA1, sCNT): e(f"buffer_store_dwordx4 v[24:27], v30, {srd(WS)}, s{r} offen sc1")
        e(f"buffer_store_dword v24, v{vQST}, {srd(WS)}, s{sQB} offen sc1")
    wdma_issue(14, True, 12, range(W0))
    if EB:
        e(f"s_sub_u32 s{sT+1}, s{sT+1}, 16384")
        wdma_issue(24, True, 12, range(4))
    e(f"s_add_u32 s{KV}, s10, s{sSL}", f"s_addc_u32 s{KV+1}, s11, 0", f"s_mov_b32 s{KV+2}, 0x20000")
    NK0 = opt.get("nk0", 8)
    for q in range(NK0):
        e(f"s_mov_b32 m0, s{sRM}", f"s_add_u32 s{sRM}, s{sRM}, 4096")
        if q & 7: e(f"v_xor_b32 v{vPT}, {(q & 7) << 5}, v{vB}")
        e(f"buffer_load_dwordx4 v{vPT if q & 7 else vB}, {srd(KV)}, m0 offen {KFL} lds")
    if debug:
        for p in SP: e(f"s_mov_b32 s{p}, 0")
    e(f"s_mov_b32 s{sIT}, {NK0}", f"s_mov_b32 s{sLIM}, {LIM0}", f"s_mov_b32 s{sNSP}, {SPEC0}", f"s_mov_b32 s{sSTOP}, {SPEC0}", f"s_mov_b32 s{sLIMX}, {WOB[0] if RW else 128}")
    for r, n in ((SF, 0), (SS, WSEND)):
        e(f"s_mov_b32 s{r}, s32", f"s_mov_b32 s{r+1}, s33", f"s_mov_b32 s{r+2}, {n}", f"s_mov_b32 s{r+3}, 0x20000")
    e(f"s_mov_b32 s{SX}, s8", f"s_mov_b32 s{SX+1}, s9", f"s_mov_b32 s{SX+2}, 7168", f"s_mov_b32 s{SX+3}, 0x20000")
    x2_voff(28, 29)
    e(f"buffer_load_dword v{vXOLD}, v28, {srd(SX)}, 0 offen")
    e(f"s_cmp_ge_u32 s{sC}, 14", f"s_cselect_b32 s{sOH}, 1, 0", f"s_mul_i32 s{sT}, s{sOH}, 14", f"s_sub_u32 s{sNQ}, s{sC}, s{sT}")
    e("v_and_b32 v10, 15, v9", "v_lshrrev_b32 v11, 4, v9")
    e(f"s_lshl_b32 s{sT}, s{sW}, 10")
    e("v_mul_u32_u24 v12, 896, v10", "v_lshl_add_u32 v12, v11, 4, v12", f"s_lshl_b32 s{sT+1}, s{sW}, 8", f"v_add_u32 v12, s{sT+1}, v12")
    e(f"s_cmp_eq_u32 s{sW}, 3", f"s_cselect_b32 s{sT+1}, 0x40000000, 0", f"v_add_u32 v13, s{sT+1}, v12")
    e("s_mov_b32 exec_lo, 0x00ff00ff", "s_mov_b32 exec_hi, 0x00ff00ff")
    for d in range(4): e(f"buffer_load_dwordx4 {vr(40+4*d,4)}, v{12 if d < 2 else 13}, {srd(SX)}, 0 offen offset:{64*d}")
    e("s_mov_b64 exec, -1")
    e("v_lshlrev_b32 v12, 4, v10", "v_lshl_add_u32 v12, v11, 7, v12", f"s_lshl_b32 s{sT+1}, s{sW}, 11", f"v_add_u32 v{vX0}, s{sT+1}, v12")
    e("v_lshrrev_b32 v12, 1, v10", "v_lshlrev_b32 v12, 12, v12", "v_and_b32 v13, 1, v10", "v_lshl_add_u32 v12, v13, 9, v12",
      "v_xor_b32 v14, v11, v10", "v_lshl_add_u32 v12, v14, 4, v12", f"v_add_u32 v{vKRD}, s{sT}, v12")
    e(f"s_mul_i32 s{sT+1}, s{sW}, {RS}", f"s_add_u32 s{sT+1}, s{sT+1}, {RED}", "v_lshlrev_b32 v12, 2, v9", f"v_add_u32 v{vRW}, s{sT+1}, v12")
    e("v_and_b32 v12, 3, v9", f"v_mul_u32_u24 v12, {RS}, v12", f"v_add_u32 v12, {RED}, v12",
      "v_bfe_u32 v13, v9, 2, 3", "v_lshrrev_b32 v14, 5, v9", f"s_lshl_b32 s{sT+1}, s{sW}, 1", f"v_add_u32 v14, s{sT+1}, v14")
    e("v_lshrrev_b32 v15, 2, v14", "v_lshlrev_b32 v15, 6, v15", "v_and_b32 v16, 3, v14", "v_lshl_add_u32 v15, v16, 8, v15", "v_add_u32 v15, v15, v12")
    e(f"v_lshl_add_u32 v{aD}, v13, 3, v15")
    e(f"v_lshl_add_u32 v{aCS}, v13, 3, v12")
    e(f"v_lshl_add_u32 v{aDG}, v14, 2, v15")
    e(f"v_lshl_add_u32 v{aGS}, v14, 2, v12")
    e(f"s_mov_b32 s{sMI8}, 0x00ff00ff", f"s_mov_b32 s{sMI8+1}, 0x00ff00ff", f"s_mov_b32 s{sMQ}, 0x11111111", f"s_mov_b32 s{sMQ+1}, 0x11111111")
    e(f"s_mov_b32 s{sLAY}, 0", f"s_mov_b32 s{sSPIN}, 300000")
    e(f"s_mul_i32 s{sBK}, s{sJ}, {BSZ}", f"s_add_u32 s{sBK}, s{sBK}, {BLK}", f"s_add_u32 s{sOB}, s{sBK}, 0x4000",
      f"s_add_u32 s{sST}, s{sBK}, 0xC000", f"s_mov_b32 s{sX1}, {X1}", f"s_lshl_b32 s{sX1L}, s{sC}, 13", f"s_add_u32 s{sX1L}, s{sX1L}, {X1}")
    e("v_lshrrev_b32 v12, 2, v10", "v_and_b32 v13, 3, v9", "v_and_b32 v14, 1, v11", "v_lshrrev_b32 v17, 1, v11")
    e("v_lshlrev_b32 v18, 5, v14", "v_lshl_add_u32 v18, v12, 3, v18", "v_lshl_add_u32 v18, v17, 1, v18")
    e("v_lshlrev_b32 v19, 3, v14", "v_lshl_add_u32 v19, v12, 1, v19")
    e(f"s_lshl_b32 s{sT}, s{sW}, 3", "v_lshrrev_b32 v20, 1, v13", f"v_add_u32 v20, s{sT}, v20", "v_xor_b32 v20, v20, v19",
      "v_lshlrev_b32 v18, 9, v18", "v_lshl_add_u32 v18, v20, 4, v18", "v_and_b32 v20, 1, v13", f"v_lshl_add_u32 v{vVRD}, v20, 3, v18")
    e("v_and_b32 v14, 1, v9", "v_bfe_u32 v15, v10, 1, 1", "v_cmp_eq_u32 vcc, 1, v15", "v_mov_b32 v16, 0x4444", "v_mov_b32 v17, 0xeeee", f"v_cndmask_b32 v{vIDX}, v16, v17, vcc",
      "v_cmp_eq_u32 vcc, 1, v14", "v_mov_b32 v16, 0x01000504", "v_mov_b32 v17, 0x07060302", f"v_cndmask_b32 v{vSEL}, v16, v17, vcc")
    e("v_lshlrev_b32 v16, 4, v13", "v_lshl_add_u32 v16, v11, 6, v16", f"s_lshl_b32 s{sT}, s{sB}, 10", f"v_add_u32 v{vQLD}, s{sT}, v16")
    e(f"s_mul_i32 s{sT}, s{sW}, 320", f"s_add_u32 s{sT}, s{sT}, {PA}", "v_lshlrev_b32 v16, 10, v11", "v_bfe_u32 v17, v10, 2, 1", "v_lshl_add_u32 v16, v17, 5, v16",
      "v_and_b32 v17, 8, v10", "v_add_u32 v16, v16, v17", "v_lshl_add_u32 v16, v14, 2, v16", "v_lshl_add_u32 v16, v15, 1, v16", f"v_add_u32 v{vPW}, s{sT}, v16")
    e(f"s_and_b32 s{sT}, s{sB}, 3", f"s_lshl_b32 s{sT}, s{sT}, 2", f"s_add_u32 s{sT}, s{sT}, s{sS}", f"s_lshl_b32 s{sT}, s{sT}, 4", f"s_lshr_b32 s{sT+1}, s{sB}, 2", f"s_lshl_b32 s{sT+1}, s{sT+1}, 10",
      f"s_add_u32 s{sT}, s{sT}, s{sT+1}", f"s_lshl_b32 s{sT+1}, s{sW}, 12", f"s_add_u32 s{sT}, s{sT}, s{sT+1}",
      "v_and_b32 v16, 6, v9", "v_lshlrev_b32 v16, 1, v16", "v_lshl_add_u32 v16, v14, 14, v16", "v_lshrrev_b32 v17, 5, v9", "v_lshl_add_u32 v16, v17, 11, v16",
      "v_bfe_u32 v17, v9, 3, 2", "v_lshl_add_u32 v16, v17, 8, v16", f"v_add_u32 v{vOST}, s{sT}, v16")
    e(f"s_lshl_b32 s{sT}, s{sOH}, 14", f"s_add_u32 s{sT}, s{sT}, s{sT+1}", f"v_add_u32 v{vOLD}, s{sT}, v{vL16}")
    e("v_and_b32 v16, 7, v9", "v_lshlrev_b32 v16, 4, v16", "v_lshl_add_u32 v16, v11, 7, v16", f"s_lshl_b32 s{sT}, s{sOH}, 10", f"v_add_u32 v{vSLD}, s{sT}, v16")
    e(f"s_and_b32 s{sT}, s{sW}, 1", f"s_lshr_b32 s{sT+1}, s{sW}, 1", f"s_lshl_b32 s{sT+2}, s{sT}, 1", f"s_add_u32 s{sT+2}, s{sT+2}, s{sT+1}", f"s_lshl_b32 s{sT+2}, s{sT+2}, 8",
      f"s_add_u32 s{sT+2}, s{sT+2}, {RED}", "v_lshlrev_b32 v16, 2, v9", f"v_add_u32 v{aOR}, s{sT+2}, v16")
    e(f"s_lshl_b32 s{sT+2}, s{sNQ}, 1", f"s_add_u32 s{sT+2}, s{sT+2}, s{sT+1}", f"s_lshl_b32 s{sT+2}, s{sT+2}, 13",
      f"s_lshl_b32 s{sT+3}, s{sJ}, 1", f"s_add_u32 s{sT+3}, s{sT+3}, s{sOH}", f"s_lshl_b32 s{sT+3}, s{sT+3}, 9", f"s_add_u32 s{sT+2}, s{sT+2}, s{sT+3}",
      f"s_lshl_b32 s{sT}, s{sT}, 8", f"s_add_u32 s{sT+2}, s{sT+2}, s{sT}", "v_lshlrev_b32 v16, 2, v9", f"v_add_u32 v{vX1ST}, s{sT+2}, v16")
    e(f"s_and_b32 s{sT}, s{sB}, 3", f"s_lshl_b32 s{sT}, s{sT}, 7", f"s_lshr_b32 s{sB}, s{sB}, 2", f"s_lshl_b32 s{sB}, s{sB}, 6", f"s_add_u32 s{sB}, s{sB}, s{sT}",
      f"s_lshl_b32 s{sS}, s{sS}, 4", f"s_add_u32 s{sB}, s{sB}, s{sS}", f"s_lshr_b32 s{sT}, s{sW}, 1", f"s_lshl_b32 s{sT}, s{sT}, 9", f"s_add_u32 s{sB}, s{sB}, s{sT}",
      f"s_and_b32 s{sT}, s{sW}, 1", f"s_lshl_b32 s{sT}, s{sT}, 3", f"s_add_u32 s{sB}, s{sB}, s{sT}", f"s_mov_b32 s{sS}, {(-62*1024) & 0xffffffff}",
      f"s_mov_b32 s{sODD}, 0xaaaaaaaa", f"s_mov_b32 s{sODD+1}, 0xaaaaaaaa")
    e("v_bfe_u32 v16, v9, 1, 1", "v_lshlrev_b32 v16, 7, v16", "v_bfe_u32 v17, v9, 2, 3", "v_lshl_add_u32 v16, v17, 4, v16", "v_lshl_add_u32 v16, v14, 3, v16",
      "v_lshrrev_b32 v17, 5, v9", "v_lshl_add_u32 v16, v17, 2, v16", f"s_lshl_b32 s{sT}, s{sC}, 8",
      f"s_cmp_eq_u32 s{sW}, 0", f"s_cselect_b32 s{sT}, s{sT}, 0x40000000", f"v_add_u32 v{vX1r}, s{sT}, v16")
    for i in range(4): e(f"v_mov_b32 v{24+i}, 0")
    e(f"v_add_u32 v12, {PA}, v30", "ds_write_b128 v12, v[24:27]", f"v_mov_b32 v12, {FLAG}", "ds_write_b32 v12, v24")
    e(f"s_getreg_b32 s{sT}, hwreg(HW_REG_XCC_ID)", f"s_and_b32 s{sT}, s{sT}, 15", f"s_mul_i32 s{sT+1}, s{sT}, s{sT}", f"s_lshl_b32 s{sT}, s{sT}, 6",
      f"s_lshl_b32 s{sT+1}, s{sT+1}, 15", f"s_add_u32 s{sT}, s{sT}, s{sT+1}", f"s_add_u32 s{sT}, s{sT}, 1", f"s_lshl_b32 s{sEXP}, s{sT}, 5")
    e(f"v_mov_b32 v28, s{sT}", f"s_lshl_b32 s{sT+1}, s{sJ}, 5", f"v_mov_b32 v29, s{sT+1}")
    if not LATE:
        e(f"s_waitcnt vmcnt({W0+4*EB+NK0+5})", "s_barrier", f"s_cmp_lg_u32 s{sW}, 0", "s_cbranch_scc1 L_ARR")
        e("s_mov_b64 exec, 1", "global_atomic_add v29, v28, s[30:31] sc1", "s_mov_b64 exec, -1")
        e.label("L_ARR")
    else:
        e("v_mov_b32 v60, v28", "v_mov_b32 v61, v29", "v_mov_b32 v62, v30")
        if LATE == 2:
            e("s_mov_b64 exec, 1", f"buffer_load_dword v63, v30, {srd(WS)}, s{sA0} offen nt", f"buffer_load_dword v63, v30, {srd(WS)}, s{sCNT} offen nt", "s_mov_b64 exec, -1")
    e(f"s_mov_b32 s{sCNT}, 0", "s_branch L_Q0")
    stamp(0)

    def qsec(v, W):
        def issue():
            e(f"s_mov_b64 exec, s[{sMI8}:{sMI8+1}]")
            for d in range(4):
                e(f"buffer_load_dwordx4 {vr(8+4*d,4)}, v{vX0}, {srd(SX)}, 0 offen offset:{512*d} sc1")
            e("s_mov_b64 exec, -1")
        def first_layer():
            e.label("L_Q0")
            pump_until(max(WQA + [0]) + 2, DS)
            drain_stream()
            for _ in range(PRE // 2): call_pump()
            q_prep()
            e(f"s_mov_b64 exec, s[{sMI8}:{sMI8+1}]")
            for i in range(16): e(f"v_mov_b32 v{8+i}, v{40+i}")
            e("s_mov_b64 exec, -1")
            if LATE:
                for i in range(4): e(f"v_mov_b32 v{40+i}, -1")
                e(f"s_add_u32 s{sT}, s{sA0}, 0x200000", f"buffer_store_dword v40, v{vQST}, {srd(WS)}, s{sQB} offen sc1")
                if not opt.get("noclear"):
                    for r in (sA0, sA1, sT): e(f"buffer_store_dwordx4 v[40:43], v62, {srd(WS)}, s{r} offen sc1")
                for _ in range(opt.get("lx", 2) // 2): call_pump()
            wq_move(WqA, vPT)
            if EB: wq_move(WqB, vPT, STG - 16384)
            e("v_mfma_f32_16x16x32_bf16 v[28:31], v[8:11], v[8:11], 0", "s_branch L_QAOK")
        if v == "A": ool.append(first_layer)
        poll(f"Q{v}", issue, 4, lambda: check_max(range(8, 24), 32),
             lambda: e("v_mfma_f32_16x16x32_bf16 v[28:31], v[8:11], v[8:11], 0"), q_prep,
             lambda: e("s_waitcnt vmcnt(0) lgkmcnt(0)", "s_barrier"))
        stamp(1)
        for d in range(4):
            if d: e(f"v_mfma_f32_16x16x32_bf16 v[28:31], {vr(8+4*d,4)}, {vr(8+4*d,4)}, v[28:31]")
            e(f"v_mfma_f32_16x16x32_bf16 v[24:27], {vr(8+4*d,4)}, {vr(W+4*d,4)}, {'0' if d == 0 else 'v[24:27]'}")
    qsec("A", WqA)
    e.label("L_QJ")
    def qb():
        qsec("B", WqB); e("s_branch L_QJ")
    ool.append(qb)
    if not POST: pre_issue()
    stamp(20)
    e(f"ds_write2st64_b32 v{vRW}, v28, v29 offset0:4 offset1:5", f"ds_write2st64_b32 v{vRW}, v30, v31 offset0:6 offset1:7",
      f"ds_write2st64_b32 v{vRW}, v24, v25 offset0:0 offset1:1", f"ds_write2st64_b32 v{vRW}, v26, v27 offset0:2 offset1:3", "s_waitcnt lgkmcnt(0)")
    stamp(21)
    e("s_barrier")
    stamp(22)
    e(f"ds_read_b32 v37, v{aGS} offset:{1024+128}", f"ds_read_b32 v36, v{aDG} offset:1024", f"ds_read_b64 v[32:33], v{aD}", f"ds_read_b64 v[34:35], v{aCS} offset:128")
    inv = f2u(1.0 / 448.0)
    X1_, X2_ = f"quad_perm:[1,0,3,2] {DPP}", f"quad_perm:[2,3,0,1] {DPP}"
    e("s_waitcnt lgkmcnt(2)")
    e(f"v_add_f32_dpp v37, v37, v37 {X1_}", f"v_add_f32_dpp v36, v36, v36 {X1_}", "s_waitcnt lgkmcnt(0)")
    stamp(23)
    e(f"v_add_f32_dpp v37, v37, v37 {X2_}", f"v_add_f32_dpp v36, v36, v36 {X2_}",
      f"v_mul_f32 v37, {inv}, v37", f"v_mul_f32 v36, {inv}, v36",
      "v_pk_fma_f32 v[32:33], v[34:35], v[36:37], v[32:33] op_sel:[0,1,0] op_sel_hi:[1,1,1] neg_lo:[1,0,0] neg_hi:[1,0,0]",
      "v_fma_f32 v36, -v37, v37, v36", "v_max_f32 v36, 0, v36",
      f"v_add_f32_dpp v32, v32, v32 {X1_}", f"v_add_f32_dpp v33, v33, v33 {X1_}", f"v_add_f32 v36, {f2u(1e-5)}, v36", "v_rsq_f32 v36, v36",
      f"v_add_f32_dpp v32, v32, v32 {X2_}", f"v_add_f32_dpp v33, v33, v33 {X2_}", f"v_mul_f32 v36, {f2u(1.4426950408889634/16.0)}, v36",
      f"s_mov_b64 exec, s[{sMQ}:{sMQ+1}]", "v_pk_mul_f32 v[32:33], v[32:33], v[36:37] op_sel:[0,0] op_sel_hi:[1,0]",
      "v_cvt_pk_bf16_f32 v56, v32, v33", "v_min_u32 v56, -2, v56")
    publish(f"buffer_store_dword v56, v{vQST}, {{r}}, s{sQB} offen {{fl}}")
    e("s_mov_b64 exec, -1")
    stamp(2)
    e(f"s_cmp_lt_u32 s{sLAY}, 2", "s_cbranch_scc1 L_INIT")
    e.label("L_INITD")
    def init():
        e.label("L_INIT")
        e(f"s_cmp_eq_u32 s{sLAY}, 0", "s_cbranch_scc1 L_INIT0")
        pump_until(103, D2)
        if opt.get("aprobe", 0):
            e(f"v_and_b32 v47, 0xf0, v{vL16}", f"v_lshlrev_b32 v47, 2, v47", f"v_bfe_u32 v46, v{vL16}, 8, 1", "v_lshl_add_u32 v47, v46, 4, v47",
              f"v_and_b32 v46, 0x1c00, v{vQLD}", "v_add_u32 v47, v47, v46")
            probe("L_APR", f"buffer_load_dword v8, v47, {srd(WS)}, s{sQB} offen sc1", "-1", "L_INITD", "AP", 8)
        e("s_branch L_INITD")
        e.label("L_INIT0")
        e(f"s_mov_b32 s{sLIM}, 64", f"s_min_u32 s{sSTOP}, s{sNSP}, s{sLIM}")
        if LATE:
            drain_stream(DS, 6)
            e("s_barrier", f"s_cmp_lg_u32 s{sW}, 0", "s_cbranch_scc1 L_ARR")
            e("s_mov_b64 exec, 1", "global_atomic_add v61, v60, s[30:31] sc1", "s_mov_b64 exec, -1")
            e.label("L_ARR")
        pump_until(opt.get('ipos', 38), DS)
        if opt.get("streamonly"):
            e(f"s_mov_b32 s{sLIM}, 128", f"s_min_u32 s{sSTOP}, s{sNSP}, s{sLIM}")
            pump_until(128, DS)
            e("s_waitcnt vmcnt(0)", "s_memrealtime s[96:97]", "s_waitcnt lgkmcnt(0)", f"v_writelane_b32 v{vDBG}, s96, 28", "s_branch L_END")
        e(f"v_lshlrev_b32 v41, 1, v{vL16}", f"v_mov_b32 v42, {FLAG}", f"s_cmp_lg_u32 s{sW}, 0", "s_cbranch_scc1 L_IWAIT")
        e.label("L_IPOLL")
        e("s_mov_b64 exec, 0xff", "global_load_dword v8, v41, s[30:31] sc1", "s_mov_b64 exec, -1")
        drain_stream()
        e("s_mov_b64 exec, 0xff", "v_and_b32 v9, 63, v8", "v_cmp_ne_u32 vcc, 32, v9", "s_mov_b64 exec, -1", "s_cbranch_vccnz L_IFAIL")
        e(f"v_readlane_b32 s{sT}, v8, s{sJ}", f"s_cmp_eq_u32 s{sT}, s{sEXP}")
        if opt.get("forceslow"): e("s_cmp_eq_u32 0, 1")
        e(f"s_cselect_b32 s{sT}, 2, 1", f"v_mov_b32 v9, s{sT}", "ds_write_b32 v42, v9", "s_branch L_IGOT")
        e.label("L_IFAIL")
        spin_down(); e("s_branch L_IPOLL")
        e.label("L_IWAIT")
        e(f"s_waitcnt vmcnt({DS-2})"); call_pump()
        e("ds_read_b32 v9, v42")
        spin_down()
        e("s_waitcnt lgkmcnt(0)", f"v_readfirstlane_b32 s{sT}, v9", f"s_cmp_eq_u32 s{sT}, 0", "s_cbranch_scc1 L_IWAIT")
        e.label("L_IGOT")
        e(f"s_mov_b32 s{sT+5}, s{sT}")
        pump_until(39, DS)
        e(f"s_mov_b32 s{sT}, s{sT+5}")
        e(f"s_cmp_eq_u32 s{sT}, 2", f"s_cselect_b32 s{SF+2}, {WSEND}, 0", f"s_cselect_b32 s{SS+2}, 0, {WSEND}")
        if opt.get("touch0", 1):
            e(f"s_cmp_lg_u32 s{sW}, 1", "s_cbranch_scc1 L_INITD")
            e(f"s_mul_i32 s{sT}, s{sC}, {13*128}", f"s_add_u32 s{sT}, s{sT}, s{sBK}", f"v_lshlrev_b32 v41, 3, v{vL16}", "s_mov_b64 exec, 0x1fff",
              f"buffer_load_dword v9, v41, {srd(WS)}, s{sT} offen sc1", "s_mov_b64 exec, -1")
        e("s_branch L_INITD")
    ool.append(init)

    def a_prep():
        for i in range(32): e(f"v_mov_b32 v{24+i}, 0")
    e(f"s_lshl_b32 s{sT}, s{sW}, 3", f"s_add_u32 s{sT}, s{sT}, {SL}", f"v_mov_b32 v61, s{sT}", f"v_add_u32 v62, {PA}, v{vL16}",
      f"v_lshrrev_b32 v63, 8, v{vL16}", f"v_lshlrev_b32 v63, 3, v63", f"v_add_u32 v63, {SL}, v63")
    e(f"s_bitcmp1_b32 s{sLAY}, 0", "s_cbranch_scc1 L_ABP")
    def sadd1(t, h): return f"v_add_f32_dpp v{56+h}, v{24+4*t+h}, v{26+4*t+h} quad_perm:[0,1,2,3] row_mask:{1<<t} bank_mask:0xf"
    def asec(v, base):
        def issue():
            for u in range(4):
                e(f"buffer_load_dwordx4 {vr(8+4*u,4)}, v{vQLD}, {srd(WS)}, s{sQB} offen offset:{256*u} sc1")
        def sm(t, u): e(f"v_smfmac_f32_16x16x64_bf16 {vr(24+4*t,4)}, {vr(8+4*u,4)}, {ar(base+32*t+8*u,8)}, v{vIDX}")
        def undo():
            e.nop(8)
            for i in range(4): e(f"v_mov_b32 v{24+i}, 0")
        poll(f"A{v}", issue, 4, lambda: check_max(range(8, 24), 58), lambda: sm(0, 0), a_prep, lambda: e("s_waitcnt vmcnt(0)"), undo=undo)
        stamp(3)
        for t in range(4):
            for u in range(4):
                if t or u: sm(t, u)
                if t and u >= 2: e(sadd1(t - 1, u - 2))
    asec("A", 0)
    e.label("L_KJ")
    def kb():
        asec("B", 128); e("s_branch L_KJ")
    ool.append(kb)
    pre_issue()
    e(f"v_bfe_u32 v24, v{vL16}, 4, 2", f"v_lshlrev_b32 v24, 3, v24", f"v_add_u32 v24, {SL}, v24", f"s_add_u32 s{sOB2}, s{sST}, s{sB}", sadd1(3, 0), sadd1(3, 1))
    steps = ["quad_perm:[1,0,3,2] row_mask:0xf", "quad_perm:[2,3,0,1] row_mask:0xf", "row_half_mirror row_mask:0xf", "row_mirror row_mask:0xf",
             "row_bcast:15 row_mask:0xa", "row_bcast:31 row_mask:0xc"]
    fill = [f"s_cmp_lt_u32 s{sLAY}, 2", f"v_lshl_add_u32 v25, v{vL16}, 6, s{sS}"]
    for i, st in enumerate(steps):
        for h in range(2):
            s_ = 56 + h if i == 0 else 58 + h
            e(f"v_max_f32_dpp v{58+h}, v{s_}, v{s_} {st} bank_mask:0xf")
        if fill: e(fill.pop(0))
    e(f"v_readlane_b32 s{sA0}, v58, 63", f"v_readlane_b32 s{sA1}, v59, 63")
    e("s_mov_b32 exec_lo, 0", "s_mov_b32 exec_hi, 0x80000000", "ds_write_b64 v61, v[58:59]", "s_mov_b64 exec, -1")
    e(f"v_subrev_f32 v56, s{sA0}, v56", f"v_subrev_f32 v57, s{sA1}, v57", "v_exp_f32 v56, v56", "v_exp_f32 v57, v57",
      "v_cvt_pk_bf16_f32 v60, v56, v57", f"ds_write_b16 v{vPW}, v60", f"ds_write_b16_d16_hi v{vPW}, v60 offset:16")
    V = []
    for i, st in enumerate(steps):
        for h in range(2): V.append(f"v_add_f32_dpp v{56+h}, v{56+h}, v{56+h} {st} bank_mask:0xf")
    e(V.pop(0), V.pop(0), "s_cbranch_scc1 L_VEARLY", "s_waitcnt vmcnt(0)")
    e.label("L_VB")
    VREST = list(V)
    e(V.pop(0), V.pop(0), f"v_cndmask_b32 v27, v58, v59, s[{sODD}:{sODD+1}]", V.pop(0), V.pop(0), "v_min_u32 v27, -2, v27", V.pop(0), V.pop(0))
    e("s_waitcnt lgkmcnt(0)", "s_barrier")
    stamp(4)
    def vearly():
        e.label("L_VEARLY")
        e(f"s_cmp_eq_u32 s{sLAY}, 0", "s_cbranch_scc0 L_PROG")
        for k in range(4):
            if opt.get("afirst"):
                pump_until(min(40 + 8 * k + DS, 64), DS); e(f"s_waitcnt vmcnt({min(DS, 24 - 8 * k)})")
            else:
                landed(40 + 8 * k, DS)
            e("s_waitcnt lgkmcnt(0)", "s_barrier")
            if k: e(f"s_mov_b32 s{sLIM}, {64 + 8 * k}", f"s_min_u32 s{sSTOP}, s{sNSP}, s{sLIM}")
            if HG and k == HG - 1:
                l_ = L("hg")
                e(f"s_cmp_lg_u32 s{sW}, 0", f"s_cbranch_scc1 {l_}", f"s_lshl_b32 s{sT}, s2, 2", f"s_add_u32 s{sT}, s{sT}, {GFL}", "v_mov_b32 v8, 0", "s_mov_b64 exec, 1",
                  f"buffer_store_dword v8, off, {srd(WS)}, s{sT} sc1", "s_mov_b64 exec, -1")
                e.label(l_)
            if HQ and k == HQ - 1:
                e(f"s_lshl_b32 s{sT}, s{sC}, 2", f"s_add_u32 s{sT}, s{sT}, s{sBK}", "v_mov_b32 v8, 0", "s_mov_b64 exec, 1")
                publish(f"buffer_store_dword v8, off, {{r}}, s{sT} offset:{HINT & 4095} {{fl}}".replace(f"s{sT} offset:{HINT & 4095}", f"s{sT+1}"), pre=f"s_add_u32 s{sT+1}, s{sT}, {HINT}")
                e("s_mov_b64 exec, -1")
            e(f"s_call_b64 s[{sRET2}:{sRET2+1}], L_MOVEV{k}")
        if not POST:
            for _ in range(PRE // 2): call_pump()
        e("s_branch L_VB")
    ool.append(vearly)
    for k in range(4): e(f"ds_read_b128 {vr(8+4*k,4)}, v62 offset:{1024*k}")
    e("ds_read_b64 v[28:29], v24", "ds_read_b64 v[36:37], v63")
    e(V.pop(0), V.pop(0), f"s_mov_b32 s{sLIM}, s{sLIMX}", V.pop(0), V.pop(0), f"s_min_u32 s{sSTOP}, s{sNSP}, s{sLIM}",
      f"v_cndmask_b32 v26, v56, v57, s[{sODD}:{sODD+1}]", "v_min_u32 v26, -2, v26")
    publish(f"buffer_store_dwordx2 v[26:27], v25, {{r}}, s{sOB2} offen {{fl}}")
    def tpost(tau):
        return [f"v_pk_add_f32 {vr(40+4*tau,2)}, {vr(40+4*tau,2)}, {vr(42+4*tau,2)}", f"v_pk_mul_f32 {vr(40+4*tau,2)}, {vr(40+4*tau,2)}, v[38:39]"]
    V += [None, None, f"v_max_f32_dpp v28, v28, v28 {X1_}", f"v_max_f32_dpp v29, v29, v29 {X1_}",
          f"v_max_f32_dpp v28, v28, v28 {X2_}", f"v_max_f32_dpp v29, v29, v29 {X2_}", "v_sub_f32 v38, v36, v28", "v_sub_f32 v39, v37, v29", "v_exp_f32 v38, v38", "v_exp_f32 v39, v39"]
    V += [tpost(0)[0], tpost(0)[1], tpost(2)[0], tpost(2)[1], "v_permlane32_swap_b32 v40, v48", None]
    FOPS = [x_ for x_ in V[:10] if x_]
    order = [0, 2, 1, 3]
    n_ = 0
    for tau in order:
        for k in range(4):
            if n_ < 2: e(f"s_waitcnt lgkmcnt({5-n_})")
            if n_ == 2: e("s_waitcnt lgkmcnt(0)")
            e(f"v_smfmac_f32_16x16x64_bf16 {vr(40+4*tau,4)}, {vr(8+4*k,4)}, {vr(AV+32*k+8*tau,8)}, v{vIDX}")
            if n_ == 0: stamp(10)
            if n_ == 3: stamp(11)
            x_ = V.pop(0)
            if x_: e(x_)
            n_ += 1
    assert not V, V
    stamp(12)
    e.label("L_POST")
    e("v_permlane32_swap_b32 v41, v49"); e(*tpost(1))
    e("v_pk_add_f32 v[40:41], v[40:41], v[48:49]")
    e(*tpost(3))
    e("v_permlane32_swap_b32 v44, v52", "v_permlane32_swap_b32 v45, v53", "v_pk_add_f32 v[44:45], v[44:45], v[52:53]")
    e("v_permlane16_swap_b32 v40, v44", "v_permlane16_swap_b32 v41, v45", "v_pk_add_f32 v[40:41], v[40:41], v[44:45]")
    e("v_cvt_pk_bf16_f32 v40, v40, v41", f"v_mov_b32_dpp v41, v40 {X1_}", f"v_perm_b32 v40, v40, v41, v{vSEL}", "v_min_u32 v40, -2, v40")
    stamp(13)
    publish(f"buffer_store_dword v40, v{vOST}, {{r}}, s{sOB} offen {{fl}}")
    stamp(5)
    def prog():
        e.label("L_PROG")
        for _ in range(P1 // 2): call_pump()
        e(*VREST)
        e(f"v_cndmask_b32 v27, v58, v59, s[{sODD}:{sODD+1}]", f"v_cndmask_b32 v26, v56, v57, s[{sODD}:{sODD+1}]", "v_min_u32 v27, -2, v27", "v_min_u32 v26, -2, v26")
        publish(f"buffer_store_dwordx2 v[26:27], v25, {{r}}, s{sOB2} offen {{fl}}")
        e("s_waitcnt lgkmcnt(0)", "s_barrier")
        stamp(4)
        e("ds_read_b64 v[28:29], v24", "ds_read_b64 v[36:37], v63", "s_waitcnt lgkmcnt(0)")
        for x_ in FOPS: e(x_)
        e("v_mov_b32 v37, v62")
        for k in range(4):
            m = 104 + 8 * k
            pump_until(min(m + D3, 128), D3)
            e(f"s_waitcnt vmcnt({min(D3, 128 - m)})")
            if k == 3 and debug and opt.get("pstamps"):
                e("s_memrealtime s[96:97]", "s_waitcnt lgkmcnt(0)", f"v_writelane_b32 v{vDBG}, s96, 28")
            e(f"ds_read_b128 v[32:35], v37 offset:{1024*k}", "s_barrier")
            bases = {0: 24, 2: 56, 1: 128 - 128 + 24, 3: 56}
            def rd(tau, base):
                for r0 in range(2):
                    e(f"v_xor_b32 v36, {(tau << 5) | (r0 << 4) | ((k >> 1) << 16)}, v{vVRD}")
                    for r in (r0, r0 + 2):
                        e(f"ds_read_b64_tr_b16 {vr(base+2*r,2)}, v36 offset:{(k & 1)*32768 + (r & 1)*512 + (r >> 1)*2048}")
            def sm(tau, base): e(f"v_smfmac_f32_16x16x64_bf16 {vr(40+4*tau,4)}, v[32:35], {vr(base,8)}, v{vIDX}")
            if k < 3:
                rd(0, 24); rd(2, 56); e("s_waitcnt lgkmcnt(4)"); sm(0, 24); e.nop(4); rd(1, 24); e("s_waitcnt lgkmcnt(4)"); sm(2, 56); e.nop(4); rd(3, 56)
                e("s_waitcnt lgkmcnt(4)"); sm(1, 24); e("s_waitcnt lgkmcnt(0)"); sm(3, 56)
            else:
                rd(0, 24); rd(2, 56); rd(1, 8); rd(3, 16); e("s_waitcnt lgkmcnt(12)"); sm(0, 24)
                e("s_waitcnt lgkmcnt(8)"); sm(2, 56); e("s_waitcnt lgkmcnt(4)"); sm(1, 8); e("s_waitcnt lgkmcnt(0)"); sm(3, 16)
        e(*tpost(0), *tpost(2), "v_permlane32_swap_b32 v40, v48")
        e("s_branch L_POST")
    ool.append(prog)

    e(f"s_cmp_ge_u32 s{sC}, 28", "s_cbranch_scc1 L_NOO0")
    def sissue():
        e(f"buffer_load_dwordx4 v[56:59], v{vSLD}, {srd(WS)}, s{sST} offen sc1", f"buffer_load_dwordx4 v[60:63], v{vSLD}, {srd(WS)}, s{sST} offen offset:512 sc1")
    def oissue():
        for mt in range(2):
            for ks in range(2):
                e(f"buffer_load_dwordx4 {vr(8+8*mt+4*ks,4)}, v{vOLD}, {srd(WS)}, s{sOB} offen offset:{2048*ks+1024*mt} sc1")
    def omf(ks, mt, nt):
        d = vr(40 + 8 * mt + 4 * nt, 4)
        e(f"v_mfma_f32_16x16x32_bf16 {d}, {vr(8+8*mt+4*ks,4)}, {vr(24+8*ks+4*nt,4)}, {'0' if ks == 0 else d}")
    ostream = f"s_cmp_lt_u32 s{sIT}, 128"
    sissue()
    e(f"s_bitcmp1_b32 s{sLAY}, 0", "s_cbranch_scc1 L_OWB")
    for i in range(16): e(f"v_mov_b32 v{24+i}, v{WoA+i}")
    def owb():
        e.label("L_OWB"); e.nop(2); wo_move(24, 55); e("s_branch L_OWJ")
    ool.append(owb)
    e.label("L_OWJ")
    e(ostream, "s_cbranch_scc1 L_OS0", "s_waitcnt vmcnt(2)")
    oissue()
    e("s_waitcnt vmcnt(4)")
    e.label("L_OSC")
    check_max([56, 58, 60, 62, 57, 59, 61, 63], 40)
    e("v_max3_f32 v41, v57, v59, v61", "s_cbranch_vccnz L_OSF", "v_max_f32 v41, v41, v63")
    e(f"v_max_f32_dpp v42, v41, v41 {X1_}", f"v_max_f32_dpp v42, v42, v42 {X2_}")
    e("v_sub_f32 v43, v57, v42", "v_sub_f32 v44, v59, v42", "v_sub_f32 v45, v61, v42", "v_sub_f32 v46, v63, v42", "v_sub_f32 v41, v41, v42",
      "v_exp_f32 v43, v43", "v_exp_f32 v44, v44", "v_exp_f32 v45, v45", "v_exp_f32 v46, v46", "v_exp_f32 v41, v41",
      "v_mul_f32 v43, v43, v56", "v_fmac_f32 v43, v44, v58", "v_fmac_f32 v43, v45, v60", "v_fmac_f32 v43, v46, v62",
      f"v_add_f32_dpp v43, v43, v43 {X1_}", f"v_add_f32_dpp v43, v43, v43 {X2_}", "v_rcp_f32 v43, v43", f"v_mul_f32 v{vPT}, v41, v43")
    e(ostream, "s_cbranch_scc1 L_OC")
    e.label("L_OR")
    if ROLL:
        oissue(); e("s_waitcnt vmcnt(4)")
    else:
        e("s_waitcnt vmcnt(0)")
    e.label("L_OC")
    check_max(range(8, 24), 48)
    omf(0, 0, 0)
    e("s_cbranch_vccnz L_OF")
    def ofail():
        e.label("L_OSF")
        spin_down(); e(ostream, "s_cbranch_scc1 L_OS1"); sissue(); e("s_waitcnt vmcnt(0)", "s_branch L_OSC")
        e.label("L_OF")
        spin_down(); e(ostream, "s_cbranch_scc1 L_OS1")
        if not ROLL: oissue()
        e("s_branch L_OR")
        e.label("L_OSA")
        check_max(range(8, 24), 48)
        e("s_cbranch_vccz L_OSC")
        spin_down()
        e("s_branch L_OS1")
        e.label("L_OS0")
        for _ in range(opt.get("bo", 0) // 2): call_pump()
        if HG:
            e(f"s_mov_b32 s{sT+5}, {GFL}", arm("OP"))
            e.label("L_GP")
            e(f"buffer_load_dwordx4 v[44:47], v{vL16}, {srd(WS)}, s{sT+5} offen sc1", "s_branch L_GS")
            e.label("L_GC")
            check_max([44, 45, 46, 47], 43)
            e("s_cbranch_vccz L_OPD")
            spin_down(); e("s_branch L_GP")
            stream_round("L_GS", "L_GP", "L_GC", 1, "OP")
        if HQ:
            e(f"v_lshrrev_b32 v47, 2, v{vL16}", f"s_add_u32 s{sT}, s{sBK}, {HINT}", f"v_add_u32 v47, s{sT}, v47", f"v_lshlrev_b32 v46, 3, v{vL16}",
              f"v_add_u32 v46, {GFL - 32 * 128}, v46", "s_mov_b32 exec_lo, 0", "v_mov_b32 v47, v46", "s_mov_b64 exec, -1",
              f"s_and_b32 s{sT+5}, s{sC}, 7", f"s_or_b32 s{sT+5}, s{sT+5}, s{sW}")
            HL = opt.get("hlocal", 0)
            def hload(): e(f"s_mov_b32 exec_hi, {0 if HL else 0xff}", f"buffer_load_dword v46, v47, {srd(WS)}, 0 offen sc1", "s_mov_b64 exec, -1")
            if HL == 2:
                e(arm("OP"))
            else:
                hload(); e("s_waitcnt vmcnt(0)", arm("OP"), "s_branch L_HC0")
            e.label("L_HP")
            hload(); e("s_branch L_HS")
            e.label("L_HC")
            e(f"s_mov_b32 s{sCNT}, 0")
            e.label("L_HC0")
            if HL:
                e("s_mov_b32 exec_hi, 0", "v_cmp_eq_u32 vcc, -1, v46", "s_mov_b64 exec, -1", "s_cbranch_vccz L_OPD")
                spin_down(); e("s_branch L_HP")
            e("s_mov_b32 exec_hi, 0xff", "v_cmp_eq_u32 vcc, -1, v46", "s_mov_b64 exec, -1", "s_nop 2", "s_cmp_eq_u32 vcc_hi, 0", "s_cbranch_scc1 L_OPD")
            spin_down()
            e(f"s_or_b32 s{sT}, vcc_lo, s{sT+5}", "s_cbranch_scc1 L_HP")
            e(f"s_lshl_b32 s{sT}, s{sJ}, 7", f"s_add_u32 s{sT}, s{sT}, {GFL}", "v_mov_b32 v45, 0", "s_mov_b64 exec, 1",
              f"buffer_store_dword v45, off, {srd(WS)}, s{sT} sc1", "s_mov_b64 exec, -1", f"s_mov_b32 s{sT+5}, 1", "s_branch L_HP")
            stream_round("L_HS", "L_HP", "L_HC", 1, "OP")
        e(f"v_and_b32 v47, 0xf0, v{vL16}", f"v_and_b32 v46, 0x100, v{vL16}", "v_lshl_add_u32 v47, v46, 2, v47", f"v_sub_u32 v46, v{vOLD}, v{vL16}", "v_add_u32 v47, v47, v46")
        probe("L_OPR", f"buffer_load_dword v46, v47, {srd(WS)}, s{sOB} offen sc1", "-1", "L_OPD", "OP")
        e.label("L_NOO0")
        e(f"s_cmp_eq_u32 s{sLAY}, 0", "s_cbranch_scc0 L_NOO")
        if SPLITB: pump_until(WQH[3] + 9, DS)
        e("s_branch L_NOO" if opt.get("c28", 1) else "s_branch L_OS0")
        e.label("L_OPD")
        if RW:
            e(f"s_mov_b32 s{sT+3}, s{KV}", f"s_mov_b32 s{sT+4}, s{KV+1}",
              f"s_lshl_b32 s{sT}, s{sJ}, 19", f"s_lshl_b32 s{sT+1}, s{sC}, 14", f"s_add_u32 s{sT}, s{sT}, s{sT+1}", f"s_add_u32 s{sT}, s{sT}, {WX}",
              f"s_add_u32 s{KV}, s32, s{sT}", f"s_addc_u32 s{KV+1}, s33, 0", f"s_mov_b32 s{KV+2}, 14336", f"s_lshl_b32 s{sT}, s{sW}, 12")
            for d in range(4):
                e(f"s_add_u32 m0, s{sT}, {STG+1024*d}", f"s_add_u32 s{sT+1}, s{sT}, {1024*d}", f"buffer_load_dwordx4 v{vL16}, {srd(KV)}, s{sT+1} offen sc1 lds")
            e(f"s_mov_b32 s{KV}, s{sT+3}", f"s_mov_b32 s{KV+1}, s{sT+4}", f"s_mov_b32 s{KV+2}, 0x20000")
        e(f"s_cmp_ge_u32 s{sC}, 28", "s_cbranch_scc0 L_OS1")
        if RW: drain_stream(DC, 4)
        e("s_branch L_NOO")
        e.label("L_OS1")
        if debug and 14 in sset:
            e(f"s_cmp_lg_u32 s{SP[sset.index(14)]}, 0", "s_cbranch_scc1 L_OS1b"); stamp(14); e("s_waitcnt lgkmcnt(0)"); e.label("L_OS1b")
        sissue()
        oissue()
        if DO: drain_stream(DO, 6)
        else: e("s_waitcnt vmcnt(0)")
        e("s_branch L_OSA")
    ool.append(ofail)
    stamp(6)
    def ws(o, mt, nt, s_, first):
        d = 40 + 8 * mt + 4 * nt
        return f"v_{'mul' if first else 'fmac'}_f32_dpp v{o}, v{vPT}, v{d+s_} row_newbcast:{4*mt+s_} {DPP}"
    omf(1, 0, 0); omf(0, 0, 1); omf(1, 0, 1); omf(0, 1, 0); omf(1, 1, 0)
    e(ws(24, 0, 0, 0, 1), ws(25, 0, 1, 0, 1)); omf(0, 1, 1)
    e(ws(24, 0, 0, 1, 0), ws(25, 0, 1, 1, 0)); omf(1, 1, 1)
    e(ws(24, 0, 0, 2, 0), ws(25, 0, 1, 2, 0), ws(26, 1, 0, 0, 1), ws(28, 1, 0, 2, 1), ws(24, 0, 0, 3, 0), ws(25, 0, 1, 3, 0), ws(26, 1, 0, 1, 0), ws(28, 1, 0, 3, 0))
    e(ws(27, 1, 1, 0, 1), ws(29, 1, 1, 2, 1), f"ds_write2st64_b32 v{vRW}, v24, v25 offset0:0 offset1:1", ws(27, 1, 1, 1, 0), ws(29, 1, 1, 3, 0),
      "v_pk_add_f32 v[26:27], v[26:27], v[28:29]", f"ds_write2st64_b32 v{vRW}, v26, v27 offset0:2 offset1:3")
    if not POST: pre_issue()
    e("s_waitcnt lgkmcnt(0)", "s_barrier")
    e(f"ds_read_b32 v28, v{aOR}", f"ds_read_b32 v29, v{aOR} offset:{RS}", f"ds_read_b32 v30, v{aOR} offset:{2*RS}", f"ds_read_b32 v31, v{aOR} offset:{3*RS}", "s_waitcnt lgkmcnt(0)")
    e("v_pk_add_f32 v[28:29], v[28:29], v[30:31]", "v_add_f32 v28, v28, v29", "v_min_u32 v28, -2, v28")
    e(f"buffer_store_dword v28, v{vX1ST}, {srd(WS)}, s{sX1} offen sc1")
    e.label("L_NOO")
    stamp(7)
    e(f"s_add_u32 s{sBK}, s{sBK}, {8*BSZ}", f"s_mov_b32 s{sXO}, s{sBK}", f"s_add_u32 s{sOB2}, s{sX1L}, 4096")
    e(f"s_cmp_eq_u32 s{sLAY}, 3", "s_cbranch_scc1 L_LAST")
    def last():
        e.label("L_LAST")
        e(f"s_cmp_ge_u32 s{sC}, 28", f"s_cselect_b32 s{sT}, 1, s{sW}", f"s_or_b32 s{sT}, s{sT}, s{sJ}", "s_cbranch_scc1 L_END")
        e(f"s_mov_b32 s{SF}, s28", f"s_mov_b32 s{SF+1}, s29", f"s_mov_b32 s{SF+2}, 7168", f"s_mov_b32 s{SS+2}, 0", f"s_mov_b32 s{sXO}, 0")
        x2_voff(vX1r, 41)
        e("s_branch L_XGO")
    ool.append(last)
    if opt.get("touch", 1):
        e(f"s_cmp_lg_u32 s{sW}, 1", "s_cbranch_scc1 L_NOTOUCH")
        e(f"s_mul_i32 s{sT}, s{sC}, {13*128}", f"s_add_u32 s{sT}, s{sT}, s{sBK}", f"v_lshlrev_b32 v32, 3, v{vL16}", "s_mov_b64 exec, 0x1fff",
          f"buffer_load_dword v63, v32, {srd(WS)}, s{sT} offen sc1", "s_mov_b64 exec, -1")
        e.label("L_NOTOUCH")
    def preload():
        for nm in ("A", "B"):
            e.label("L_PRELOAD" + nm)
            for k in range(4): e(f"s_call_b64 s[{sRET2}:{sRET2+1}], L_MOVEV{k}")
            e(f"s_mov_b32 s{sA0}, 0", "s_branch L_PRELD" + nm)
    ool.append(preload)
    e(f"s_mov_b32 s{sA0}, s{sLAY}")
    e(f"s_cmp_ge_u32 s{sC}, 28", f"s_cselect_b32 s{sT}, 7, s{sW}", f"s_cmp_eq_u32 s{sLAY}, 0", "s_cbranch_scc1 L_X0", f"s_cmp_lg_u32 s{sT}, 0", "s_cbranch_scc1 L_NOX")
    e.label("L_XGO")
    if not opt.get("xnoack"): e("s_waitcnt vmcnt(0)")
    if opt.get("xdelay"): e(f"s_sleep {opt['xdelay']}")
    def xissue():
        for i in range(8):
            e(f"buffer_load_dwordx4 {vr(24+4*i,4)}, v{vL16}, {srd(WS)}, s{sX1L if i < 4 else sOB2} offen offset:{1024*(i&3)} sc1")
    def xprep(): e(f"v_lshlrev_b32 v58, 16, v{vXOLD}", f"v_and_b32 v59, 0xffff0000, v{vXOLD}")
    e.label("L_XPOLL")
    xissue(); xprep()
    e(f"s_cmp_eq_u32 s{sA0}, 2", "s_cbranch_scc1 L_PRELOADA")
    e.label("L_PRELDA")
    for i in range(1, 8):
        e(f"s_waitcnt vmcnt({7-i})")
        for r in range(2):
            e(f"v_pk_add_f32 {vr(60+2*r,2)}, {vr((24 if i == 1 else 60)+2*r,2)}, {vr(24+4*i+2*r,2)}")
    e.label("L_XSUM")
    e("v_permlane32_swap_b32 v60, v62", "v_permlane32_swap_b32 v61, v63", "v_pk_add_f32 v[60:61], v[60:61], v[62:63]")
    e("v_cmp_u_f32 vcc, v60, v61", "v_cvt_pk_bf16_f32 v62, v60, v61", "s_cbranch_vccnz L_XNAN")
    e.label("L_XOK")
    def wqb_in():
        if RW:
            wq_move(WqB, vPT)
            e(f"s_mov_b32 s{sLIMX}, 128", f"s_mov_b32 s{sLIM}, 128", f"s_min_u32 s{sSTOP}, s{sNSP}, s{sLIM}")
    def xool():
        e.label("L_XNAN")
        check_max(range(24, 56), 57)
        e("s_cbranch_vccz L_XOK")
        spin_down(); e("s_branch L_XPOLL")
        e.label("L_XS2")
        spin_down()
        if XW2:
            def setflag(v): e(f"v_mov_b32 v57, {FLAG}", f"v_mov_b32 v58, {v}", "ds_write_b32 v57, v58")
            setflag(3)
            e(f"v_lshlrev_b32 v9, 4, v{vL16}")
            e(arm("XW"))
            e.label("L_XWP")
            e("s_mov_b32 exec_hi, 0", f"buffer_load_dword v8, v9, {srd(WS)}, s{sX1L} offen sc1", "s_mov_b64 exec, -1", "s_branch L_XWS")
            e.label("L_XWC")
            e("s_mov_b32 exec_hi, 0", "v_cmp_eq_u32 vcc, -1, v8", "s_mov_b64 exec, -1", "s_cbranch_vccz L_XWD")
            spin_down(); e("s_branch L_XWP")
            stream_round("L_XWS", "L_XWP", "L_XWC", 1, "XW")
            e.label("L_XWD")
            setflag(4)
            e("s_branch L_XS1")
        elif SITE["X"][0] == 0:
            for _ in range(BF // 2): call_pump()
            e("s_branch L_XS1")
        e.label("L_XS0")
        if SITE["X"][0] == 0: e("s_waitcnt vmcnt(0)")
        e.label("L_XS1")
        xissue(); e("s_branch L_XS")
        e.label("L_XSC")
        check_max(range(24, 56), 57)
        e("s_cbranch_vccnz L_XS2")
        xprep()
        for i in range(1, 8):
            for r in range(2):
                e(f"v_pk_add_f32 {vr(60+2*r,2)}, {vr((24 if i == 1 else 60)+2*r,2)}, {vr(24+4*i+2*r,2)}")
        e.nop(2); e("s_branch L_XSUM")
        e.label("L_X0")
        e(f"s_mov_b32 s{sT+5}, s{sT}")
        for _ in range(BX // 2): call_pump()
        if opt.get("c28", 1): e(f"s_cmp_ge_u32 s{sC}, 28", "s_cbranch_scc1 L_NODR2")
        e(arm("X"), f"s_cmp_eq_u32 s{sT+5}, 0", "s_cbranch_scc1 L_XS0", f"s_cmp_eq_u32 s{sW}, 0", "s_cbranch_scc1 L_X0P")
        wqb_in()
        flag_wait("L_XFW", 4)
        e("s_branch L_NODR2")
        e.label("L_X0P")
        if XW2 and SITE["XP"][0]: e(f"v_mov_b32 v57, {FLAG}", "v_mov_b32 v58, 3", "ds_write_b32 v57, v58")
        e(f"v_lshlrev_b32 v47, 4, v{vL16}")
        probe("L_XPR", f"buffer_load_dword v46, v47, {srd(WS)}, s{sBK} offen sc1", "0x0fffffff", "L_X0F", "XP")
        e.label("L_X0F")
        e(f"v_mov_b32 v57, {FLAG}", "v_mov_b32 v58, 5", "ds_write_b32 v57, v58")
        wqb_in()
        e("s_branch L_NODR2")
    ool.append(xool)
    stream_round("L_XS", "L_XS1", "L_XSC", 8, "X")
    e("v_lshlrev_b32 v60, 16, v62", "v_and_b32 v61, 0xffff0000, v62", "v_pk_add_f32 v[58:59], v[58:59], v[60:61]",
      f"v_cvt_pk_bf16_f32 v{vXOLD}, v58, v59", f"v_min_u32 v57, -2, v{vXOLD}")
    publish(f"buffer_store_dword v57, v{vX1r}, {{r}}, s{sXO} offen {{fl}}")
    stamp(8)
    e(f"s_cmp_eq_u32 s{sLAY}, 3", "s_cbranch_scc1 L_END", f"s_cmp_eq_u32 s{sLAY}, 0", "s_cbranch_scc1 L_X0F", "s_branch L_NODR2")
    e.label("L_NOX")
    e(f"s_cmp_eq_u32 s{sA0}, 2", "s_cbranch_scc1 L_PRELOADB")
    e.label("L_PRELDB")
    e.label("L_NODR2")
    e(f"s_add_u32 s{SX}, s32, s{sBK}", f"s_addc_u32 s{SX+1}, s33, 0")
    e(f"s_add_u32 s{sQB}, s{sBK}, 0x2000", f"s_add_u32 s{sOB}, s{sBK}, 0x4000", f"s_add_u32 s{sST}, s{sBK}, 0xC000",
      f"s_add_u32 s{sX1}, s{sX1}, 0x38000", f"s_add_u32 s{sX1L}, s{sX1L}, 0x38000", f"s_add_u32 s{sLAY}, s{sLAY}, 1")
    collect()
    if debug: e(f"s_add_u32 s{sSTB}, s{sSTB}, 16")
    stamp(0)
    e(f"s_cmp_eq_u32 s{sLAY}, 2", "s_cbranch_scc1 L_QAP", f"s_cmp_eq_u32 s{sLAY}, 3", "s_cbranch_scc1 L_QBP")
    if not EB and not RW and not MB: pump_until(WQBM + 1, DS)
    e("s_branch L_QBP")
    e.label("L_END")
    if debug:
        e("s_mov_b64 exec, -1"); collect(); stamp(9); e("s_waitcnt vmcnt(0)")
        e(f"s_lshl_b32 s{sT}, s2, 2", f"s_add_u32 s{sT}, s{sT}, s{sW}", f"s_lshl_b32 s{sT}, s{sT}, 8", f"s_add_u32 s{sT}, s{sT}, {STAMPS}",
          f"v_lshrrev_b32 v8, 2, v{vL16}", f"v_add_u32 v8, s{sT}, v8", f"global_store_dword v8, v{vDBG}, s[32:33]")
    e.label("L_EXIT")
    e("s_endpgm")

    e.label("L_PUMP")
    e(f"s_cmp_ge_u32 s{sIT}, s{sSTOP}", "s_cbranch_scc1 L_PSPEC")
    e.label("L_PGEN")
    pair()
    e.label("L_PRET")
    e(f"s_setpc_b64 s[{sRET}:{sRET+1}]")

    i = 0
    while i < len(ool):
        ool[i](); i += 1

    for k in range(4):
        e.label(f"L_MOVEV{k}")
        for tau in range(4):
            for r0 in range(2):
                e(f"v_xor_b32 v{vPT}, {(tau << 5) | (r0 << 4) | ((k >> 1) << 16)}, v{vVRD}")
                for r in (r0, r0 + 2):
                    e(f"ds_read_b64_tr_b16 {vr(AV+32*k+8*tau+2*r,2)}, v{vPT} offset:{(k & 1)*32768 + (r & 1)*512 + (r >> 1)*2048}")
        e(f"s_setpc_b64 s[{sRET2}:{sRET2+1}]")

    def kmove(base, t):
        if opt.get("nokmove"): return
        e("s_waitcnt vmcnt(6)")
        for jj in range(4):
            e(f"v_xor_b32 v{vPT}, {(jj << 6) | ((t >> 1) << 16)}, v{vKRD}")
            e(f"ds_read_b128 {ar(base+32*t+4*jj,4)}, v{vPT} offset:{(t & 1)*32768}", f"ds_read_b128 {ar(base+32*t+16+4*jj,4)}, v{vPT} offset:{(t & 1)*32768+256}")
        e("s_waitcnt lgkmcnt(0)")
    def pst(l):
        if debug and opt.get("pstamps"):
            e("s_memrealtime s[96:97]", "s_waitcnt lgkmcnt(0)", f"v_writelane_b32 v{vDBG}, s96, {l}")
    def wone(ptr, isQ, d):
        e(f"s_mov_b32 s{sT+3}, s{KV}", f"s_mov_b32 s{sT+4}, s{KV+1}")
        wdma_addr(isQ, vPT); wdma_issue(ptr, isQ, vPT, [d])
        e(f"s_mov_b32 s{KV}, s{sT+3}", f"s_mov_b32 s{KV+1}, s{sT+4}", f"s_mov_b32 s{KV+2}, 0x20000")
    act = {}
    def at(k, f): act.setdefault(k, []).append(f)
    for t in range(4):
        at(14 + 8 * t, lambda t=t: kmove(0, t)); at(78 + 8 * t, lambda t=t: kmove(128, t))
    at(32, lambda: switch(12, False)); at(64, lambda: switch(20, True)); at(96, lambda: switch(22, False))
    at(WOA[3] + 8, lambda: (e("s_waitcnt vmcnt(6)"), wo_move(WoA, vPT)))
    def kv_save(): e(f"s_mov_b32 s{sT+3}, s{KV}", f"s_mov_b32 s{sT+4}, s{KV+1}")
    def kv_back(): e(f"s_mov_b32 s{KV}, s{sT+3}", f"s_mov_b32 s{KV+1}, s{sT+4}", f"s_mov_b32 s{KV+2}, 0x20000")
    def row0():
        e(f"s_lshl_b32 s{sT}, s{sC}, 2", f"s_add_u32 s{sT}, s{sT}, s{sW}", f"s_lshl_b32 s{sT}, s{sT}, 2")
    def brow(d):
        kv_save(); row0()
        e(f"s_add_u32 s{sT}, s{sT}, {d}", f"s_lshl_b32 s{sT}, s{sT}, 13", f"s_lshl_b32 s{sT+1}, s{sJ}, 10", f"s_add_u32 s{sT}, s{sT}, s{sT+1}", f"s_lshl_b32 s{sT+1}, s{sW}, 12",
          f"s_add_u32 m0, s{sT+1}, {STG+1024*d}", f"s_mov_b32 s{KV}, s24", f"s_mov_b32 s{KV+1}, s25", f"s_mov_b32 s{KV+2}, 3670016",
          f"buffer_load_dwordx4 v{vL16}, {srd(KV)}, s{sT} offen {WFL} lds")
        kv_back()
    def bstore():
        e("s_waitcnt vmcnt(6)", f"s_cmp_ge_u32 s{sC}, 28", "s_cbranch_scc1 L_BSTX")
        e(f"v_bfe_u32 v{vPT}, v{vL16}, 5, 2", f"v_lshlrev_b32 v{vPT}, 10, v{vPT}", f"v_and_or_b32 v{vPT}, v{vL16}, 16, v{vPT}", f"v_lshrrev_b32 v{WqB}, 7, v{vL16}",
          f"v_lshl_add_u32 v{vPT}, v{WqB}, 5, v{vPT}", f"s_lshl_b32 s{sT}, s{sW}, 12", f"s_add_u32 s{sT}, s{sT}, {STG}", f"v_add_u32 v{vPT}, s{sT}, v{vPT}")
        for k in range(4): e(f"ds_read_b128 {ar(200+4*k,4)}, v{vPT} offset:{256*k}")
        kv_save()
        e(f"s_lshl_b32 s{sT}, s{sJ}, 19", f"s_add_u32 s{sT}, s{sT}, {WX}", f"s_add_u32 s{KV}, s32, s{sT}", f"s_addc_u32 s{KV+1}, s33, 0", f"s_mov_b32 s{KV+2}, 0x80000",
          f"v_lshlrev_b32 v{WqB}, 14, v{WqB}", f"v_and_b32 v{vPT}, 0x70, v{vL16}", f"v_add_u32 v{vPT}, v{vPT}, v{WqB}")
        row0()
        e(f"s_lshl_b32 s{sT}, s{sT}, 5", "s_waitcnt lgkmcnt(0)")
        for k in range(4):
            e(f"buffer_store_dwordx4 {ar(200+4*k,4)}, v{vPT}, {srd(KV)}, s{sT} offen {opt.get('bsf', 'sc1')}", f"s_add_u32 s{sT}, s{sT}, 0x20000")
        kv_back()
        e.label("L_BSTX")
    if RW:
        for d in range(4): at(26 + 2 * d, lambda d=d: brow(d))
        at(40, bstore)
    def only(lo, f):
        l_ = L("on")
        e(f"s_cmp_ge_u32 s{sC}, 28", f"s_cbranch_scc{1 if lo else 0} {l_}"); f(); e.label(l_)
    if SPLITB:
        at(WQBM, lambda: only(True, lambda: (e("s_waitcnt vmcnt(6)"), wq_move(WqB, vPT))))
        for d in range(4):
            at(WQB[d], lambda d=d: only(True, lambda: wone(24, True, d))); at(WQH[d], lambda d=d: only(False, lambda: wone(24, True, d)))
        at(WQH[3] + 8, lambda: only(False, lambda: (e("s_waitcnt vmcnt(6)"), wq_move(WqB, vPT))))
    elif not EB and not RW: at(WQBM, lambda: (e("s_waitcnt vmcnt(6)"), wq_move(WqB, vPT)))
    for i, k in enumerate(WQA): at(k, lambda d=W0 + i: wone(14, True, d))
    for d in range(4):
        at(WOA[d], lambda d=d: wone(16, False, d)); (at(WQB[d], lambda d=d: wone(24, True, d)) if WQB and not SPLITB else None); at(WOB[d], lambda d=d: wone(26, False, d))
    specials = sorted(act)
    wq_items = set(WQA) | set(WQB)
    XW = opt.get("xw", 1)
    PST = {14: 10, 32: 11, 42: 12, 40: 12, 64: 13, 78: 14, 96: 26, 102: 27}
    e.label("L_PSPEC")
    e(f"s_cmp_ge_u32 s{sIT}, s{sLIM}", "s_cbranch_scc1 L_PRET")
    half = len(specials) // 2
    e(f"s_cmp_ge_u32 s{sIT}, {specials[half]}", "s_cbranch_scc1 L_PSPEC2")
    for k in specials[:half]:
        e(f"s_cmp_eq_u32 s{sIT}, {k}", f"s_cbranch_scc1 L_SP{k}")
    e.label("L_PSPEC2")
    for k in specials[half:-1]:
        e(f"s_cmp_eq_u32 s{sIT}, {k}", f"s_cbranch_scc1 L_SP{k}")
    for k in [specials[-1]] + specials[:-1]:
        e.label(f"L_SP{k}")
        if k in PST: pst(PST[k])
        for f in act[k]: f()
        nxt = specials[specials.index(k) + 1] if k != specials[-1] else 999
        e(f"s_mov_b32 s{sNSP}, {nxt}", f"s_min_u32 s{sSTOP}, s{sNSP}, s{sLIM}")
        if k in wq_items and XW:
            for x in range(XW):
                if x: e(f"s_cmp_ge_u32 s{sIT}, s{sSTOP}", "s_cbranch_scc1 L_PRET")
                pair()
            e("s_branch L_PUMP")
        else:
            e("s_branch L_PGEN")
    e.raw('.section .rodata,"a"'); e.raw(".p2align 6"); e.raw(f".amdhsa_kernel {KNAME}")
    for l in (".amdhsa_next_free_vgpr 512", ".amdhsa_next_free_sgpr 102", ".amdhsa_accum_offset 256", ".amdhsa_group_segment_fixed_size 0",
              ".amdhsa_kernarg_size 104", ".amdhsa_user_sgpr_count 2", ".amdhsa_user_sgpr_kernarg_segment_ptr 1", ".amdhsa_system_sgpr_workgroup_id_x 1",
              ".amdhsa_float_denorm_mode_32 3"):
        e.raw("  " + l)
    e.raw(".end_amdhsa_kernel")
    return e.text()

if __name__ == "__main__":
    dbg = "--debug" in sys.argv
    out = [a for a in sys.argv[1:] if not a.startswith("--")]
    txt = gen(dbg)
    open(out[0] if out else "k.s", "w").write(txt)
```

```python
import sys, struct
sys.path.insert(0, "gen")
from asmlib import Asm

KNAME = "interleave_layers__sliding_block_cached__sliding_block_cached__decode_kernel"
HEADER = open("interleave_layers__sliding_block_cached__sliding_block_cached__decode.s.ref").read().split("; Override launch")[0]

def f2u(x): return struct.unpack("<I", struct.pack("<f", x))[0]

STG = 131072
SCR = 147456
PA = SCR
SL = SCR + 4096
FLAG = SCR + 4160
RED = SCR + 4608
RS = 2048 + 64
QB0 = 0x0
BLK = 0x10000
BSZ = 0xD000
X1 = BLK + 32 * BSZ
GFL = X1 + 4 * 0x38000
WSEND = GFL + 1024
HINT = 0xC800
STAMPS = 0x300000
WX = 0x400000
assert WSEND <= STAMPS
sJ, sC = 34, 35
KV, SF, WS, SX, SS = 36, 40, 44, 48, 4
sW, sSL, sRM, sIT, sLIM = 52, 53, 54, 55, 56
sSTOP, sNSP = 57, 59
sRET, sRET2 = 60, 62
sY, sCNT = 64, 65
sLAY, sSPIN = 66, 68
sQB, sOB, sOB2, sST, sX1, sBK = 69, 70, 71, 72, 73, 74
sA0, sA1 = 75, 76
sT = 77
sMI8, sMQ = 86, 88
sB, sS, sOH, sNQ, sEXP = 90, 91, 92, 93, 94
sX1L = 95
sSTB = 98
sODD = 8
sLIMX = 58
sXO = 67
vL16, vXOLD, vDBG, vB, vKRD, vPT, vVRD, vIDX = 0, 1, 2, 3, 4, 5, 6, 7
WqA, WoA, WqB = 64, 80, 96
vX0, vX1r, vRW, aD, aCS, aDG, aGS, vQST, vQLD, vPW, vOST, vOLD, vSLD, aOR, vX1ST, vSEL = range(112, 128)
AV = 128

def srd(r): return f"s[{r}:{r+3}]"
def vr(a, n): return f"v[{a}:{a+n-1}]"
def ar(a, n): return f"a[{a}:{a+n-1}]"
DPP = "row_mask:0xf bank_mask:0xf"

def gen(debug=False, opt=None):
    opt = opt or {}
    KFL = opt.get("kvflag", "nt"); WFL = opt.get("wflag", "nt")
    DS = opt.get("ds", 6)
    DP = opt.get("dp", 4)
    PRE = opt.get("pre", 4)
    XPRE = opt.get("xpre", 8)
    ROLL = opt.get("roll", 1)
    W0 = opt.get("w0", 4)
    WQA = opt.get("wqa", [])
    WQB = opt.get("wqb", [66, 70, 74, 78])
    EB = opt.get("eb", 0)
    if EB: WQB = []
    SPEC0 = min(WQA + [14])
    LIM0 = 26
    HG = opt.get("hg", 0)
    HQ = opt.get("hq", 0)
    QROT = opt.get("qrot", 16)
    RW = opt.get("rw", 0)
    WOA = [44, 48, 52, 56] if RW else [26, 34, 42, 50]
    WOB = [112, 116, 120, 124] if RW else [90, 98, 106, 114]
    if RW: WQB = []
    MB = opt.get("mb", 1)
    if MB:
        WQB = opt.get("wqb", [26, 30, 34, 38]); WOA = [WQB[3] + 10 + 2 * d for d in range(4)]
    WQBM = WQB[3] + 8 if WQB else 0
    SPLITB = opt.get("splitb", 1) and MB
    WQH = opt.get("wqh", [66, 68, 70, 72])
    e = Asm()
    uid = [0]
    def L(p):
        uid[0] += 1; return f"L_{p}_{uid[0]}"
    ool = []
    SP = [0, 18, 84, 96, 100]
    sset = opt.get("stamps", [])
    clk = opt.get("clk", "s_memrealtime")
    def stamp(i):
        if not debug: return
        if i in (15, 9):
            e("s_memrealtime s[96:97]", f"s_add_u32 m0, s{sSTB}, {i}", "s_waitcnt lgkmcnt(0)", f"v_writelane_b32 v{vDBG}, s96, m0")
        elif i in sset:
            p = SP[sset.index(i)]
            e(f"{clk} s[{p}:{p+1}]")
    def collect():
        if not debug or not sset: return
        e("s_waitcnt lgkmcnt(0)")
        for n_, i in enumerate(sset):
            e(f"s_add_u32 m0, s{sSTB}, {i if i < 15 else i - 10}", "s_nop 0", f"v_writelane_b32 v{vDBG}, s{SP[n_]}, m0", f"s_mov_b32 s{SP[n_]}, 0")
    def pair():
        e(f"s_lshr_b32 s{sY}, s{sRM}, 7", f"s_mov_b32 m0, s{sRM}", f"s_and_b32 s{sY}, s{sY}, 0xc0", f"v_xor_b32 v{vPT}, s{sY}, v{vB}",
          f"buffer_load_dwordx4 v{vPT}, {srd(KV)}, m0 offen {KFL} lds", f"s_add_u32 m0, s{sRM}, 4096", f"v_xor_b32 v{vPT}, 32, v{vPT}", f"s_add_u32 s{sRM}, s{sRM}, 8192",
          f"buffer_load_dwordx4 v{vPT}, {srd(KV)}, m0 offen {KFL} lds", f"s_add_u32 s{sIT}, s{sIT}, 2")
    def pst0(l):
        if debug and opt.get("start"):
            e("s_memrealtime s[96:97]", "s_waitcnt lgkmcnt(0)", f"v_writelane_b32 v{vDBG}, s96, {l}")
    def spin_down(): e(f"s_sub_u32 s{sSPIN}, s{sSPIN}, 1", "s_cbranch_scc1 L_END")
    def call_pump():
        e(f"s_call_b64 s[{sRET}:{sRET+1}], L_PUMP")
    def pump_until(n, D):
        a, b = L("pu"), L("pud")
        e.label(a)
        e(f"s_cmp_ge_u32 s{sIT}, {n}", f"s_cbranch_scc1 {b}", f"s_waitcnt vmcnt({D-2})")
        call_pump()
        e(f"s_branch {a}")
        e.label(b)
    def landed(m, D):
        pump_until(m + D, D); e(f"s_waitcnt vmcnt({D})")
    XW2 = opt.get("xw2", 0); OROLL = opt.get("oroll", 0)
    XR = opt.get("xr", 0); WBE = opt.get("wbend", 0)
    D3 = opt.get("d3", 12); P1 = opt.get("p1", 4)
    DC = opt.get("dc", 6)
    DO = opt.get("do", 6); BX = opt.get("bx", 0); BF = opt.get("bf", 2); D2 = opt.get("d2", 10)
    POST = opt.get("post", 1)
    IPR = opt.get("ipr", 2)
    NR = opt.get("nr", 3)
    SITE = dict(QA=(IPR, NR), Q=(IPR, NR), A=(IPR, NR), OP=(IPR, NR), X=(IPR, NR), XP=(IPR, NR), XW=(IPR, NR), AP=(2, 4), OR=(4, 2), AB=(IPR, NR))
    SITE.update({k: tuple(v) for k, v in opt.get("site", {}).items()})
    def stream_round(a, again, chk, P, site):
        ipr, nr = SITE[site]
        def f():
            e.label(a)
            if ipr == 0:
                e("s_waitcnt vmcnt(0)", f"s_branch {chk}"); return
            for _ in range(ipr // 2):
                e(f"s_waitcnt vmcnt({ipr*nr-2+nr*P})"); call_pump()
            e(f"s_waitcnt vmcnt({(nr-1)*(P+ipr)+ipr})", f"s_cmp_lt_u32 s{sIT}, s{sLIM}", f"s_cbranch_scc1 {a}_w", "s_waitcnt vmcnt(0)", f"s_branch {chk}")
            e.label(a + "_w")
            e(f"s_sub_u32 s{sCNT}, s{sCNT}, 1", f"s_cbranch_scc0 {again}", f"s_mov_b32 s{sCNT}, 0", f"s_branch {chk}")
        ool.append(f)
    def arm(site): return f"s_mov_b32 s{sCNT}, {SITE[site][1]-1}"
    def probe(name, load, lanes, done, site, data=46):
        e(arm(site))
        e.label(name)
        e(f"s_mov_b32 exec_lo, {lanes}", "s_mov_b32 exec_hi, 0", load, "s_mov_b64 exec, -1", f"s_branch {name}S")
        e.label(name + "C")
        e(f"s_mov_b32 exec_lo, {lanes}", "s_mov_b32 exec_hi, 0", f"v_cmp_eq_u32 vcc, -1, v{data}", "s_mov_b64 exec, -1", f"s_cbranch_vccz {done}")
        spin_down(); e(f"s_branch {name}")
        stream_round(name + "S", name, name + "C", 1, site)
    def flag_wait(name, val):
        e(f"v_mov_b32 v47, {FLAG}")
        e.label(name)
        if XW2:
            e("ds_read_b32 v46, v47")
            spin_down()
            e("s_waitcnt lgkmcnt(0)", f"v_readfirstlane_b32 s{sT}, v46", f"s_cmp_ge_u32 s{sT}, 5", f"s_cbranch_scc1 {name}x", f"s_cmp_lg_u32 s{sT}, 3", f"s_cbranch_scc1 {name}")
            e(f"s_waitcnt vmcnt({DC-2})"); call_pump(); e(f"s_branch {name}")
            e.label(name + "x")
            return
        if DC:
            e(f"s_waitcnt vmcnt({DC-2})"); call_pump()
        e("ds_read_b32 v46, v47")
        spin_down()
        e("s_waitcnt lgkmcnt(0)", f"v_readfirstlane_b32 s{sT}, v46", f"s_cmp_lt_u32 s{sT}, {val}", f"s_cbranch_scc1 {name}")
    def drain_stream(D=None, P=8):
        D = D or DS
        b_ = L("dr")
        for _ in range(D // 2):
            e(f"s_waitcnt vmcnt({D-2+P})"); call_pump()
        e(f"s_waitcnt vmcnt({D})", f"s_cmp_lt_u32 s{sIT}, s{sLIM}", f"s_cbranch_scc1 {b_}", "s_waitcnt vmcnt(0)")
        e.label(b_)
    def poll(name, issue, P, check, first, filler, gate, undo=None, special=None, cond=f"s_cmp_lt_u32 s{sLAY}, 2", light=None):
        e.label(f"L_{name}P")
        e(cond, f"s_cbranch_scc1 L_{name}S0")
        gate()
        issue()
        filler()
        e.label(f"L_{name}R")
        if ROLL:
            issue(); e(f"s_waitcnt vmcnt({P})")
        else:
            e("s_waitcnt vmcnt(0)")
        e.label(f"L_{name}C")
        check()
        first()
        e(f"s_cbranch_vccnz L_{name}F")
        e.label(f"L_{name}OK")
        def f():
            e.label(f"L_{name}F")
            if special: special()
            if undo: undo()
            spin_down()
            e(cond)
            if ROLL:
                e(f"s_cbranch_scc0 L_{name}R", f"s_branch L_{name}S1")
            else:
                e(f"s_cbranch_scc1 L_{name}S1"); issue(); e(f"s_branch L_{name}R")
            e.label(f"L_{name}S0")
            e(arm(name if name in SITE else name[0]))
            filler()
            if light:
                e(f"s_branch L_{name}S1")
                e.label(f"L_{name}LC")
                e(f"s_mov_b32 exec_lo, {light[0]}", f"s_mov_b32 exec_hi, {light[0]}"); check(); e("s_mov_b64 exec, -1", f"s_cbranch_vccnz L_{name}LF")
                light[1](); first(); e(f"s_branch L_{name}OK")
                e.label(f"L_{name}LF")
                spin_down()
            e.label(f"L_{name}S1")
            if light: e(f"s_mov_b32 exec_lo, {light[0]}", f"s_mov_b32 exec_hi, {light[0]}")
            issue()
            if light: e("s_mov_b64 exec, -1")
        ool.append(f)
        stream_round(f"L_{name}S", f"L_{name}S1", f"L_{name}LC" if light else f"L_{name}C", P, name if name in SITE else name[0])
    def pre_issue(n=None):
        n = PRE if n is None else n
        if n == 0: return
        a, b = L("pn"), L("pnd")
        e(f"s_cmp_lt_u32 s{sIT}, s{sLIM}", f"s_cbranch_scc1 {a}")
        e.label(b)
        def f():
            e.label(a)
            for _ in range(n // 2): call_pump()
            e(f"s_branch {b}")
        ool.append(f)
    def publish(fmt, pre=None):
        if pre: e(pre)
        e(fmt.format(r=srd(SF), fl=""), fmt.format(r=srd(SS), fl="sc1"))
    def check_max(rs, t):
        rs = list(rs)
        e(f"v_max3_u32 v{t}, v{rs[0]}, v{rs[1]}, v{rs[2]}")
        rest = rs[3:]
        while len(rest) >= 2:
            e(f"v_max3_u32 v{t}, v{t}, v{rest[0]}, v{rest[1]}"); rest = rest[2:]
        if rest: e(f"v_max_u32 v{t}, v{t}, v{rest[0]}")
        e(f"v_cmp_eq_u32 vcc, -1, v{t}")
    def switch(ptr, isK):
        e(f"s_add_u32 s{KV}, s{ptr}, s{sSL}", f"s_addc_u32 s{KV+1}, s{ptr+1}, 0", f"s_mov_b32 s{KV+2}, 0x20000", f"s_lshl_b32 s{sRM}, s{sW}, 10")
        e(f"v_lshrrev_b32 v{vPT}, 5, v{vL16}", f"v_and_b32 v{vPT}, 16, v{vPT}", f"v_xor_b32 v{vB}, v{vPT}, v{vL16}")
    def wdma_addr(isQ, t0):
        if isQ:
            e(f"v_lshrrev_b32 v{t0}, 5, v{vL16}", f"v_lshlrev_b32 v{t0}, 13, v{t0}", f"v_and_or_b32 v{t0}, v{vL16}, 16, v{t0}",
              f"s_lshl_b32 s{sT}, s{sW}, 20", f"s_lshl_b32 s{sT+1}, s{sJ}, 10", f"s_add_u32 s{sT}, s{sT}, s{sT+1}", f"s_xor_b32 s{sT+1}, s{sC}, {QROT}", f"s_lshl_b32 s{sT+1}, s{sT+1}, 5", f"s_add_u32 s{sT}, s{sT}, s{sT+1}")
        else:
            e(f"v_lshrrev_b32 v{t0}, 6, v{vL16}", f"v_mul_u32_u24 v{t0}, 896, v{t0}", f"v_and_or_b32 v{t0}, v{vL16}, 48, v{t0}",
              f"s_lshl_b32 s{sT}, s{sJ}, 9", f"s_lshl_b32 s{sT+1}, s{sOH}, 8", f"s_add_u32 s{sT}, s{sT}, s{sT+1}", f"s_lshl_b32 s{sT+1}, s{sW}, 6", f"s_add_u32 s{sT}, s{sT}, s{sT+1}",
              f"s_mul_i32 s{sT}, s{sT}, 896", f"s_lshl_b32 s{sT+1}, s{sNQ}, 6", f"s_add_u32 s{sT}, s{sT}, s{sT+1}",
              f"s_cmp_ge_u32 s{sC}, 28", f"s_cselect_b32 s{sT}, 0x40000000, s{sT}")
        e(f"s_lshl_b32 s{sT+1}, s{sW}, 12", f"s_add_u32 s{sT+1}, s{sT+1}, {STG}")
    def wdma_issue(ptr, isQ, t0, ds):
        step = 262144 if isQ else 14336
        e(f"s_mov_b32 s{KV}, s{ptr}", f"s_mov_b32 s{KV+1}, s{ptr+1}", f"s_mov_b32 s{KV+2}, {0 if (opt.get('now') or (opt.get('nowqb') and ptr == 24)) else 3670016}")
        for d in ds:
            e(f"s_add_u32 m0, s{sT+1}, {1024*d}", f"s_add_u32 s{sT+2}, s{sT}, {step*d}")
            e(f"buffer_load_dwordx4 v{t0}, {srd(KV)}, s{sT+2} offen {WFL} lds")
    def wq_move(dst, t, stg=STG):
        e(f"v_lshrrev_b32 v{t}, 8, v{vL16}", f"v_lshlrev_b32 v{t}, 8, v{t}", f"v_bfe_u32 v{dst}, v{vL16}, 4, 4", f"v_lshl_add_u32 v{t}, v{dst}, 3, v{t}",
          f"s_lshl_b32 s{sT}, s{sW}, 12", f"s_add_u32 s{sT}, s{sT}, {stg}", f"v_add_u32 v{t}, s{sT}, v{t}")
        for d in range(4):
            for hh in range(2):
                e(f"ds_read_b64_tr_b16 {vr(dst+4*d+2*hh,2)}, v{t} offset:{d*1024+hh*128}")
        e("s_waitcnt lgkmcnt(0)")
    def wo_move(dst, t):
        e(f"v_lshrrev_b32 v{t}, 8, v{vL16}", f"v_lshlrev_b32 v{t}, 3, v{t}", f"v_bfe_u32 v{dst}, v{vL16}, 6, 2", f"v_add_u32 v{t}, v{t}, v{dst}", f"v_lshlrev_b32 v{t}, 6, v{t}",
          f"v_bfe_u32 v{dst}, v{vL16}, 4, 2", f"v_lshl_add_u32 v{t}, v{dst}, 3, v{t}",
          f"s_lshl_b32 s{sT}, s{sW}, 12", f"s_add_u32 s{sT}, s{sT}, {STG}", f"v_add_u32 v{t}, s{sT}, v{t}")
        for ks in range(2):
            for nt in range(2):
                for hh in range(2):
                    e(f"ds_read_b64_tr_b16 {vr(dst+8*ks+4*nt+2*hh,2)}, v{t} offset:{ks*2048+hh*256+nt*32}")
        e("s_waitcnt lgkmcnt(0)")
    def x2_voff(d, t):
        e(f"v_bfe_u32 v{d}, v{vL16}, 6, 3", f"v_mul_u32_u24 v{d}, 896, v{d}", f"v_bfe_u32 v{t}, v{vL16}, 4, 2", f"v_lshl_add_u32 v{d}, v{t}, 3, v{d}",
          f"v_lshrrev_b32 v{t}, 9, v{vL16}", f"v_lshl_add_u32 v{d}, v{t}, 2, v{d}", f"s_lshl_b32 s{sT}, s{sC}, 5", f"v_add_u32 v{d}, s{sT}, v{d}")
    def q_prep():
        e(f"s_not_b64 exec, s[{sMI8}:{sMI8+1}]")
        for i in range(16): e(f"v_mov_b32 v{8+i}, 0x3f803f80")
        e("s_mov_b64 exec, -1")

    e.raw(HEADER.rstrip())
    e.raw("; @launch grid=(256,1,1) block=(256,1,1) lds=163840")
    e.raw('.amdgcn_target "amdgcn-amd-amdhsa--gfx950"')
    e.raw(".text"); e.raw(f".globl {KNAME}"); e.raw(".p2align 8"); e.raw(f".type {KNAME},@function")
    e.label(KNAME)
    if debug and opt.get("start"): e("s_memrealtime s[100:101]")
    e("s_cmp_ge_u32 s2, 256", "s_cbranch_scc1 L_EXIT")
    e("s_load_dwordx16 s[8:23], s[0:1], 0", "s_load_dwordx8 s[24:31], s[0:1], 64", "s_load_dwordx2 s[32:33], s[0:1], 96")
    e("s_getpc_b64 s[80:81]")
    if debug:
        e(f"v_mov_b32 v{vDBG}, 0", f"s_mov_b32 s{sSTB}, 0")
        if not opt.get("start"): stamp(15)
    e("v_lshrrev_b32 v8, 6, v0", "v_and_b32 v9, 63, v0", "v_lshlrev_b32 v30, 4, v0")
    e(f"s_and_b32 s{sJ}, s2, 7", f"s_lshr_b32 s{sC}, s2, 3")
    e(f"v_readfirstlane_b32 s{sW}, v8")
    e(f"v_lshlrev_b32 v{vL16}, 4, v9")
    for i_ in range(opt.get("codepf", 5)):
        if i_: e(f"v_add_u32 v11, {4096*i_}, v30")
        e(f"global_load_dwordx4 a[{200+4*i_}:{203+4*i_}], v{11 if i_ else 30}, s[80:81]")
    e(f"s_and_b32 s{sB}, s{sC}, 7", f"s_lshr_b32 s{sS}, s{sC}, 3")
    e(f"s_lshl_b32 s{sSL}, s{sB}, 3", f"s_add_u32 s{sSL}, s{sSL}, s{sJ}", f"s_lshl_b32 s{sSL}, s{sSL}, 21",
      f"s_lshl_b32 s{sT}, s{sS}, 17", f"s_add_u32 s{sSL}, s{sSL}, s{sT}", f"s_add_u32 s{sSL}, s{sSL}, 0x180000")
    e(f"s_mov_b32 s{KV+3}, 0x20000")
    wdma_addr(True, 12)
    e(f"v_lshrrev_b32 v{vPT}, 5, v{vL16}", f"v_and_b32 v{vPT}, 16, v{vPT}", f"v_xor_b32 v{vB}, v{vPT}, v{vL16}",
      f"s_lshl_b32 s{sRM}, s{sW}, 10")
    for i in range(4): e(f"v_mov_b32 v{24+i}, -1")
    e(f"s_lshl_b32 s{sA0}, s2, 12", f"s_add_u32 s{sA0}, s{sA0}, {BLK}", f"s_add_u32 s{sA1}, s{sA0}, 0x100000", f"s_add_u32 s{sCNT}, s{sA0}, 0x200000",
      f"s_mov_b32 s{WS+2}, {WSEND}", f"s_mov_b32 s{WS+3}, 0x20000")
    e("v_bfe_u32 v13, v9, 2, 3", "v_lshrrev_b32 v14, 5, v9", f"v_lshl_add_u32 v14, v8, 1, v14",
      f"s_and_b32 s{sY}, s{sC}, 16", f"s_xor_b32 s{sY}, s{sY}, {QROT}", f"s_and_b32 s{sIT}, s{sC}, 15", f"s_lshl_b32 s{sIT}, s{sIT}, 6", f"s_add_u32 s{sY}, s{sY}, s{sIT}",
      "v_lshlrev_b32 v15, 10, v14", "v_and_b32 v16, 1, v13", "v_lshl_add_u32 v15, v16, 5, v15", "v_lshrrev_b32 v16, 1, v13", "v_lshl_add_u32 v15, v16, 2, v15", f"v_add_u32 v{vQST}, s{sY}, v15",
      f"s_lshl_b32 s{sQB}, s{sJ}, 13")
    e("s_waitcnt lgkmcnt(0)")
    pst0(43)
    if debug and opt.get("start"): e(f"v_writelane_b32 v{vDBG}, s100, 15")
    LATE = 0
    NK0 = opt.get("nk0", 8)
    KA = opt.get("ka", 2)
    def k_first(q0, q1):
        e(f"s_add_u32 s{KV}, s10, s{sSL}", f"s_addc_u32 s{KV+1}, s11, 0", f"s_mov_b32 s{KV+2}, 0x20000")
        for q in range(q0, q1):
            e(f"s_mov_b32 m0, s{sRM}", f"s_add_u32 s{sRM}, s{sRM}, 4096")
            if q & 7: e(f"v_xor_b32 v{vPT}, {(q & 7) << 5}, v{vB}")
            e(f"buffer_load_dwordx4 v{vPT if q & 7 else vB}, {srd(KV)}, m0 offen {KFL} lds")
            if q == 0: pst0(46)
    def clears():
        e(f"s_mov_b32 s{WS}, s32", f"s_mov_b32 s{WS+1}, s33")
        if not opt.get("noclear"):
            for r in (sA0, sA1, sCNT): e(f"buffer_store_dwordx4 v[24:27], v30, {srd(WS)}, s{r} offen sc1")
        e(f"buffer_store_dword v24, v{vQST}, {srd(WS)}, s{sQB} offen sc1")
    def pages():
        e(f"v_mov_b32 v13, s{sSL}", "v_mov_b32 v14, 0", "v_mov_b32 v15, 0x300000", "s_mov_b64 exec, 1")
        for p_ in (12, 20, 22): e(f"global_load_dword a199, v13, s[{p_}:{p_+1}] nt")
        if opt.get("tlb") == 2:
            for p_ in (16, 24, 26): e(f"global_load_dword a199, v14, s[{p_}:{p_+1}] nt", f"global_load_dword a199, v15, s[{p_}:{p_+1}] nt")
        e("s_mov_b64 exec, -1")
    ORD = opt.get("ord", "cwk")
    for ch in ORD:
        if ch == "k": k_first(0, KA)
        if ch == "w": wdma_issue(14, True, 12, range(W0))
        if ch == "c": clears()
        if ch == "t": pages()
    pst0(44)
    if debug:
        for p in SP: e(f"s_mov_b32 s{p}, 0")
    e(f"s_mov_b32 s{sIT}, {NK0}", f"s_mov_b32 s{sLIM}, {LIM0}", f"s_mov_b32 s{sNSP}, {SPEC0}", f"s_mov_b32 s{sSTOP}, {SPEC0}", f"s_mov_b32 s{sLIMX}, {WOB[0] if RW else 128}")
    for r, n in ((SF, 0), (SS, WSEND)):
        e(f"s_mov_b32 s{r}, s32", f"s_mov_b32 s{r+1}, s33", f"s_mov_b32 s{r+2}, {n}", f"s_mov_b32 s{r+3}, 0x20000")
    e(f"s_mov_b32 s{SX}, s8", f"s_mov_b32 s{SX+1}, s9", f"s_mov_b32 s{SX+2}, 7168", f"s_mov_b32 s{SX+3}, 0x20000")
    x2_voff(28, 29)
    e(f"buffer_load_dword v{vXOLD}, v28, {srd(SX)}, 0 offen")
    e(f"s_cmp_ge_u32 s{sC}, 14", f"s_cselect_b32 s{sOH}, 1, 0", f"s_mul_i32 s{sT}, s{sOH}, 14", f"s_sub_u32 s{sNQ}, s{sC}, s{sT}")
    e("v_and_b32 v10, 15, v9", "v_lshrrev_b32 v11, 4, v9")
    e(f"s_lshl_b32 s{sT}, s{sW}, 10")
    e("v_mul_u32_u24 v12, 896, v10", "v_lshl_add_u32 v12, v11, 4, v12", f"s_lshl_b32 s{sT+1}, s{sW}, 8", f"v_add_u32 v12, s{sT+1}, v12")
    e(f"s_cmp_eq_u32 s{sW}, 3", f"s_cselect_b32 s{sT+1}, 0x40000000, 0", f"v_add_u32 v13, s{sT+1}, v12")
    e("s_mov_b32 exec_lo, 0x00ff00ff", "s_mov_b32 exec_hi, 0x00ff00ff")
    for d in range(4): e(f"buffer_load_dwordx4 {vr(40+4*d,4)}, v{12 if d < 2 else 13}, {srd(SX)}, 0 offen offset:{64*d}")
    e("s_mov_b64 exec, -1")
    e("v_lshlrev_b32 v12, 4, v10", "v_lshl_add_u32 v12, v11, 7, v12", f"s_lshl_b32 s{sT+1}, s{sW}, 11", f"v_add_u32 v{vX0}, s{sT+1}, v12")
    e("v_lshrrev_b32 v12, 1, v10", "v_lshlrev_b32 v12, 12, v12", "v_and_b32 v13, 1, v10", "v_lshl_add_u32 v12, v13, 9, v12",
      "v_xor_b32 v14, v11, v10", "v_lshl_add_u32 v12, v14, 4, v12", f"v_add_u32 v{vKRD}, s{sT}, v12")
    e(f"s_mul_i32 s{sT+1}, s{sW}, {RS}", f"s_add_u32 s{sT+1}, s{sT+1}, {RED}", "v_lshlrev_b32 v12, 2, v9", f"v_add_u32 v{vRW}, s{sT+1}, v12")
    e("v_and_b32 v12, 3, v9", f"v_mul_u32_u24 v12, {RS}, v12", f"v_add_u32 v12, {RED}, v12",
      "v_bfe_u32 v13, v9, 2, 3", "v_lshrrev_b32 v14, 5, v9", f"s_lshl_b32 s{sT+1}, s{sW}, 1", f"v_add_u32 v14, s{sT+1}, v14")
    e("v_lshrrev_b32 v15, 2, v14", "v_lshlrev_b32 v15, 6, v15", "v_and_b32 v16, 3, v14", "v_lshl_add_u32 v15, v16, 8, v15", "v_add_u32 v15, v15, v12")
    e(f"v_lshl_add_u32 v{aD}, v13, 3, v15")
    e(f"v_lshl_add_u32 v{aCS}, v13, 3, v12")
    e(f"v_lshl_add_u32 v{aDG}, v14, 2, v15")
    e(f"v_lshl_add_u32 v{aGS}, v14, 2, v12")
    e(f"s_mov_b32 s{sMI8}, 0x00ff00ff", f"s_mov_b32 s{sMI8+1}, 0x00ff00ff", f"s_mov_b32 s{sMQ}, 0x11111111", f"s_mov_b32 s{sMQ+1}, 0x11111111")
    e(f"s_mov_b32 s{sLAY}, 0", f"s_mov_b32 s{sSPIN}, 300000")
    e(f"s_mul_i32 s{sBK}, s{sJ}, {BSZ}", f"s_add_u32 s{sBK}, s{sBK}, {BLK}", f"s_add_u32 s{sOB}, s{sBK}, 0x4000",
      f"s_add_u32 s{sST}, s{sBK}, 0xC000", f"s_mov_b32 s{sX1}, {X1}", f"s_lshl_b32 s{sX1L}, s{sC}, 13", f"s_add_u32 s{sX1L}, s{sX1L}, {X1}")
    e("v_lshrrev_b32 v12, 2, v10", "v_and_b32 v13, 3, v9", "v_and_b32 v14, 1, v11", "v_lshrrev_b32 v17, 1, v11")
    e("v_lshlrev_b32 v18, 5, v14", "v_lshl_add_u32 v18, v12, 3, v18", "v_lshl_add_u32 v18, v17, 1, v18")
    e("v_lshlrev_b32 v19, 3, v14", "v_lshl_add_u32 v19, v12, 1, v19")
    e(f"s_lshl_b32 s{sT}, s{sW}, 3", "v_lshrrev_b32 v20, 1, v13", f"v_add_u32 v20, s{sT}, v20", "v_xor_b32 v20, v20, v19",
      "v_lshlrev_b32 v18, 9, v18", "v_lshl_add_u32 v18, v20, 4, v18", "v_and_b32 v20, 1, v13", f"v_lshl_add_u32 v{vVRD}, v20, 3, v18")
    e("v_and_b32 v14, 1, v9", "v_bfe_u32 v15, v10, 1, 1", "v_cmp_eq_u32 vcc, 1, v15", "v_mov_b32 v16, 0x4444", "v_mov_b32 v17, 0xeeee", f"v_cndmask_b32 v{vIDX}, v16, v17, vcc",
      "v_cmp_eq_u32 vcc, 1, v14", "v_mov_b32 v16, 0x01000504", "v_mov_b32 v17, 0x07060302", f"v_cndmask_b32 v{vSEL}, v16, v17, vcc")
    e("v_lshlrev_b32 v16, 4, v13", "v_lshl_add_u32 v16, v11, 6, v16", f"s_lshl_b32 s{sT}, s{sB}, 10", f"v_add_u32 v{vQLD}, s{sT}, v16")
    e(f"s_mul_i32 s{sT}, s{sW}, 320", f"s_add_u32 s{sT}, s{sT}, {PA}", "v_lshlrev_b32 v16, 10, v11", "v_bfe_u32 v17, v10, 2, 1", "v_lshl_add_u32 v16, v17, 5, v16",
      "v_and_b32 v17, 8, v10", "v_add_u32 v16, v16, v17", "v_lshl_add_u32 v16, v14, 2, v16", "v_lshl_add_u32 v16, v15, 1, v16", f"v_add_u32 v{vPW}, s{sT}, v16")
    e(f"s_and_b32 s{sT}, s{sB}, 3", f"s_lshl_b32 s{sT}, s{sT}, 2", f"s_add_u32 s{sT}, s{sT}, s{sS}", f"s_lshl_b32 s{sT}, s{sT}, 4", f"s_lshr_b32 s{sT+1}, s{sB}, 2", f"s_lshl_b32 s{sT+1}, s{sT+1}, 10",
      f"s_add_u32 s{sT}, s{sT}, s{sT+1}", f"s_lshl_b32 s{sT+1}, s{sW}, 12", f"s_add_u32 s{sT}, s{sT}, s{sT+1}",
      "v_and_b32 v16, 6, v9", "v_lshlrev_b32 v16, 1, v16", "v_lshl_add_u32 v16, v14, 14, v16", "v_lshrrev_b32 v17, 5, v9", "v_lshl_add_u32 v16, v17, 11, v16",
      "v_bfe_u32 v17, v9, 3, 2", "v_lshl_add_u32 v16, v17, 8, v16", f"v_add_u32 v{vOST}, s{sT}, v16")
    e(f"s_lshl_b32 s{sT}, s{sOH}, 14", f"s_add_u32 s{sT}, s{sT}, s{sT+1}", f"v_add_u32 v{vOLD}, s{sT}, v{vL16}")
    e("v_and_b32 v16, 7, v9", "v_lshlrev_b32 v16, 4, v16", "v_lshl_add_u32 v16, v11, 7, v16", f"s_lshl_b32 s{sT}, s{sOH}, 10", f"v_add_u32 v{vSLD}, s{sT}, v16")
    e(f"s_and_b32 s{sT}, s{sW}, 1", f"s_lshr_b32 s{sT+1}, s{sW}, 1", f"s_lshl_b32 s{sT+2}, s{sT}, 1", f"s_add_u32 s{sT+2}, s{sT+2}, s{sT+1}", f"s_lshl_b32 s{sT+2}, s{sT+2}, 8",
      f"s_add_u32 s{sT+2}, s{sT+2}, {RED}", "v_lshlrev_b32 v16, 2, v9", f"v_add_u32 v{aOR}, s{sT+2}, v16")
    e(f"s_lshl_b32 s{sT+2}, s{sNQ}, 1", f"s_add_u32 s{sT+2}, s{sT+2}, s{sT+1}", f"s_lshl_b32 s{sT+2}, s{sT+2}, 13",
      f"s_lshl_b32 s{sT+3}, s{sJ}, 1", f"s_add_u32 s{sT+3}, s{sT+3}, s{sOH}", f"s_lshl_b32 s{sT+3}, s{sT+3}, 9", f"s_add_u32 s{sT+2}, s{sT+2}, s{sT+3}",
      f"s_lshl_b32 s{sT}, s{sT}, 8", f"s_add_u32 s{sT+2}, s{sT+2}, s{sT}", "v_lshlrev_b32 v16, 2, v9", f"v_add_u32 v{vX1ST}, s{sT+2}, v16")
    e(f"s_and_b32 s{sT}, s{sB}, 3", f"s_lshl_b32 s{sT}, s{sT}, 7", f"s_lshr_b32 s{sB}, s{sB}, 2", f"s_lshl_b32 s{sB}, s{sB}, 6", f"s_add_u32 s{sB}, s{sB}, s{sT}",
      f"s_lshl_b32 s{sS}, s{sS}, 4", f"s_add_u32 s{sB}, s{sB}, s{sS}", f"s_lshr_b32 s{sT}, s{sW}, 1", f"s_lshl_b32 s{sT}, s{sT}, 9", f"s_add_u32 s{sB}, s{sB}, s{sT}",
      f"s_and_b32 s{sT}, s{sW}, 1", f"s_lshl_b32 s{sT}, s{sT}, 3", f"s_add_u32 s{sB}, s{sB}, s{sT}", f"s_mov_b32 s{sS}, {(-62*1024) & 0xffffffff}",
      f"s_mov_b32 s{sODD}, 0xaaaaaaaa", f"s_mov_b32 s{sODD+1}, 0xaaaaaaaa")
    e("v_bfe_u32 v16, v9, 1, 1", "v_lshlrev_b32 v16, 7, v16", "v_bfe_u32 v17, v9, 2, 3", "v_lshl_add_u32 v16, v17, 4, v16", "v_lshl_add_u32 v16, v14, 3, v16",
      "v_lshrrev_b32 v17, 5, v9", "v_lshl_add_u32 v16, v17, 2, v16", f"s_lshl_b32 s{sT}, s{sC}, 8",
      f"s_cmp_eq_u32 s{sW}, 0", f"s_cselect_b32 s{sT}, s{sT}, 0x40000000", f"v_add_u32 v{vX1r}, s{sT}, v16")
    for i in range(4): e(f"v_mov_b32 v{24+i}, 0")
    e(f"v_add_u32 v12, {PA}, v30", "ds_write_b128 v12, v[24:27]", f"v_mov_b32 v12, {FLAG}", "ds_write_b32 v12, v24")
    e(f"s_getreg_b32 s{sT}, hwreg(HW_REG_XCC_ID)", f"s_and_b32 s{sT}, s{sT}, 15", f"s_mul_i32 s{sT+1}, s{sT}, s{sT}", f"s_lshl_b32 s{sT}, s{sT}, 6",
      f"s_lshl_b32 s{sT+1}, s{sT+1}, 15", f"s_add_u32 s{sT}, s{sT}, s{sT+1}", f"s_add_u32 s{sT}, s{sT}, 1", f"s_lshl_b32 s{sEXP}, s{sT}, 5")
    e(f"v_mov_b32 v28, s{sT}", f"s_lshl_b32 s{sT+1}, s{sJ}, 5", f"v_mov_b32 v29, s{sT+1}")
    if "T" in ORD: pages()
    k_first(KA, NK0)
    pst0(45)
    e(f"s_mov_b32 s{sCNT}, 0", "s_branch L_Q0")
    stamp(0)

    def qsec(v, W):
        def issue():
            e(f"s_mov_b64 exec, s[{sMI8}:{sMI8+1}]")
            for d in range(4):
                e(f"buffer_load_dwordx4 {vr(8+4*d,4)}, v{vX0}, {srd(SX)}, 0 offen offset:{512*d} sc1")
            e("s_mov_b64 exec, -1")
        def first_layer():
            e.label("L_Q0")
            pump_until(max(WQA + [0]) + 2, DS)
            drain_stream(DS, opt.get("p0", 13))
            for _ in range(PRE // 2): call_pump()
            e("s_barrier", f"s_cmp_lg_u32 s{sW}, 0", "s_cbranch_scc1 L_ARR")
            e("s_mov_b64 exec, 1", "global_atomic_add v29, v28, s[30:31] sc1", "s_mov_b64 exec, -1")
            e.label("L_ARR")
            q_prep()
            e(f"s_mov_b64 exec, s[{sMI8}:{sMI8+1}]")
            for i in range(16): e(f"v_mov_b32 v{8+i}, v{40+i}")
            e("s_mov_b64 exec, -1")
            if LATE:
                for i in range(4): e(f"v_mov_b32 v{40+i}, -1")
                e(f"s_add_u32 s{sT}, s{sA0}, 0x200000", f"buffer_store_dword v40, v{vQST}, {srd(WS)}, s{sQB} offen sc1")
                if not opt.get("noclear"):
                    for r in (sA0, sA1, sT): e(f"buffer_store_dwordx4 v[40:43], v62, {srd(WS)}, s{r} offen sc1")
                for _ in range(opt.get("lx", 2) // 2): call_pump()
            wq_move(WqA, vPT)
            if EB: wq_move(WqB, vPT, STG - 16384)
            e("v_mfma_f32_16x16x32_bf16 v[28:31], v[8:11], v[8:11], 0", "s_branch L_QAOK")
        if v == "A": ool.append(first_layer)
        poll(f"Q{v}", issue, 4, lambda: check_max(range(8, 24), 32),
             lambda: e("v_mfma_f32_16x16x32_bf16 v[28:31], v[8:11], v[8:11], 0"), q_prep,
             lambda: e("s_waitcnt vmcnt(0) lgkmcnt(0)", "s_barrier"))
        stamp(1)
        for d in range(4):
            if d: e(f"v_mfma_f32_16x16x32_bf16 v[28:31], {vr(8+4*d,4)}, {vr(8+4*d,4)}, v[28:31]")
            e(f"v_mfma_f32_16x16x32_bf16 v[24:27], {vr(8+4*d,4)}, {vr(W+4*d,4)}, {'0' if d == 0 else 'v[24:27]'}")
    qsec("A", WqA)
    e.label("L_QJ")
    def qb():
        qsec("B", WqB); e("s_branch L_QJ")
    ool.append(qb)
    if not POST: pre_issue()
    stamp(20)
    e(f"ds_write2st64_b32 v{vRW}, v28, v29 offset0:4 offset1:5", f"ds_write2st64_b32 v{vRW}, v30, v31 offset0:6 offset1:7",
      f"ds_write2st64_b32 v{vRW}, v24, v25 offset0:0 offset1:1", f"ds_write2st64_b32 v{vRW}, v26, v27 offset0:2 offset1:3", "s_waitcnt lgkmcnt(0)")
    stamp(21)
    e("s_barrier")
    stamp(22)
    e(f"ds_read_b32 v37, v{aGS} offset:{1024+128}", f"ds_read_b32 v36, v{aDG} offset:1024", f"ds_read_b64 v[32:33], v{aD}", f"ds_read_b64 v[34:35], v{aCS} offset:128")
    inv = f2u(1.0 / 448.0)
    X1_, X2_ = f"quad_perm:[1,0,3,2] {DPP}", f"quad_perm:[2,3,0,1] {DPP}"
    e("s_waitcnt lgkmcnt(2)")
    e(f"v_add_f32_dpp v37, v37, v37 {X1_}", f"v_add_f32_dpp v36, v36, v36 {X1_}", "s_waitcnt lgkmcnt(0)")
    stamp(23)
    e(f"v_add_f32_dpp v37, v37, v37 {X2_}", f"v_add_f32_dpp v36, v36, v36 {X2_}",
      f"v_mul_f32 v37, {inv}, v37", f"v_mul_f32 v36, {inv}, v36",
      "v_pk_fma_f32 v[32:33], v[34:35], v[36:37], v[32:33] op_sel:[0,1,0] op_sel_hi:[1,1,1] neg_lo:[1,0,0] neg_hi:[1,0,0]",
      "v_fma_f32 v36, -v37, v37, v36", "v_max_f32 v36, 0, v36",
      f"v_add_f32_dpp v32, v32, v32 {X1_}", f"v_add_f32_dpp v33, v33, v33 {X1_}", f"v_add_f32 v36, {f2u(1e-5)}, v36", "v_rsq_f32 v36, v36",
      f"v_add_f32_dpp v32, v32, v32 {X2_}", f"v_add_f32_dpp v33, v33, v33 {X2_}", f"v_mul_f32 v36, {f2u(1.4426950408889634/16.0)}, v36",
      f"s_mov_b64 exec, s[{sMQ}:{sMQ+1}]", "v_pk_mul_f32 v[32:33], v[32:33], v[36:37] op_sel:[0,0] op_sel_hi:[1,0]",
      "v_cvt_pk_bf16_f32 v56, v32, v33", "v_min_u32 v56, -2, v56")
    publish(f"buffer_store_dword v56, v{vQST}, {{r}}, s{sQB} offen {{fl}}")
    e("s_mov_b64 exec, -1")
    stamp(2)
    e(f"s_cmp_lt_u32 s{sLAY}, 2", "s_cbranch_scc1 L_INIT")
    e.label("L_INITD")
    def init():
        e.label("L_INIT")
        e(f"s_cmp_eq_u32 s{sLAY}, 0", "s_cbranch_scc1 L_INIT0")
        pump_until(103, D2)
        if opt.get("aprobe", 0):
            e(f"v_and_b32 v47, 0xf0, v{vL16}", f"v_lshlrev_b32 v47, 2, v47", f"v_bfe_u32 v46, v{vL16}, 8, 1", "v_lshl_add_u32 v47, v46, 4, v47",
              f"v_and_b32 v46, 0x1c00, v{vQLD}", "v_add_u32 v47, v47, v46")
            probe("L_APR", f"buffer_load_dword v8, v47, {srd(WS)}, s{sQB} offen sc1", "-1", "L_INITD", "AP", 8)
        e("s_branch L_INITD")
        e.label("L_INIT0")
        e(f"s_mov_b32 s{sLIM}, 64", f"s_min_u32 s{sSTOP}, s{sNSP}, s{sLIM}")
        if LATE:
            drain_stream(DS, 6)
            e("s_barrier", f"s_cmp_lg_u32 s{sW}, 0", "s_cbranch_scc1 L_ARR")
            e("s_mov_b64 exec, 1", "global_atomic_add v61, v60, s[30:31] sc1", "s_mov_b64 exec, -1")
            e.label("L_ARR")
        pump_until(opt.get('ipos', 38), DS)
        if opt.get("streamonly"):
            e(f"s_mov_b32 s{sLIM}, 128", f"s_min_u32 s{sSTOP}, s{sNSP}, s{sLIM}")
            pump_until(128, DS)
            e("s_waitcnt vmcnt(0)", "s_memrealtime s[96:97]", "s_waitcnt lgkmcnt(0)", f"v_writelane_b32 v{vDBG}, s96, 28", "s_branch L_END")
        e(f"v_lshlrev_b32 v41, 1, v{vL16}", f"v_mov_b32 v42, {FLAG}", f"s_cmp_lg_u32 s{sW}, 0", "s_cbranch_scc1 L_IWAIT")
        e.label("L_IPOLL")
        e("s_mov_b64 exec, 0xff", "global_load_dword v8, v41, s[30:31] sc1", "s_mov_b64 exec, -1")
        drain_stream()
        e("s_mov_b64 exec, 0xff", "v_and_b32 v9, 63, v8", "v_cmp_ne_u32 vcc, 32, v9", "s_mov_b64 exec, -1", "s_cbranch_vccnz L_IFAIL")
        e(f"v_readlane_b32 s{sT}, v8, s{sJ}", f"s_cmp_eq_u32 s{sT}, s{sEXP}")
        if opt.get("forceslow"): e("s_cmp_eq_u32 0, 1")
        e(f"s_cselect_b32 s{sT}, 2, 1", f"v_mov_b32 v9, s{sT}", "ds_write_b32 v42, v9", "s_branch L_IGOT")
        e.label("L_IFAIL")
        spin_down(); e("s_branch L_IPOLL")
        e.label("L_IWAIT")
        e(f"s_waitcnt vmcnt({DS-2})"); call_pump()
        e("ds_read_b32 v9, v42")
        spin_down()
        e("s_waitcnt lgkmcnt(0)", f"v_readfirstlane_b32 s{sT}, v9", f"s_cmp_eq_u32 s{sT}, 0", "s_cbranch_scc1 L_IWAIT")
        e.label("L_IGOT")
        e(f"s_mov_b32 s{sT+5}, s{sT}")
        pump_until(39, DS)
        e(f"s_mov_b32 s{sT}, s{sT+5}")
        e(f"s_cmp_eq_u32 s{sT}, 2", f"s_cselect_b32 s{SF+2}, {WSEND}, 0", f"s_cselect_b32 s{SS+2}, 0, {WSEND}")
        if opt.get("touch0", 1):
            e(f"s_cmp_lg_u32 s{sW}, 1", "s_cbranch_scc1 L_INITD")
            e(f"s_mul_i32 s{sT}, s{sC}, {13*128}", f"s_add_u32 s{sT}, s{sT}, s{sBK}", f"v_lshlrev_b32 v41, 3, v{vL16}", "s_mov_b64 exec, 0x1fff",
              f"buffer_load_dword v9, v41, {srd(WS)}, s{sT} offen sc1", "s_mov_b64 exec, -1")
        e("s_branch L_INITD")
    ool.append(init)

    def a_prep():
        for i in range(32): e(f"v_mov_b32 v{24+i}, 0")
    e(f"s_lshl_b32 s{sT}, s{sW}, 3", f"s_add_u32 s{sT}, s{sT}, {SL}", f"v_mov_b32 v61, s{sT}", f"v_add_u32 v62, {PA}, v{vL16}",
      f"v_lshrrev_b32 v63, 8, v{vL16}", f"v_lshlrev_b32 v63, 3, v63", f"v_add_u32 v63, {SL}, v63")
    e(f"s_bitcmp1_b32 s{sLAY}, 0", "s_cbranch_scc1 L_ABP")
    def sadd1(t, h): return f"v_add_f32_dpp v{56+h}, v{24+4*t+h}, v{26+4*t+h} quad_perm:[0,1,2,3] row_mask:{1<<t} bank_mask:0xf"
    def asec(v, base):
        def issue():
            for u in range(4):
                e(f"buffer_load_dwordx4 {vr(8+4*u,4)}, v{vQLD}, {srd(WS)}, s{sQB} offen offset:{256*u} sc1")
        def sm(t, u): e(f"v_smfmac_f32_16x16x64_bf16 {vr(24+4*t,4)}, {vr(8+4*u,4)}, {ar(base+32*t+8*u,8)}, v{vIDX}")
        def spread():
            for i in range(16): e(f"v_mov_b32_dpp v{8+i}, v{8+i} row_shr:4 row_mask:0xf bank_mask:0x2")
            for i in range(16): e(f"v_mov_b32_dpp v{8+i}, v{8+i} row_shr:8 row_mask:0xf bank_mask:0xc")
            e.nop(2)
        def undo():
            e.nop(8)
            for i in range(4): e(f"v_mov_b32 v{24+i}, 0")
        poll(f"A{v}", issue, 4, lambda: check_max(range(8, 24), 58), lambda: sm(0, 0), a_prep, lambda: e("s_waitcnt vmcnt(0)"), undo=undo,
             light=(0x000f000f, spread) if opt.get("alight", 1) else None)
        stamp(3)
        for t in range(4):
            for u in range(4):
                if t or u: sm(t, u)
                if t and u >= 2: e(sadd1(t - 1, u - 2))
    asec("A", 0)
    e.label("L_KJ")
    def kb():
        asec("B", 128); e("s_branch L_KJ")
    ool.append(kb)
    pre_issue()
    e(f"v_bfe_u32 v24, v{vL16}, 4, 2", f"v_lshlrev_b32 v24, 3, v24", f"v_add_u32 v24, {SL}, v24", f"s_add_u32 s{sOB2}, s{sST}, s{sB}", sadd1(3, 0), sadd1(3, 1))
    steps = ["quad_perm:[1,0,3,2] row_mask:0xf", "quad_perm:[2,3,0,1] row_mask:0xf", "row_half_mirror row_mask:0xf", "row_mirror row_mask:0xf",
             "row_bcast:15 row_mask:0xa", "row_bcast:31 row_mask:0xc"]
    fill = [f"s_cmp_lt_u32 s{sLAY}, 2", f"v_lshl_add_u32 v25, v{vL16}, 6, s{sS}"]
    for i, st in enumerate(steps):
        for h in range(2):
            s_ = 56 + h if i == 0 else 58 + h
            e(f"v_max_f32_dpp v{58+h}, v{s_}, v{s_} {st} bank_mask:0xf")
        if fill: e(fill.pop(0))
    e(f"v_readlane_b32 s{sA0}, v58, 63", f"v_readlane_b32 s{sA1}, v59, 63")
    e("s_mov_b32 exec_lo, 0", "s_mov_b32 exec_hi, 0x80000000", "ds_write_b64 v61, v[58:59]", "s_mov_b64 exec, -1")
    e(f"v_subrev_f32 v56, s{sA0}, v56", f"v_subrev_f32 v57, s{sA1}, v57", "v_exp_f32 v56, v56", "v_exp_f32 v57, v57",
      "v_cvt_pk_bf16_f32 v60, v56, v57", f"ds_write_b16 v{vPW}, v60", f"ds_write_b16_d16_hi v{vPW}, v60 offset:16")
    V = []
    for i, st in enumerate(steps):
        for h in range(2): V.append(f"v_add_f32_dpp v{56+h}, v{56+h}, v{56+h} {st} bank_mask:0xf")
    e(V.pop(0), V.pop(0), "s_cbranch_scc1 L_VEARLY", "s_waitcnt vmcnt(0)")
    e.label("L_VB")
    VREST = list(V)
    e(V.pop(0), V.pop(0), f"v_cndmask_b32 v27, v58, v59, s[{sODD}:{sODD+1}]", V.pop(0), V.pop(0), "v_min_u32 v27, -2, v27", V.pop(0), V.pop(0))
    e("s_waitcnt lgkmcnt(0)", "s_barrier")
    stamp(4)
    def vearly():
        e.label("L_VEARLY")
        e(f"s_cmp_eq_u32 s{sLAY}, 0", "s_cbranch_scc0 L_PROG")
        for k in range(4):
            if opt.get("afirst"):
                pump_until(min(40 + 8 * k + DS, 64), DS); e(f"s_waitcnt vmcnt({min(DS, 24 - 8 * k)})")
            else:
                landed(40 + 8 * k, DS)
            e("s_waitcnt lgkmcnt(0)", "s_barrier")
            if k: e(f"s_mov_b32 s{sLIM}, {64 + 8 * k}", f"s_min_u32 s{sSTOP}, s{sNSP}, s{sLIM}")
            if HG and k == HG - 1:
                l_ = L("hg")
                e(f"s_cmp_lg_u32 s{sW}, 0", f"s_cbranch_scc1 {l_}", f"s_lshl_b32 s{sT}, s2, 2", f"s_add_u32 s{sT}, s{sT}, {GFL}", "v_mov_b32 v8, 0", "s_mov_b64 exec, 1",
                  f"buffer_store_dword v8, off, {srd(WS)}, s{sT} sc1", "s_mov_b64 exec, -1")
                e.label(l_)
            if HQ and k == HQ - 1:
                e(f"s_lshl_b32 s{sT}, s{sC}, 2", f"s_add_u32 s{sT}, s{sT}, s{sBK}", "v_mov_b32 v8, 0", "s_mov_b64 exec, 1")
                publish(f"buffer_store_dword v8, off, {{r}}, s{sT} offset:{HINT & 4095} {{fl}}".replace(f"s{sT} offset:{HINT & 4095}", f"s{sT+1}"), pre=f"s_add_u32 s{sT+1}, s{sT}, {HINT}")
                e("s_mov_b64 exec, -1")
            e(f"s_call_b64 s[{sRET2}:{sRET2+1}], L_MOVEV{k}")
        if not POST:
            for _ in range(PRE // 2): call_pump()
        e("s_branch L_VB")
    ool.append(vearly)
    for k in range(4): e(f"ds_read_b128 {vr(8+4*k,4)}, v62 offset:{1024*k}")
    e("ds_read_b64 v[28:29], v24", "ds_read_b64 v[36:37], v63")
    e(V.pop(0), V.pop(0), f"s_mov_b32 s{sLIM}, s{sLIMX}", V.pop(0), V.pop(0), f"s_min_u32 s{sSTOP}, s{sNSP}, s{sLIM}",
      f"v_cndmask_b32 v26, v56, v57, s[{sODD}:{sODD+1}]", "v_min_u32 v26, -2, v26")
    publish(f"buffer_store_dwordx2 v[26:27], v25, {{r}}, s{sOB2} offen {{fl}}")
    def tpost(tau):
        return [f"v_pk_add_f32 {vr(40+4*tau,2)}, {vr(40+4*tau,2)}, {vr(42+4*tau,2)}", f"v_pk_mul_f32 {vr(40+4*tau,2)}, {vr(40+4*tau,2)}, v[38:39]"]
    V += [None, None, f"v_max_f32_dpp v28, v28, v28 {X1_}", f"v_max_f32_dpp v29, v29, v29 {X1_}",
          f"v_max_f32_dpp v28, v28, v28 {X2_}", f"v_max_f32_dpp v29, v29, v29 {X2_}", "v_sub_f32 v38, v36, v28", "v_sub_f32 v39, v37, v29", "v_exp_f32 v38, v38", "v_exp_f32 v39, v39"]
    V += ["v_add_f32 v40, v40, v42", "v_add_f32 v41, v41, v43", "v_mul_f32 v40, v40, v38", "v_mul_f32 v41, v41, v39", "v_add_f32 v48, v48, v50", "v_add_f32 v49, v49, v51"]
    FOPS = [x_ for x_ in V[:10] if x_]
    order = [0, 2, 1, 3]
    n_ = 0
    for tau in order:
        for k in range(4):
            if n_ < 2: e(f"s_waitcnt lgkmcnt({5-n_})")
            if n_ == 2: e("s_waitcnt lgkmcnt(0)")
            e(f"v_smfmac_f32_16x16x64_bf16 {vr(40+4*tau,4)}, {vr(8+4*k,4)}, {vr(AV+32*k+8*tau,8)}, v{vIDX}")
            if n_ == 0: stamp(10)
            if n_ == 3: stamp(11)
            x_ = V.pop(0)
            if x_: e(x_)
            n_ += 1
    assert not V, V
    stamp(12)
    e.label("L_POST")
    e(tpost(2)[1]); e(*tpost(1))
    e("v_permlane32_swap_b32 v40, v48", "v_permlane32_swap_b32 v41, v49")
    e(*tpost(3))
    e("v_pk_add_f32 v[40:41], v[40:41], v[48:49]")
    e("v_permlane32_swap_b32 v44, v52", "v_permlane32_swap_b32 v45, v53", "v_pk_add_f32 v[44:45], v[44:45], v[52:53]")
    e("v_permlane16_swap_b32 v40, v44", "v_permlane16_swap_b32 v41, v45", "v_pk_add_f32 v[40:41], v[40:41], v[44:45]")
    e("v_cvt_pk_bf16_f32 v40, v40, v41", f"v_mov_b32_dpp v41, v40 {X1_}", f"v_perm_b32 v40, v40, v41, v{vSEL}", "v_min_u32 v40, -2, v40")
    stamp(13)
    publish(f"buffer_store_dword v40, v{vOST}, {{r}}, s{sOB} offen {{fl}}")
    stamp(5)
    def prog():
        e.label("L_PROG")
        for _ in range(P1 // 2): call_pump()
        e(*VREST)
        e(f"v_cndmask_b32 v27, v58, v59, s[{sODD}:{sODD+1}]", f"v_cndmask_b32 v26, v56, v57, s[{sODD}:{sODD+1}]", "v_min_u32 v27, -2, v27", "v_min_u32 v26, -2, v26")
        publish(f"buffer_store_dwordx2 v[26:27], v25, {{r}}, s{sOB2} offen {{fl}}")
        e("s_waitcnt lgkmcnt(0)", "s_barrier")
        stamp(4)
        e("ds_read_b64 v[28:29], v24", "ds_read_b64 v[36:37], v63", "s_waitcnt lgkmcnt(0)")
        for x_ in FOPS: e(x_)
        e("v_mov_b32 v37, v62")
        if opt.get("fastp", 0):
            e(f"s_cmp_ge_u32 s{sIT}, 128", "s_cbranch_scc1 L_PFAST")
        for k in range(4):
            m = 104 + 8 * k
            pump_until(min(m + D3, 128), D3)
            e(f"s_waitcnt vmcnt({min(D3, 128 - m)})")
            if k == 3 and debug and opt.get("pstamps"):
                e("s_memrealtime s[96:97]", "s_waitcnt lgkmcnt(0)", f"v_writelane_b32 v{vDBG}, s96, 28")
            e(f"ds_read_b128 v[32:35], v37 offset:{1024*k}", "s_barrier")
            bases = {0: 24, 2: 56, 1: 128 - 128 + 24, 3: 56}
            def rd(tau, base):
                for r0 in range(2):
                    e(f"v_xor_b32 v36, {(tau << 5) | (r0 << 4) | ((k >> 1) << 16)}, v{vVRD}")
                    for r in (r0, r0 + 2):
                        e(f"ds_read_b64_tr_b16 {vr(base+2*r,2)}, v36 offset:{(k & 1)*32768 + (r & 1)*512 + (r >> 1)*2048}")
            def sm(tau, base): e(f"v_smfmac_f32_16x16x64_bf16 {vr(40+4*tau,4)}, v[32:35], {vr(base,8)}, v{vIDX}")
            if k < 3:
                rd(0, 24); rd(2, 56); e("s_waitcnt lgkmcnt(4)"); sm(0, 24); e.nop(4); rd(1, 24); e("s_waitcnt lgkmcnt(4)"); sm(2, 56); e.nop(4); rd(3, 56)
                e("s_waitcnt lgkmcnt(4)"); sm(1, 24); e("s_waitcnt lgkmcnt(0)"); sm(3, 56)
            else:
                rd(0, 24); rd(2, 56); rd(1, 8); rd(3, 16); e("s_waitcnt lgkmcnt(12)"); sm(0, 24)
                e("s_waitcnt lgkmcnt(8)"); sm(2, 56); e("s_waitcnt lgkmcnt(4)"); sm(1, 8); e("s_waitcnt lgkmcnt(0)"); sm(3, 16)
        e.label("L_PEND")
        e(*tpost(0), tpost(2)[0])
        e("s_branch L_POST")
    ool.append(prog)
    def pfast():
        e.label("L_PFAST")
        e("s_waitcnt vmcnt(0)")
        if debug and opt.get("pstamps"):
            e("s_memrealtime s[96:97]", "s_waitcnt lgkmcnt(0)", f"v_writelane_b32 v{vDBG}, s96, 28")
        bufs = [8, 16, 24]; pb = [32, 56]
        seq = [(k, tau) for k in range(4) for tau in (0, 2, 1, 3)]
        q_ = []
        def rp(k):
            e(f"ds_read_b128 {vr(pb[k % 2],4)}, v37 offset:{1024*k}"); q_.append(("p", k))
        def rd(i_):
            k, tau = seq[i_]; base = bufs[i_ % 3]
            for r0 in range(2):
                e(f"v_xor_b32 v36, {(tau << 5) | (r0 << 4) | ((k >> 1) << 16)}, v{vVRD}")
                for r in (r0, r0 + 2):
                    e(f"ds_read_b64_tr_b16 {vr(base+2*r,2)}, v36 offset:{(k & 1)*32768 + (r & 1)*512 + (r >> 1)*2048}"); q_.append(("v", i_))
        rp(0); rp(1)
        e("s_barrier", "s_barrier", "s_barrier", "s_barrier")
        rd(0); rd(1); rd(2)
        for i_ in range(16):
            k, tau = seq[i_]
            last = max(n for n, x in enumerate(q_) if x in (("v", i_), ("p", k)))
            e(f"s_waitcnt lgkmcnt({len(q_) - 1 - last})")
            e(f"v_smfmac_f32_16x16x64_bf16 {vr(40+4*tau,4)}, {vr(pb[k % 2],4)}, {vr(bufs[i_ % 3],8)}, v{vIDX}")
            if i_ + 3 < 16:
                e.nop(2); rd(i_ + 3)
            if i_ % 4 == 3 and k + 2 < 4: rp(k + 2)
        e.nop(4)
        e("s_branch L_PEND")
    if opt.get("fastp", 0): ool.append(pfast)

    e(f"s_cmp_ge_u32 s{sC}, 28", "s_cbranch_scc1 L_NOO0")
    def sissue():
        e(f"buffer_load_dwordx4 v[56:59], v{vSLD}, {srd(WS)}, s{sST} offen sc1", f"buffer_load_dwordx4 v[60:63], v{vSLD}, {srd(WS)}, s{sST} offen offset:512 sc1")
    def oissue():
        for mt in range(2):
            for ks in range(2):
                e(f"buffer_load_dwordx4 {vr(8+8*mt+4*ks,4)}, v{vOLD}, {srd(WS)}, s{sOB} offen offset:{2048*ks+1024*mt} sc1")
    def omf(ks, mt, nt):
        d = vr(40 + 8 * mt + 4 * nt, 4)
        e(f"v_mfma_f32_16x16x32_bf16 {d}, {vr(8+8*mt+4*ks,4)}, {vr(24+8*ks+4*nt,4)}, {'0' if ks == 0 else d}")
    ostream = f"s_cmp_lt_u32 s{sIT}, 128"
    sissue()
    e(f"s_bitcmp1_b32 s{sLAY}, 0", "s_cbranch_scc1 L_OWB")
    for i in range(16): e(f"v_mov_b32 v{24+i}, v{WoA+i}")
    def owb():
        e.label("L_OWB"); e.nop(2); wo_move(24, 55); e("s_branch L_OWJ")
    ool.append(owb)
    e.label("L_OWJ")
    e(ostream, "s_cbranch_scc1 L_OS0", "s_waitcnt vmcnt(2)")
    oissue()
    e("s_waitcnt vmcnt(4)")
    e.label("L_OSC")
    check_max([56, 58, 60, 62, 57, 59, 61, 63], 40)
    e("v_max3_f32 v41, v57, v59, v61", "s_cbranch_vccnz L_OSF", "v_max_f32 v41, v41, v63")
    e(f"v_max_f32_dpp v42, v41, v41 {X1_}", f"v_max_f32_dpp v42, v42, v42 {X2_}")
    e("v_sub_f32 v43, v57, v42", "v_sub_f32 v44, v59, v42", "v_sub_f32 v45, v61, v42", "v_sub_f32 v46, v63, v42", "v_sub_f32 v41, v41, v42",
      "v_exp_f32 v43, v43", "v_exp_f32 v44, v44", "v_exp_f32 v45, v45", "v_exp_f32 v46, v46", "v_exp_f32 v41, v41",
      "v_mul_f32 v43, v43, v56", "v_fmac_f32 v43, v44, v58", "v_fmac_f32 v43, v45, v60", "v_fmac_f32 v43, v46, v62",
      f"v_add_f32_dpp v43, v43, v43 {X1_}", f"v_add_f32_dpp v43, v43, v43 {X2_}", "v_rcp_f32 v43, v43", f"v_mul_f32 v{vPT}, v41, v43")
    e(ostream, "s_cbranch_scc1 L_OC")
    e.label("L_OR")
    if ROLL:
        oissue(); e("s_waitcnt vmcnt(4)")
    else:
        e("s_waitcnt vmcnt(0)")
    e.label("L_OC")
    check_max(range(8, 24), 48)
    omf(0, 0, 0)
    e("s_cbranch_vccnz L_OF")
    def ofail():
        e.label("L_OSF")
        spin_down(); e(ostream, "s_cbranch_scc1 L_OS1"); sissue(); e("s_waitcnt vmcnt(0)", "s_branch L_OSC")
        e.label("L_OF")
        spin_down(); e(ostream, "s_cbranch_scc1 L_OS1")
        if not ROLL: oissue()
        e("s_branch L_OR")
        e.label("L_OSA")
        check_max(range(8, 24), 48)
        e("s_cbranch_vccz L_OSC")
        spin_down()
        e("s_branch L_OS1")
        e.label("L_OS0")
        for _ in range(opt.get("bo", 0) // 2): call_pump()
        if HG:
            e(f"s_mov_b32 s{sT+5}, {GFL}", arm("OP"))
            e.label("L_GP")
            e(f"buffer_load_dwordx4 v[44:47], v{vL16}, {srd(WS)}, s{sT+5} offen sc1", "s_branch L_GS")
            e.label("L_GC")
            check_max([44, 45, 46, 47], 43)
            e("s_cbranch_vccz L_OPD")
            spin_down(); e("s_branch L_GP")
            stream_round("L_GS", "L_GP", "L_GC", 1, "OP")
        if HQ:
            e(f"v_lshrrev_b32 v47, 2, v{vL16}", f"s_add_u32 s{sT}, s{sBK}, {HINT}", f"v_add_u32 v47, s{sT}, v47", f"v_lshlrev_b32 v46, 3, v{vL16}",
              f"v_add_u32 v46, {GFL - 32 * 128}, v46", "s_mov_b32 exec_lo, 0", "v_mov_b32 v47, v46", "s_mov_b64 exec, -1",
              f"s_and_b32 s{sT+5}, s{sC}, 7", f"s_or_b32 s{sT+5}, s{sT+5}, s{sW}")
            HL = opt.get("hlocal", 0)
            def hload(): e(f"s_mov_b32 exec_hi, {0 if HL else 0xff}", f"buffer_load_dword v46, v47, {srd(WS)}, 0 offen sc1", "s_mov_b64 exec, -1")
            if HL == 2:
                e(arm("OP"))
            else:
                hload(); e("s_waitcnt vmcnt(0)", arm("OP"), "s_branch L_HC0")
            e.label("L_HP")
            hload(); e("s_branch L_HS")
            e.label("L_HC")
            e(f"s_mov_b32 s{sCNT}, 0")
            e.label("L_HC0")
            if HL:
                e("s_mov_b32 exec_hi, 0", "v_cmp_eq_u32 vcc, -1, v46", "s_mov_b64 exec, -1", "s_cbranch_vccz L_OPD")
                spin_down(); e("s_branch L_HP")
            e("s_mov_b32 exec_hi, 0xff", "v_cmp_eq_u32 vcc, -1, v46", "s_mov_b64 exec, -1", "s_nop 2", "s_cmp_eq_u32 vcc_hi, 0", "s_cbranch_scc1 L_OPD")
            spin_down()
            e(f"s_or_b32 s{sT}, vcc_lo, s{sT+5}", "s_cbranch_scc1 L_HP")
            e(f"s_lshl_b32 s{sT}, s{sJ}, 7", f"s_add_u32 s{sT}, s{sT}, {GFL}", "v_mov_b32 v45, 0", "s_mov_b64 exec, 1",
              f"buffer_store_dword v45, off, {srd(WS)}, s{sT} sc1", "s_mov_b64 exec, -1", f"s_mov_b32 s{sT+5}, 1", "s_branch L_HP")
            stream_round("L_HS", "L_HP", "L_HC", 1, "OP")
        e(f"v_and_b32 v47, 0xf0, v{vL16}", f"v_and_b32 v46, 0x100, v{vL16}", "v_lshl_add_u32 v47, v46, 2, v47", f"v_sub_u32 v46, v{vOLD}, v{vL16}", "v_add_u32 v47, v47, v46")
        probe("L_OPR", f"buffer_load_dword v46, v47, {srd(WS)}, s{sOB} offen sc1", "-1", "L_OPD", "OP")
        e.label("L_NOO0")
        e(f"s_cmp_eq_u32 s{sLAY}, 0", "s_cbranch_scc0 L_NOO")
        if SPLITB: pump_until(WQH[3] + 9, DS)
        e("s_branch L_NOO" if opt.get("c28", 1) else "s_branch L_OS0")
        e.label("L_OPD")
        if RW:
            e(f"s_mov_b32 s{sT+3}, s{KV}", f"s_mov_b32 s{sT+4}, s{KV+1}",
              f"s_lshl_b32 s{sT}, s{sJ}, 19", f"s_lshl_b32 s{sT+1}, s{sC}, 14", f"s_add_u32 s{sT}, s{sT}, s{sT+1}", f"s_add_u32 s{sT}, s{sT}, {WX}",
              f"s_add_u32 s{KV}, s32, s{sT}", f"s_addc_u32 s{KV+1}, s33, 0", f"s_mov_b32 s{KV+2}, 14336", f"s_lshl_b32 s{sT}, s{sW}, 12")
            for d in range(4):
                e(f"s_add_u32 m0, s{sT}, {STG+1024*d}", f"s_add_u32 s{sT+1}, s{sT}, {1024*d}", f"buffer_load_dwordx4 v{vL16}, {srd(KV)}, s{sT+1} offen sc1 lds")
            e(f"s_mov_b32 s{KV}, s{sT+3}", f"s_mov_b32 s{KV+1}, s{sT+4}", f"s_mov_b32 s{KV+2}, 0x20000")
        e(arm("OR"), f"s_cmp_ge_u32 s{sC}, 28", "s_cbranch_scc0 L_OS1")
        if RW: drain_stream(DC, 4)
        e("s_branch L_NOO")
        e.label("L_OS1")
        if debug and 14 in sset:
            e(f"s_cmp_lg_u32 s{SP[sset.index(14)]}, 0", "s_cbranch_scc1 L_OS1b"); stamp(14); e("s_waitcnt lgkmcnt(0)"); e.label("L_OS1b")
        sissue()
        oissue()
        if OROLL:
            e("s_branch L_ORS")
            stream_round("L_ORS", "L_OS1", "L_OSA", 6, "OR")
        else:
            if DO: drain_stream(DO, 6)
            else: e("s_waitcnt vmcnt(0)")
            e("s_branch L_OSA")
    ool.append(ofail)
    stamp(6)
    def ws(o, mt, nt, s_, first):
        d = 40 + 8 * mt + 4 * nt
        return f"v_{'mul' if first else 'fmac'}_f32_dpp v{o}, v{vPT}, v{d+s_} row_newbcast:{4*mt+s_} {DPP}"
    omf(1, 0, 0); omf(0, 0, 1); omf(1, 0, 1); omf(0, 1, 0); omf(1, 1, 0)
    e(ws(24, 0, 0, 0, 1), ws(25, 0, 1, 0, 1)); omf(0, 1, 1)
    e(ws(24, 0, 0, 1, 0), ws(25, 0, 1, 1, 0)); omf(1, 1, 1)
    e(ws(24, 0, 0, 2, 0), ws(25, 0, 1, 2, 0), ws(26, 1, 0, 0, 1), ws(28, 1, 0, 2, 1), ws(24, 0, 0, 3, 0), ws(25, 0, 1, 3, 0), ws(26, 1, 0, 1, 0), ws(28, 1, 0, 3, 0))
    e(ws(27, 1, 1, 0, 1), ws(29, 1, 1, 2, 1), f"ds_write2st64_b32 v{vRW}, v24, v25 offset0:0 offset1:1", ws(27, 1, 1, 1, 0), ws(29, 1, 1, 3, 0),
      "v_pk_add_f32 v[26:27], v[26:27], v[28:29]", f"ds_write2st64_b32 v{vRW}, v26, v27 offset0:2 offset1:3")
    if not POST: pre_issue()
    e("s_waitcnt lgkmcnt(0)", "s_barrier")
    e(f"ds_read_b32 v28, v{aOR}", f"ds_read_b32 v29, v{aOR} offset:{RS}", f"ds_read_b32 v30, v{aOR} offset:{2*RS}", f"ds_read_b32 v31, v{aOR} offset:{3*RS}", "s_waitcnt lgkmcnt(0)")
    e("v_pk_add_f32 v[28:29], v[28:29], v[30:31]", "v_add_f32 v28, v28, v29", "v_min_u32 v28, -2, v28")
    e(f"buffer_store_dword v28, v{vX1ST}, {srd(WS)}, s{sX1} offen sc1")
    e.label("L_NOO")
    stamp(7)
    e(f"s_add_u32 s{sBK}, s{sBK}, {8*BSZ}", f"s_mov_b32 s{sXO}, s{sBK}", f"s_add_u32 s{sOB2}, s{sX1L}, 4096")
    e(f"s_cmp_eq_u32 s{sLAY}, 3", "s_cbranch_scc1 L_LAST")
    def last():
        e.label("L_LAST")
        e(f"s_cmp_ge_u32 s{sC}, 28", f"s_cselect_b32 s{sT}, 1, s{sW}", f"s_or_b32 s{sT}, s{sT}, s{sJ}", "s_cbranch_scc1 L_ENDW" if WBE else "s_cbranch_scc1 L_END")
        e(f"s_mov_b32 s{SF}, s28", f"s_mov_b32 s{SF+1}, s29", f"s_mov_b32 s{SF+2}, 7168", f"s_mov_b32 s{SS+2}, 0", f"s_mov_b32 s{sXO}, 0")
        x2_voff(vX1r, 41)
        e("s_branch L_XGO")
    ool.append(last)
    if opt.get("touch", 1):
        e(f"s_cmp_lg_u32 s{sW}, 1", "s_cbranch_scc1 L_NOTOUCH")
        e(f"s_mul_i32 s{sT}, s{sC}, {13*128}", f"s_add_u32 s{sT}, s{sT}, s{sBK}", f"v_lshlrev_b32 v32, 3, v{vL16}", "s_mov_b64 exec, 0x1fff",
          f"buffer_load_dword v63, v32, {srd(WS)}, s{sT} offen sc1", "s_mov_b64 exec, -1")
        e.label("L_NOTOUCH")
    def preload():
        for nm in ("A", "B"):
            e.label("L_PRELOAD" + nm)
            for k in range(4): e(f"s_call_b64 s[{sRET2}:{sRET2+1}], L_MOVEV{k}")
            e(f"s_mov_b32 s{sA0}, 0", "s_branch L_PRELD" + nm)
    ool.append(preload)
    e(f"s_mov_b32 s{sA0}, s{sLAY}", f"s_mov_b32 s{sA1}, 0")
    e(f"s_cmp_ge_u32 s{sC}, 28", f"s_cselect_b32 s{sT}, 7, s{sW}", f"s_cmp_eq_u32 s{sLAY}, 0", "s_cbranch_scc1 L_X0", f"s_cmp_lg_u32 s{sT}, 0", "s_cbranch_scc1 L_NOX")
    e.label("L_XGO")
    if not opt.get("xnoack"): e("s_waitcnt vmcnt(0)")
    if opt.get("xdelay"): e(f"s_sleep {opt['xdelay']}")
    def xissue():
        for i in range(8):
            e(f"buffer_load_dwordx4 {vr(24+4*i,4)}, v{vL16}, {srd(WS)}, s{sX1L if i < 4 else sOB2} offen offset:{1024*(i&3)} sc1")
    def xprep(): e(f"v_lshlrev_b32 v58, 16, v{vXOLD}", f"v_and_b32 v59, 0xffff0000, v{vXOLD}")
    e.label("L_XPOLL")
    xissue(); xprep()
    e(f"s_cmp_eq_u32 s{sA0}, 2", "s_cbranch_scc1 L_PRELOADA")
    if XR: e(f"s_sleep {XR}")
    e.label("L_PRELDA")
    if XR:
        e.label("L_XROLL"); xissue()
    for i in range(1, 8):
        e(f"s_waitcnt vmcnt({7-i+(8 if XR else 0)})")
        for r in range(2):
            e(f"v_pk_add_f32 {vr(60+2*r,2)}, {vr((24 if i == 1 else 60)+2*r,2)}, {vr(24+4*i+2*r,2)}")
    e.label("L_XSUM")
    e("v_permlane32_swap_b32 v60, v62", "v_permlane32_swap_b32 v61, v63", "v_pk_add_f32 v[60:61], v[60:61], v[62:63]")
    e("v_cmp_u_f32 vcc, v60, v61", "v_cvt_pk_bf16_f32 v62, v60, v61", "s_cbranch_vccnz L_XNAN")
    e.label("L_XOK")
    def wqb_in():
        if RW:
            wq_move(WqB, vPT)
            e(f"s_mov_b32 s{sLIMX}, 128", f"s_mov_b32 s{sLIM}, 128", f"s_min_u32 s{sSTOP}, s{sNSP}, s{sLIM}")
    def xool():
        e.label("L_XNAN")
        check_max(range(24, 56), 57)
        if XR:
            e(f"s_cbranch_vccnz L_XRF", f"s_cmp_eq_u32 s{sA1}, 77", "s_cbranch_scc1 L_XOK", f"s_mov_b32 s{sA1}, 77", "s_branch L_XADD")
            e.label("L_XRF")
            spin_down(); e("s_branch L_XROLL")
        else:
            e("s_cbranch_vccz L_XOK")
            spin_down(); e("s_branch L_XPOLL")
        e.label("L_XS2")
        spin_down()
        if XW2:
            def setflag(v): e(f"v_mov_b32 v57, {FLAG}", f"v_mov_b32 v58, {v}", "ds_write_b32 v57, v58")
            setflag(3)
            e(f"v_lshlrev_b32 v9, 4, v{vL16}")
            e(arm("XW"))
            e.label("L_XWP")
            e("s_mov_b32 exec_hi, 0", f"buffer_load_dword v8, v9, {srd(WS)}, s{sX1L} offen sc1", "s_mov_b64 exec, -1", "s_branch L_XWS")
            e.label("L_XWC")
            e("s_mov_b32 exec_hi, 0", "v_cmp_eq_u32 vcc, -1, v8", "s_mov_b64 exec, -1", "s_cbranch_vccz L_XWD")
            spin_down(); e("s_branch L_XWP")
            stream_round("L_XWS", "L_XWP", "L_XWC", 1, "XW")
            e.label("L_XWD")
            setflag(4)
            e("s_branch L_XS1")
        elif SITE["X"][0] == 0:
            for _ in range(BF // 2): call_pump()
            e("s_branch L_XS1")
        e.label("L_XS0")
        if SITE["X"][0] == 0: e("s_waitcnt vmcnt(0)")
        e.label("L_XS1")
        xissue(); e("s_branch L_XS")
        e.label("L_XSC")
        check_max(range(24, 56), 57)
        e("s_cbranch_vccnz L_XS2")
        xprep()
        e.label("L_XADD")
        for i in range(1, 8):
            for r in range(2):
                e(f"v_pk_add_f32 {vr(60+2*r,2)}, {vr((24 if i == 1 else 60)+2*r,2)}, {vr(24+4*i+2*r,2)}")
        e.nop(2); e("s_branch L_XSUM")
        e.label("L_X0")
        e(f"s_mov_b32 s{sT+5}, s{sT}")
        for _ in range(BX // 2): call_pump()
        if opt.get("c28", 1): e(f"s_cmp_ge_u32 s{sC}, 28", "s_cbranch_scc1 L_NODR2")
        e(arm("X"), f"s_cmp_eq_u32 s{sT+5}, 0", "s_cbranch_scc1 L_XS0", f"s_cmp_eq_u32 s{sW}, 0", "s_cbranch_scc1 L_X0P")
        wqb_in()
        if OROLL: drain_stream(DC, 12)
        flag_wait("L_XFW", 4)
        e("s_branch L_NODR2")
        e.label("L_X0P")
        if XW2 and SITE["XP"][0]: e(f"v_mov_b32 v57, {FLAG}", "v_mov_b32 v58, 3", "ds_write_b32 v57, v58")
        e(f"v_lshlrev_b32 v47, 4, v{vL16}")
        probe("L_XPR", f"buffer_load_dword v46, v47, {srd(WS)}, s{sBK} offen sc1", "0x0fffffff", "L_X0F", "XP")
        e.label("L_X0F")
        e(f"v_mov_b32 v57, {FLAG}", "v_mov_b32 v58, 5", "ds_write_b32 v57, v58")
        wqb_in()
        e("s_branch L_NODR2")
    ool.append(xool)
    stream_round("L_XS", "L_XS1", "L_XSC", 8, "X")
    e("v_lshlrev_b32 v60, 16, v62", "v_and_b32 v61, 0xffff0000, v62", "v_pk_add_f32 v[58:59], v[58:59], v[60:61]",
      f"v_cvt_pk_bf16_f32 v{vXOLD}, v58, v59", f"v_min_u32 v57, -2, v{vXOLD}")
    publish(f"buffer_store_dword v57, v{vX1r}, {{r}}, s{sXO} offen {{fl}}")
    stamp(8)
    e(f"s_cmp_eq_u32 s{sLAY}, 3", "s_cbranch_scc1 L_END", f"s_cmp_eq_u32 s{sLAY}, 0", "s_cbranch_scc1 L_X0F", "s_branch L_NODR2")
    e.label("L_NOX")
    if opt.get("wb"):
        e(f"s_cmp_lg_u32 s{sW}, 3", "s_cbranch_scc1 L_NOWB", f"s_cmp_lt_u32 s{sC}, {32 - opt['wb']}", "s_cbranch_scc1 L_NOWB", "buffer_wbl2 sc1")
        e.label("L_NOWB")
    e(f"s_cmp_eq_u32 s{sA0}, 2", "s_cbranch_scc1 L_PRELOADB")
    e.label("L_PRELDB")
    e.label("L_NODR2")
    e(f"s_add_u32 s{SX}, s32, s{sBK}", f"s_addc_u32 s{SX+1}, s33, 0")
    e(f"s_add_u32 s{sQB}, s{sBK}, 0x2000", f"s_add_u32 s{sOB}, s{sBK}, 0x4000", f"s_add_u32 s{sST}, s{sBK}, 0xC000",
      f"s_add_u32 s{sX1}, s{sX1}, 0x38000", f"s_add_u32 s{sX1L}, s{sX1L}, 0x38000", f"s_add_u32 s{sLAY}, s{sLAY}, 1")
    collect()
    if debug: e(f"s_add_u32 s{sSTB}, s{sSTB}, 16")
    stamp(0)
    e(f"s_cmp_eq_u32 s{sLAY}, 2", "s_cbranch_scc1 L_QAP", f"s_cmp_eq_u32 s{sLAY}, 3", "s_cbranch_scc1 L_QBP")
    if not EB and not RW and not MB: pump_until(WQBM + 1, DS)
    e("s_branch L_QBP")
    if WBE:
        e.label("L_ENDW")
        e(f"s_cmp_lg_u32 s{sW}, 3", "s_cbranch_scc1 L_END", f"s_cmp_lg_u32 s{sC}, 27", "s_cbranch_scc1 L_END", "buffer_wbl2 sc1")
    e.label("L_END")
    if debug:
        e("s_mov_b64 exec, -1"); collect(); stamp(9); e("s_waitcnt vmcnt(0)")
        e(f"s_lshl_b32 s{sT}, s2, 2", f"s_add_u32 s{sT}, s{sT}, s{sW}", f"s_lshl_b32 s{sT}, s{sT}, 8", f"s_add_u32 s{sT}, s{sT}, {STAMPS}",
          f"v_lshrrev_b32 v8, 2, v{vL16}", f"v_add_u32 v8, s{sT}, v8", f"global_store_dword v8, v{vDBG}, s[32:33]")
    e.label("L_EXIT")
    e("s_endpgm")

    e.label("L_PUMP")
    e(f"s_cmp_ge_u32 s{sIT}, s{sSTOP}", "s_cbranch_scc1 L_PSPEC")
    e.label("L_PGEN")
    pair()
    e.label("L_PRET")
    e(f"s_setpc_b64 s[{sRET}:{sRET+1}]")

    i = 0
    while i < len(ool):
        ool[i](); i += 1

    for k in range(4):
        e.label(f"L_MOVEV{k}")
        for tau in range(4):
            for r0 in range(2):
                e(f"v_xor_b32 v{vPT}, {(tau << 5) | (r0 << 4) | ((k >> 1) << 16)}, v{vVRD}")
                for r in (r0, r0 + 2):
                    e(f"ds_read_b64_tr_b16 {vr(AV+32*k+8*tau+2*r,2)}, v{vPT} offset:{(k & 1)*32768 + (r & 1)*512 + (r >> 1)*2048}")
        e(f"s_setpc_b64 s[{sRET2}:{sRET2+1}]")

    def kmove(base, t):
        if opt.get("nokmove"): return
        e("s_waitcnt vmcnt(6)")
        for jj in range(4):
            e(f"v_xor_b32 v{vPT}, {(jj << 6) | ((t >> 1) << 16)}, v{vKRD}")
            e(f"ds_read_b128 {ar(base+32*t+4*jj,4)}, v{vPT} offset:{(t & 1)*32768}", f"ds_read_b128 {ar(base+32*t+16+4*jj,4)}, v{vPT} offset:{(t & 1)*32768+256}")
        e("s_waitcnt lgkmcnt(0)")
    def pst(l):
        if debug and opt.get("pstamps"):
            e("s_memrealtime s[96:97]", "s_waitcnt lgkmcnt(0)", f"v_writelane_b32 v{vDBG}, s96, {l}")
    def wone(ptr, isQ, d):
        e(f"s_mov_b32 s{sT+3}, s{KV}", f"s_mov_b32 s{sT+4}, s{KV+1}")
        wdma_addr(isQ, vPT); wdma_issue(ptr, isQ, vPT, [d])
        e(f"s_mov_b32 s{KV}, s{sT+3}", f"s_mov_b32 s{KV+1}, s{sT+4}", f"s_mov_b32 s{KV+2}, 0x20000")
    act = {}
    def at(k, f): act.setdefault(k, []).append(f)
    for t in range(4):
        at(14 + 8 * t, lambda t=t: kmove(0, t)); at(78 + 8 * t, lambda t=t: kmove(128, t))
    at(32, lambda: switch(12, False)); at(64, lambda: switch(20, True)); at(96, lambda: switch(22, False))
    at(WOA[3] + 8, lambda: (e("s_waitcnt vmcnt(6)"), wo_move(WoA, vPT)))
    def kv_save(): e(f"s_mov_b32 s{sT+3}, s{KV}", f"s_mov_b32 s{sT+4}, s{KV+1}")
    def kv_back(): e(f"s_mov_b32 s{KV}, s{sT+3}", f"s_mov_b32 s{KV+1}, s{sT+4}", f"s_mov_b32 s{KV+2}, 0x20000")
    def row0():
        e(f"s_lshl_b32 s{sT}, s{sC}, 2", f"s_add_u32 s{sT}, s{sT}, s{sW}", f"s_lshl_b32 s{sT}, s{sT}, 2")
    def brow(d):
        kv_save(); row0()
        e(f"s_add_u32 s{sT}, s{sT}, {d}", f"s_lshl_b32 s{sT}, s{sT}, 13", f"s_lshl_b32 s{sT+1}, s{sJ}, 10", f"s_add_u32 s{sT}, s{sT}, s{sT+1}", f"s_lshl_b32 s{sT+1}, s{sW}, 12",
          f"s_add_u32 m0, s{sT+1}, {STG+1024*d}", f"s_mov_b32 s{KV}, s24", f"s_mov_b32 s{KV+1}, s25", f"s_mov_b32 s{KV+2}, 3670016",
          f"buffer_load_dwordx4 v{vL16}, {srd(KV)}, s{sT} offen {WFL} lds")
        kv_back()
    def bstore():
        e("s_waitcnt vmcnt(6)", f"s_cmp_ge_u32 s{sC}, 28", "s_cbranch_scc1 L_BSTX")
        e(f"v_bfe_u32 v{vPT}, v{vL16}, 5, 2", f"v_lshlrev_b32 v{vPT}, 10, v{vPT}", f"v_and_or_b32 v{vPT}, v{vL16}, 16, v{vPT}", f"v_lshrrev_b32 v{WqB}, 7, v{vL16}",
          f"v_lshl_add_u32 v{vPT}, v{WqB}, 5, v{vPT}", f"s_lshl_b32 s{sT}, s{sW}, 12", f"s_add_u32 s{sT}, s{sT}, {STG}", f"v_add_u32 v{vPT}, s{sT}, v{vPT}")
        for k in range(4): e(f"ds_read_b128 {ar(200+4*k,4)}, v{vPT} offset:{256*k}")
        kv_save()
        e(f"s_lshl_b32 s{sT}, s{sJ}, 19", f"s_add_u32 s{sT}, s{sT}, {WX}", f"s_add_u32 s{KV}, s32, s{sT}", f"s_addc_u32 s{KV+1}, s33, 0", f"s_mov_b32 s{KV+2}, 0x80000",
          f"v_lshlrev_b32 v{WqB}, 14, v{WqB}", f"v_and_b32 v{vPT}, 0x70, v{vL16}", f"v_add_u32 v{vPT}, v{vPT}, v{WqB}")
        row0()
        e(f"s_lshl_b32 s{sT}, s{sT}, 5", "s_waitcnt lgkmcnt(0)")
        for k in range(4):
            e(f"buffer_store_dwordx4 {ar(200+4*k,4)}, v{vPT}, {srd(KV)}, s{sT} offen {opt.get('bsf', 'sc1')}", f"s_add_u32 s{sT}, s{sT}, 0x20000")
        kv_back()
        e.label("L_BSTX")
    if RW:
        for d in range(4): at(26 + 2 * d, lambda d=d: brow(d))
        at(40, bstore)
    def only(lo, f):
        l_ = L("on")
        e(f"s_cmp_ge_u32 s{sC}, 28", f"s_cbranch_scc{1 if lo else 0} {l_}"); f(); e.label(l_)
    if SPLITB:
        at(WQBM, lambda: only(True, lambda: (e("s_waitcnt vmcnt(6)"), wq_move(WqB, vPT))))
        for d in range(4):
            at(WQB[d], lambda d=d: only(True, lambda: wone(24, True, d))); at(WQH[d], lambda d=d: only(False, lambda: wone(24, True, d)))
        at(WQH[3] + 8, lambda: only(False, lambda: (e("s_waitcnt vmcnt(6)"), wq_move(WqB, vPT))))
    elif not EB and not RW: at(WQBM, lambda: (e("s_waitcnt vmcnt(6)"), wq_move(WqB, vPT)))
    for i, k in enumerate(WQA): at(k, lambda d=W0 + i: wone(14, True, d))
    for d in range(4):
        at(WOA[d], lambda d=d: wone(16, False, d)); (at(WQB[d], lambda d=d: wone(24, True, d)) if WQB and not SPLITB else None); at(WOB[d], lambda d=d: wone(26, False, d))
    specials = sorted(act)
    wq_items = set(WQA) | set(WQB)
    XW = opt.get("xw", 1)
    PST = {14: 10, 32: 11, 42: 12, 40: 12, 64: 13, 78: 14, 96: 26, 102: 27}
    e.label("L_PSPEC")
    e(f"s_cmp_ge_u32 s{sIT}, s{sLIM}", "s_cbranch_scc1 L_PRET")
    half = len(specials) // 2
    e(f"s_cmp_ge_u32 s{sIT}, {specials[half]}", "s_cbranch_scc1 L_PSPEC2")
    for k in specials[:half]:
        e(f"s_cmp_eq_u32 s{sIT}, {k}", f"s_cbranch_scc1 L_SP{k}")
    e.label("L_PSPEC2")
    for k in specials[half:-1]:
        e(f"s_cmp_eq_u32 s{sIT}, {k}", f"s_cbranch_scc1 L_SP{k}")
    for k in [specials[-1]] + specials[:-1]:
        e.label(f"L_SP{k}")
        if k in PST: pst(PST[k])
        for f in act[k]: f()
        nxt = specials[specials.index(k) + 1] if k != specials[-1] else 999
        e(f"s_mov_b32 s{sNSP}, {nxt}", f"s_min_u32 s{sSTOP}, s{sNSP}, s{sLIM}")
        if k in wq_items and XW:
            for x in range(XW):
                if x: e(f"s_cmp_ge_u32 s{sIT}, s{sSTOP}", "s_cbranch_scc1 L_PRET")
                pair()
            e("s_branch L_PUMP")
        else:
            e("s_branch L_PGEN")
    e.raw('.section .rodata,"a"'); e.raw(".p2align 6"); e.raw(f".amdhsa_kernel {KNAME}")
    for l in (".amdhsa_next_free_vgpr 512", ".amdhsa_next_free_sgpr 102", ".amdhsa_accum_offset 256", ".amdhsa_group_segment_fixed_size 0",
              ".amdhsa_kernarg_size 104", ".amdhsa_user_sgpr_count 2", ".amdhsa_user_sgpr_kernarg_segment_ptr 1", ".amdhsa_system_sgpr_workgroup_id_x 1",
              ".amdhsa_float_denorm_mode_32 3"):
        e.raw("  " + l)
    e.raw(".end_amdhsa_kernel")
    return e.text()

if __name__ == "__main__":
    dbg = "--debug" in sys.argv
    out = [a for a in sys.argv[1:] if not a.startswith("--")]
    txt = gen(dbg)
    open(out[0] if out else "k.s", "w").write(txt)
```

```python
import sys, struct
sys.path.insert(0, "gen")
from asmlib import Asm

KNAME = "interleave_layers__sliding_block_cached__sliding_block_cached__decode_kernel"
HEADER = open("interleave_layers__sliding_block_cached__sliding_block_cached__decode.s.ref").read().split("; Override launch")[0]

def f2u(x): return struct.unpack("<I", struct.pack("<f", x))[0]

STG = 131072
SCR = 147456
PA = SCR
SL = SCR + 4096
FLAG = SCR + 4160
QL = SCR + 13312
RED = SCR + 4608
RS = 2048 + 64
QB0 = 0x0
BLK = 0x10000
BSZ = 0xD000
X1 = BLK + 32 * BSZ
GFL = X1 + 4 * 0x38000
WSEND = GFL + 1024
HINT = 0xC800
STAMPS = 0x300000
WX = 0x400000
assert WSEND <= STAMPS
sJ, sC = 34, 35
KV, SF, WS, SX, SS = 36, 40, 44, 48, 4
sW, sSL, sRM, sIT, sLIM = 52, 53, 54, 55, 56
sSTOP, sNSP = 57, 59
sRET, sRET2 = 60, 62
sY, sCNT = 64, 65
sLAY, sSPIN = 66, 68
sQB, sOB, sOB2, sST, sX1, sBK = 69, 70, 71, 72, 73, 74
sA0, sA1 = 75, 76
sT = 77
sMI8, sMQ = 86, 88
sB, sS, sOH, sNQ, sEXP = 90, 91, 92, 93, 94
sX1L = 95
sSTB = 98
sODD = 8
sLIMX = 58
sXO = 67
vL16, vXOLD, vDBG, vB, vKRD, vPT, vVRD, vIDX = 0, 1, 2, 3, 4, 5, 6, 7
WqA, WoA, WqB = 64, 80, 96
vX0, vX1r, vRW, aD, aCS, aDG, aGS, vQST, vQLD, vPW, vOST, vOLD, vSLD, aOR, vX1ST, vSEL = range(112, 128)
AV = 128

def srd(r): return f"s[{r}:{r+3}]"
def vr(a, n): return f"v[{a}:{a+n-1}]"
def ar(a, n): return f"a[{a}:{a+n-1}]"
DPP = "row_mask:0xf bank_mask:0xf"

def gen(debug=False, opt=None):
    opt = opt or {}
    KFL = opt.get("kvflag", "nt"); WFL = opt.get("wflag", "nt")
    DS = opt.get("ds", 6)
    DP = opt.get("dp", 4)
    PRE = opt.get("pre", 4)
    XPRE = opt.get("xpre", 8)
    ROLL = opt.get("roll", 1)
    W0 = opt.get("w0", 4)
    WQA = opt.get("wqa", [])
    WQB = opt.get("wqb", [66, 70, 74, 78])
    EB = opt.get("eb", 0)
    if EB: WQB = []
    SPEC0 = min(WQA + [14])
    LIM0 = 26
    HG = opt.get("hg", 0)
    HQ = opt.get("hq", 0)
    QROT = opt.get("qrot", 16)
    RW = opt.get("rw", 0)
    WOA = [44, 48, 52, 56] if RW else [26, 34, 42, 50]
    WOB = [112, 116, 120, 124] if RW else [90, 98, 106, 114]
    if RW: WQB = []
    MB = opt.get("mb", 1)
    if MB:
        WQB = opt.get("wqb", [26, 30, 34, 38]); WOA = [WQB[3] + 10 + 2 * d for d in range(4)]
    WQBM = WQB[3] + 8 if WQB else 0
    SPLITB = opt.get("splitb", 1) and MB
    WL = opt.get("wl", 3)
    if WL & 2: WOB = [104, 110, 116, 122]
    if WL == 2: WOA = [26, 34, 42, 50]
    if WL == 3: LIM0 = 64
    WQH = opt.get("wqh", [66, 68, 70, 72])
    e = Asm()
    uid = [0]
    def L(p):
        uid[0] += 1; return f"L_{p}_{uid[0]}"
    ool = []
    SP = [0, 18, 84, 96, 100]
    sset = opt.get("stamps", [])
    clk = opt.get("clk", "s_memrealtime")
    def stamp(i):
        if not debug: return
        if i in (15, 9):
            e("s_memrealtime s[96:97]", f"s_add_u32 m0, s{sSTB}, {i}", "s_waitcnt lgkmcnt(0)", f"v_writelane_b32 v{vDBG}, s96, m0")
        elif i in sset:
            p = SP[sset.index(i)]
            e(f"{clk} s[{p}:{p+1}]")
    def collect():
        if not debug or not sset: return
        e("s_waitcnt lgkmcnt(0)")
        for n_, i in enumerate(sset):
            e(f"s_add_u32 m0, s{sSTB}, {i if i < 15 else i - 10}", "s_nop 0", f"v_writelane_b32 v{vDBG}, s{SP[n_]}, m0", f"s_mov_b32 s{SP[n_]}, 0")
    def pair():
        e(f"s_lshr_b32 s{sY}, s{sRM}, 7", f"s_mov_b32 m0, s{sRM}", f"s_and_b32 s{sY}, s{sY}, 0xc0", f"v_xor_b32 v{vPT}, s{sY}, v{vB}",
          f"buffer_load_dwordx4 v{vPT}, {srd(KV)}, m0 offen {KFL} lds", f"s_add_u32 m0, s{sRM}, 4096", f"v_xor_b32 v{vPT}, 32, v{vPT}", f"s_add_u32 s{sRM}, s{sRM}, 8192",
          f"buffer_load_dwordx4 v{vPT}, {srd(KV)}, m0 offen {KFL} lds", f"s_add_u32 s{sIT}, s{sIT}, 2")
    def pst0(l):
        if debug and opt.get("start"):
            e("s_memrealtime s[96:97]", "s_waitcnt lgkmcnt(0)", f"v_writelane_b32 v{vDBG}, s96, {l}")
    def spin_down(): e(f"s_sub_u32 s{sSPIN}, s{sSPIN}, 1", "s_cbranch_scc1 L_END")
    def call_pump():
        e(f"s_call_b64 s[{sRET}:{sRET+1}], L_PUMP")
    def pump_until(n, D):
        a, b = L("pu"), L("pud")
        e.label(a)
        e(f"s_cmp_ge_u32 s{sIT}, {n}", f"s_cbranch_scc1 {b}", f"s_waitcnt vmcnt({D-2})")
        call_pump()
        e(f"s_branch {a}")
        e.label(b)
    def landed(m, D):
        pump_until(m + D, D); e(f"s_waitcnt vmcnt({D})")
    DM = opt.get("dm", 0); XCC = opt.get("xcc", 2)
    CAP = opt.get("cap", [104, 104, 128] if WL & 2 else [128, 128, 128])
    def setlim(v): e(f"s_mov_b32 s{sLIM}, {v}", f"s_min_u32 s{sSTOP}, s{sNSP}, s{sLIM}")
    DA = opt.get("da", [8, 10, 8, 8, 6])
    XW2 = opt.get("xw2", 0); OROLL = opt.get("oroll", 0)
    XR = opt.get("xr", 0); WBE = opt.get("wbend", 0)
    D3 = opt.get("d3", 12); P1 = opt.get("p1", 4)
    DC = opt.get("dc", 6)
    DO = opt.get("do", 6); BX = opt.get("bx", 0); BF = opt.get("bf", 2); D2 = opt.get("d2", 10)
    POST = opt.get("post", 1)
    IPR = opt.get("ipr", 2)
    NR = opt.get("nr", 3)
    SITE = dict(QA=(IPR, NR), Q=(IPR, NR), A=(IPR, NR), OP=(IPR, NR), X=(IPR, NR), XP=(IPR, NR), XW=(IPR, NR), AP=(2, 4), QP=(IPR, NR), OR=(4, 2), AB=(IPR, NR))
    SITE.update({k: tuple(v) for k, v in opt.get("site", {}).items()})
    def stream_round(a, again, chk, P, site):
        ipr, nr = SITE[site]
        def f():
            e.label(a)
            if ipr == 0:
                e("s_waitcnt vmcnt(0)", f"s_branch {chk}"); return
            for _ in range(ipr // 2):
                e(f"s_waitcnt vmcnt({ipr*nr-2+nr*P-(DM if site in ('OP', 'X', 'Q', 'XP') else 0)})"); call_pump()
            e(f"s_waitcnt vmcnt({(nr-1)*(P+ipr)+ipr})", f"s_cmp_lt_u32 s{sIT}, s{sLIM}", f"s_cbranch_scc1 {a}_w", "s_waitcnt vmcnt(0)", f"s_branch {chk}")
            e.label(a + "_w")
            e(f"s_sub_u32 s{sCNT}, s{sCNT}, 1", f"s_cbranch_scc0 {again}", f"s_mov_b32 s{sCNT}, 0", f"s_branch {chk}")
        ool.append(f)
    def arm(site): return f"s_mov_b32 s{sCNT}, {SITE[site][1]-1}"
    def probe(name, load, lanes, done, site, data=46):
        e(arm(site))
        e.label(name)
        e(f"s_mov_b32 exec_lo, {lanes}", "s_mov_b32 exec_hi, 0", load, "s_mov_b64 exec, -1", f"s_branch {name}S")
        e.label(name + "C")
        e(f"s_mov_b32 exec_lo, {lanes}", "s_mov_b32 exec_hi, 0", f"v_cmp_eq_u32 vcc, -1, v{data}", "s_mov_b64 exec, -1", f"s_cbranch_vccz {done}")
        spin_down(); e(f"s_branch {name}")
        stream_round(name + "S", name, name + "C", 1, site)
    def flag_wait(name, val):
        e(f"v_mov_b32 v47, {FLAG}")
        e.label(name)
        if XW2:
            e("ds_read_b32 v46, v47")
            spin_down()
            e("s_waitcnt lgkmcnt(0)", f"v_readfirstlane_b32 s{sT}, v46", f"s_cmp_ge_u32 s{sT}, 5", f"s_cbranch_scc1 {name}x", f"s_cmp_lg_u32 s{sT}, 3", f"s_cbranch_scc1 {name}")
            e(f"s_waitcnt vmcnt({DC-2})"); call_pump(); e(f"s_branch {name}")
            e.label(name + "x")
            return
        if DC:
            e(f"s_waitcnt vmcnt({DC-2-DM})"); call_pump()
        e("ds_read_b32 v46, v47")
        spin_down()
        e("s_waitcnt lgkmcnt(0)", f"v_readfirstlane_b32 s{sT}, v46", f"s_cmp_lt_u32 s{sT}, {val}", f"s_cbranch_scc1 {name}")
    def drain_stream(D=None, P=8, dm=0):
        D = D or DS
        b_ = L("dr")
        for _ in range(D // 2):
            e(f"s_waitcnt vmcnt({D-2+P-dm})"); call_pump()
        e(f"s_waitcnt vmcnt({D})", f"s_cmp_lt_u32 s{sIT}, s{sLIM}", f"s_cbranch_scc1 {b_}", "s_waitcnt vmcnt(0)")
        e.label(b_)
    def poll(name, issue, P, check, first, filler, gate, undo=None, special=None, cond=f"s_cmp_lt_u32 s{sLAY}, 2", light=None):
        e.label(f"L_{name}P")
        e(cond, f"s_cbranch_scc1 L_{name}S0")
        gate()
        issue()
        filler()
        e.label(f"L_{name}R")
        if ROLL:
            issue(); e(f"s_waitcnt vmcnt({P})")
        else:
            e("s_waitcnt vmcnt(0)")
        e.label(f"L_{name}C")
        check()
        first()
        e(f"s_cbranch_vccnz L_{name}F")
        e.label(f"L_{name}OK")
        def f():
            e.label(f"L_{name}F")
            if special: special()
            if undo: undo()
            spin_down()
            e(cond)
            if ROLL:
                e(f"s_cbranch_scc0 L_{name}R", f"s_branch L_{name}S1")
            else:
                e(f"s_cbranch_scc1 L_{name}S1"); issue(); e(f"s_branch L_{name}R")
            e.label(f"L_{name}S0")
            e(arm(name if name in SITE else name[0]))
            filler()
            if light:
                e(f"s_branch L_{name}S1")
                e.label(f"L_{name}LC")
                light[2](); e(f"s_cbranch_vccnz L_{name}LF")
                light[3](); first(); e(f"s_branch L_{name}OK")
                e.label(f"L_{name}LF")
                spin_down()
            e.label(f"L_{name}S1")
            (light[1] if light else issue)()
        ool.append(f)
        stream_round(f"L_{name}S", f"L_{name}S1", f"L_{name}LC" if light else f"L_{name}C", light[0] if light else P, name if name in SITE else name[0])
    def pre_issue(n=None):
        n = PRE if n is None else n
        if n == 0: return
        a, b = L("pn"), L("pnd")
        e(f"s_cmp_lt_u32 s{sIT}, s{sLIM}", f"s_cbranch_scc1 {a}")
        e.label(b)
        def f():
            e.label(a)
            for _ in range(n // 2): call_pump()
            e(f"s_branch {b}")
        ool.append(f)
    def publish(fmt, pre=None):
        if pre: e(pre)
        e(fmt.format(r=srd(SF), fl=""), fmt.format(r=srd(SS), fl="sc1"))
    def check_max(rs, t):
        rs = list(rs)
        e(f"v_max3_u32 v{t}, v{rs[0]}, v{rs[1]}, v{rs[2]}")
        rest = rs[3:]
        while len(rest) >= 2:
            e(f"v_max3_u32 v{t}, v{t}, v{rest[0]}, v{rest[1]}"); rest = rest[2:]
        if rest: e(f"v_max_u32 v{t}, v{t}, v{rest[0]}")
        e(f"v_cmp_eq_u32 vcc, -1, v{t}")
    def switch(ptr, isK):
        e(f"s_add_u32 s{KV}, s{ptr}, s{sSL}", f"s_addc_u32 s{KV+1}, s{ptr+1}, 0", f"s_mov_b32 s{KV+2}, 0x20000", f"s_lshl_b32 s{sRM}, s{sW}, 10")
        e(f"v_lshrrev_b32 v{vPT}, 5, v{vL16}", f"v_and_b32 v{vPT}, 16, v{vPT}", f"v_xor_b32 v{vB}, v{vPT}, v{vL16}")
    def wdma_addr(isQ, t0):
        if isQ:
            e(f"v_lshrrev_b32 v{t0}, 5, v{vL16}", f"v_lshlrev_b32 v{t0}, 13, v{t0}", f"v_and_or_b32 v{t0}, v{vL16}, 16, v{t0}",
              f"s_lshl_b32 s{sT}, s{sW}, 20", f"s_lshl_b32 s{sT+1}, s{sJ}, 10", f"s_add_u32 s{sT}, s{sT}, s{sT+1}", f"s_xor_b32 s{sT+1}, s{sC}, {QROT}", f"s_lshl_b32 s{sT+1}, s{sT+1}, 5", f"s_add_u32 s{sT}, s{sT}, s{sT+1}")
        else:
            e(f"v_lshrrev_b32 v{t0}, 6, v{vL16}", f"v_mul_u32_u24 v{t0}, 896, v{t0}", f"v_and_or_b32 v{t0}, v{vL16}, 48, v{t0}",
              f"s_lshl_b32 s{sT}, s{sJ}, 9", f"s_lshl_b32 s{sT+1}, s{sOH}, 8", f"s_add_u32 s{sT}, s{sT}, s{sT+1}", f"s_lshl_b32 s{sT+1}, s{sW}, 6", f"s_add_u32 s{sT}, s{sT}, s{sT+1}",
              f"s_mul_i32 s{sT}, s{sT}, 896", f"s_lshl_b32 s{sT+1}, s{sNQ}, 6", f"s_add_u32 s{sT}, s{sT}, s{sT+1}",
              f"s_cmp_ge_u32 s{sC}, 28", f"s_cselect_b32 s{sT}, 0x40000000, s{sT}")
        e(f"s_lshl_b32 s{sT+1}, s{sW}, 12", f"s_add_u32 s{sT+1}, s{sT+1}, {STG}")
    def wdma_issue(ptr, isQ, t0, ds):
        step = 262144 if isQ else 14336
        e(f"s_mov_b32 s{KV}, s{ptr}", f"s_mov_b32 s{KV+1}, s{ptr+1}", f"s_mov_b32 s{KV+2}, {0 if (opt.get('now') or (opt.get('nowqb') and ptr == 24) or ptr in opt.get('nop', [])) else 3670016}")
        for d in ds:
            e(f"s_add_u32 m0, s{sT+1}, {1024*d}", f"s_add_u32 s{sT+2}, s{sT}, {step*d}")
            e(f"buffer_load_dwordx4 v{t0}, {srd(KV)}, s{sT+2} offen {WFL} lds")
    def wfetch(ptr, isQ):
        e(f"s_mov_b32 s{sT+3}, s{KV}", f"s_mov_b32 s{sT+4}, s{KV+1}")
        wdma_addr(isQ, vPT); wdma_issue(ptr, isQ, vPT, range(4))
        e(f"s_mov_b32 s{KV}, s{sT+3}", f"s_mov_b32 s{KV+1}, s{sT+4}", f"s_mov_b32 s{KV+2}, 0x20000")
    def wq_move(dst, t, stg=STG):
        e(f"v_lshrrev_b32 v{t}, 8, v{vL16}", f"v_lshlrev_b32 v{t}, 8, v{t}", f"v_bfe_u32 v{dst}, v{vL16}, 4, 4", f"v_lshl_add_u32 v{t}, v{dst}, 3, v{t}",
          f"s_lshl_b32 s{sT}, s{sW}, 12", f"s_add_u32 s{sT}, s{sT}, {stg}", f"v_add_u32 v{t}, s{sT}, v{t}")
        for d in range(4):
            for hh in range(2):
                e(f"ds_read_b64_tr_b16 {vr(dst+4*d+2*hh,2)}, v{t} offset:{d*1024+hh*128}")
        e("s_waitcnt lgkmcnt(0)")
    def wo_move(dst, t):
        e(f"v_lshrrev_b32 v{t}, 8, v{vL16}", f"v_lshlrev_b32 v{t}, 3, v{t}", f"v_bfe_u32 v{dst}, v{vL16}, 6, 2", f"v_add_u32 v{t}, v{t}, v{dst}", f"v_lshlrev_b32 v{t}, 6, v{t}",
          f"v_bfe_u32 v{dst}, v{vL16}, 4, 2", f"v_lshl_add_u32 v{t}, v{dst}, 3, v{t}",
          f"s_lshl_b32 s{sT}, s{sW}, 12", f"s_add_u32 s{sT}, s{sT}, {STG}", f"v_add_u32 v{t}, s{sT}, v{t}")
        for ks in range(2):
            for nt in range(2):
                for hh in range(2):
                    e(f"ds_read_b64_tr_b16 {vr(dst+8*ks+4*nt+2*hh,2)}, v{t} offset:{ks*2048+hh*256+nt*32}")
        e("s_waitcnt lgkmcnt(0)")
    def x2_voff(d, t):
        e(f"v_bfe_u32 v{d}, v{vL16}, 6, 3", f"v_mul_u32_u24 v{d}, 896, v{d}", f"v_bfe_u32 v{t}, v{vL16}, 4, 2", f"v_lshl_add_u32 v{d}, v{t}, 3, v{d}",
          f"v_lshrrev_b32 v{t}, 9, v{vL16}", f"v_lshl_add_u32 v{d}, v{t}, 2, v{d}", f"s_lshl_b32 s{sT}, s{sC}, 5", f"v_add_u32 v{d}, s{sT}, v{d}")
    def q_prep():
        e(f"s_not_b64 exec, s[{sMI8}:{sMI8+1}]")
        for i in range(16): e(f"v_mov_b32 v{8+i}, 0x3f803f80")
        e("s_mov_b64 exec, -1")

    e.raw(HEADER.rstrip())
    e.raw("; @launch grid=(256,1,1) block=(256,1,1) lds=163840")
    e.raw('.amdgcn_target "amdgcn-amd-amdhsa--gfx950"')
    e.raw(".text"); e.raw(f".globl {KNAME}"); e.raw(".p2align 8"); e.raw(f".type {KNAME},@function")
    e.label(KNAME)
    if debug and opt.get("start"): e("s_memrealtime s[100:101]")
    e("s_cmp_ge_u32 s2, 256", "s_cbranch_scc1 L_EXIT")
    e("s_load_dwordx16 s[8:23], s[0:1], 0", "s_load_dwordx8 s[24:31], s[0:1], 64", "s_load_dwordx2 s[32:33], s[0:1], 96")
    e("s_getpc_b64 s[80:81]")
    if debug:
        e(f"v_mov_b32 v{vDBG}, 0", f"s_mov_b32 s{sSTB}, 0")
        if not opt.get("start"): stamp(15)
    e("v_lshrrev_b32 v8, 6, v0", "v_and_b32 v9, 63, v0", "v_lshlrev_b32 v30, 4, v0")
    e(f"s_and_b32 s{sJ}, s2, 7", f"s_lshr_b32 s{sC}, s2, 3")
    e(f"v_readfirstlane_b32 s{sW}, v8")
    e(f"v_lshlrev_b32 v{vL16}, 4, v9")
    for i_ in range(opt.get("codepf", 5)):
        if i_: e(f"v_add_u32 v11, {4096*i_}, v30")
        e(f"global_load_dwordx4 a[{200+4*i_}:{203+4*i_}], v{11 if i_ else 30}, s[80:81]")
    e(f"s_and_b32 s{sB}, s{sC}, 7", f"s_lshr_b32 s{sS}, s{sC}, 3")
    e(f"s_lshl_b32 s{sSL}, s{sB}, 3", f"s_add_u32 s{sSL}, s{sSL}, s{sJ}", f"s_lshl_b32 s{sSL}, s{sSL}, 21",
      f"s_lshl_b32 s{sT}, s{sS}, 17", f"s_add_u32 s{sSL}, s{sSL}, s{sT}", f"s_add_u32 s{sSL}, s{sSL}, 0x180000")
    e(f"s_mov_b32 s{KV+3}, 0x20000")
    wdma_addr(True, 12)
    e(f"v_lshrrev_b32 v{vPT}, 5, v{vL16}", f"v_and_b32 v{vPT}, 16, v{vPT}", f"v_xor_b32 v{vB}, v{vPT}, v{vL16}",
      f"s_lshl_b32 s{sRM}, s{sW}, 10")
    for i in range(4): e(f"v_mov_b32 v{24+i}, -1")
    e(f"s_lshl_b32 s{sA0}, s2, 12", f"s_add_u32 s{sA0}, s{sA0}, {BLK}", f"s_add_u32 s{sA1}, s{sA0}, 0x100000", f"s_add_u32 s{sCNT}, s{sA0}, 0x200000",
      f"s_mov_b32 s{WS+2}, {WSEND}", f"s_mov_b32 s{WS+3}, 0x20000")
    e("v_bfe_u32 v13, v9, 2, 3", "v_lshrrev_b32 v14, 5, v9", f"v_lshl_add_u32 v14, v8, 1, v14",
      f"s_and_b32 s{sY}, s{sC}, 16", f"s_xor_b32 s{sY}, s{sY}, {QROT}", f"s_and_b32 s{sIT}, s{sC}, 15", f"s_lshl_b32 s{sIT}, s{sIT}, 6", f"s_add_u32 s{sY}, s{sY}, s{sIT}",
      "v_lshlrev_b32 v15, 10, v14", "v_and_b32 v16, 1, v13", "v_lshl_add_u32 v15, v16, 5, v15", "v_lshrrev_b32 v16, 1, v13", "v_lshl_add_u32 v15, v16, 2, v15", f"v_add_u32 v{vQST}, s{sY}, v15",
      f"s_lshl_b32 s{sQB}, s{sJ}, 13")
    e("s_waitcnt lgkmcnt(0)")
    pst0(43)
    if debug and opt.get("start"): e(f"v_writelane_b32 v{vDBG}, s100, 15")
    LATE = 0
    NK0 = opt.get("nk0", 8)
    KA = opt.get("ka", 2)
    def k_first(q0, q1):
        e(f"s_add_u32 s{KV}, s10, s{sSL}", f"s_addc_u32 s{KV+1}, s11, 0", f"s_mov_b32 s{KV+2}, 0x20000")
        for q in range(q0, q1):
            e(f"s_mov_b32 m0, s{sRM}", f"s_add_u32 s{sRM}, s{sRM}, 4096")
            if q & 7: e(f"v_xor_b32 v{vPT}, {(q & 7) << 5}, v{vB}")
            e(f"buffer_load_dwordx4 v{vPT if q & 7 else vB}, {srd(KV)}, m0 offen {KFL} lds")
            if q == 0: pst0(46)
    def clears():
        e(f"s_mov_b32 s{WS}, s32", f"s_mov_b32 s{WS+1}, s33")
        if not opt.get("noclear"):
            for r in (sA0, sA1, sCNT)[:opt.get("nclr", 3)]: e(f"buffer_store_dwordx4 v[24:27], v30, {srd(WS)}, s{r} offen sc1")
        e(f"buffer_store_dword v24, v{vQST}, {srd(WS)}, s{sQB} offen sc1")
    def pages():
        e(f"v_mov_b32 v13, s{sSL}", "v_mov_b32 v14, 0", "v_mov_b32 v15, 0x300000", "s_mov_b64 exec, 1")
        for p_ in (12, 20, 22): e(f"global_load_dword a199, v13, s[{p_}:{p_+1}] nt")
        if opt.get("tlb") == 2:
            for p_ in (16, 24, 26): e(f"global_load_dword a199, v14, s[{p_}:{p_+1}] nt", f"global_load_dword a199, v15, s[{p_}:{p_+1}] nt")
        e("s_mov_b64 exec, -1")
    ORD = opt.get("ord", "cwk")
    for ch in ORD:
        if ch == "k": k_first(0, KA)
        if ch == "w": wdma_issue(14, True, 12, range(W0))
        if ch == "c": clears()
        if ch == "t": pages()
    pst0(44)
    if debug:
        for p in SP: e(f"s_mov_b32 s{p}, 0")
    e(f"s_mov_b32 s{sIT}, {NK0}", f"s_mov_b32 s{sLIM}, {LIM0}", f"s_mov_b32 s{sNSP}, {SPEC0}", f"s_mov_b32 s{sSTOP}, {SPEC0}", f"s_mov_b32 s{sLIMX}, {CAP[0]}")
    for r, n in ((SF, 0), (SS, WSEND)):
        e(f"s_mov_b32 s{r}, s32", f"s_mov_b32 s{r+1}, s33", f"s_mov_b32 s{r+2}, {n}", f"s_mov_b32 s{r+3}, 0x20000")
    e(f"s_mov_b32 s{SX}, s8", f"s_mov_b32 s{SX+1}, s9", f"s_mov_b32 s{SX+2}, 7168", f"s_mov_b32 s{SX+3}, 0x20000")
    x2_voff(28, 29)
    e(f"buffer_load_dword v{vXOLD}, v28, {srd(SX)}, 0 offen")
    e(f"s_cmp_ge_u32 s{sC}, 14", f"s_cselect_b32 s{sOH}, 1, 0", f"s_mul_i32 s{sT}, s{sOH}, 14", f"s_sub_u32 s{sNQ}, s{sC}, s{sT}")
    e("v_and_b32 v10, 15, v9", "v_lshrrev_b32 v11, 4, v9")
    e(f"s_lshl_b32 s{sT}, s{sW}, 10")
    e("v_mul_u32_u24 v12, 896, v10", "v_lshl_add_u32 v12, v11, 4, v12", f"s_lshl_b32 s{sT+1}, s{sW}, 8", f"v_add_u32 v12, s{sT+1}, v12")
    e(f"s_cmp_eq_u32 s{sW}, 3", f"s_cselect_b32 s{sT+1}, 0x40000000, 0", f"v_add_u32 v13, s{sT+1}, v12")
    e("s_mov_b32 exec_lo, 0x00ff00ff", "s_mov_b32 exec_hi, 0x00ff00ff")
    for d in range(4): e(f"buffer_load_dwordx4 {vr(40+4*d,4)}, v{12 if d < 2 else 13}, {srd(SX)}, 0 offen offset:{64*d}")
    e("s_mov_b64 exec, -1")
    e("v_lshlrev_b32 v12, 4, v10", "v_lshl_add_u32 v12, v11, 7, v12", f"s_lshl_b32 s{sT+1}, s{sW}, 11", f"v_add_u32 v{vX0}, s{sT+1}, v12")
    e("v_lshrrev_b32 v12, 1, v10", "v_lshlrev_b32 v12, 12, v12", "v_and_b32 v13, 1, v10", "v_lshl_add_u32 v12, v13, 9, v12",
      "v_xor_b32 v14, v11, v10", "v_lshl_add_u32 v12, v14, 4, v12", f"v_add_u32 v{vKRD}, s{sT}, v12")
    e(f"s_mul_i32 s{sT+1}, s{sW}, {RS}", f"s_add_u32 s{sT+1}, s{sT+1}, {RED}", "v_lshlrev_b32 v12, 2, v9", f"v_add_u32 v{vRW}, s{sT+1}, v12")
    e("v_and_b32 v12, 3, v9", f"v_mul_u32_u24 v12, {RS}, v12", f"v_add_u32 v12, {RED}, v12",
      "v_bfe_u32 v13, v9, 2, 3", "v_lshrrev_b32 v14, 5, v9", f"s_lshl_b32 s{sT+1}, s{sW}, 1", f"v_add_u32 v14, s{sT+1}, v14")
    e("v_lshrrev_b32 v15, 2, v14", "v_lshlrev_b32 v15, 6, v15", "v_and_b32 v16, 3, v14", "v_lshl_add_u32 v15, v16, 8, v15", "v_add_u32 v15, v15, v12")
    e(f"v_lshl_add_u32 v{aD}, v13, 3, v15")
    e(f"v_lshl_add_u32 v{aCS}, v13, 3, v12")
    e(f"v_lshl_add_u32 v{aDG}, v14, 2, v15")
    e(f"v_lshl_add_u32 v{aGS}, v14, 2, v12")
    e(f"s_mov_b32 s{sMI8}, 0x00ff00ff", f"s_mov_b32 s{sMI8+1}, 0x00ff00ff", f"s_mov_b32 s{sMQ}, 0x11111111", f"s_mov_b32 s{sMQ+1}, 0x11111111")
    e(f"s_mov_b32 s{sLAY}, 0", f"s_mov_b32 s{sSPIN}, 300000")
    e(f"s_mul_i32 s{sBK}, s{sJ}, {BSZ}", f"s_add_u32 s{sBK}, s{sBK}, {BLK}", f"s_add_u32 s{sOB}, s{sBK}, 0x4000",
      f"s_add_u32 s{sST}, s{sBK}, 0xC000", f"s_mov_b32 s{sX1}, {X1}", f"s_lshl_b32 s{sX1L}, s{sC}, 13", f"s_add_u32 s{sX1L}, s{sX1L}, {X1}")
    e("v_lshrrev_b32 v12, 2, v10", "v_and_b32 v13, 3, v9", "v_and_b32 v14, 1, v11", "v_lshrrev_b32 v17, 1, v11")
    e("v_lshlrev_b32 v18, 5, v14", "v_lshl_add_u32 v18, v12, 3, v18", "v_lshl_add_u32 v18, v17, 1, v18")
    e("v_lshlrev_b32 v19, 3, v14", "v_lshl_add_u32 v19, v12, 1, v19")
    e(f"s_lshl_b32 s{sT}, s{sW}, 3", "v_lshrrev_b32 v20, 1, v13", f"v_add_u32 v20, s{sT}, v20", "v_xor_b32 v20, v20, v19",
      "v_lshlrev_b32 v18, 9, v18", "v_lshl_add_u32 v18, v20, 4, v18", "v_and_b32 v20, 1, v13", f"v_lshl_add_u32 v{vVRD}, v20, 3, v18")
    e("v_and_b32 v14, 1, v9", "v_bfe_u32 v15, v10, 1, 1", "v_cmp_eq_u32 vcc, 1, v15", "v_mov_b32 v16, 0x4444", "v_mov_b32 v17, 0xeeee", f"v_cndmask_b32 v{vIDX}, v16, v17, vcc",
      "v_cmp_eq_u32 vcc, 1, v14", "v_mov_b32 v16, 0x01000504", "v_mov_b32 v17, 0x07060302", f"v_cndmask_b32 v{vSEL}, v16, v17, vcc")
    e("v_lshlrev_b32 v16, 4, v13", "v_lshl_add_u32 v16, v11, 6, v16", f"s_lshl_b32 s{sT}, s{sB}, 10", f"v_add_u32 v{vQLD}, s{sT}, v16")
    e(f"s_mul_i32 s{sT}, s{sW}, 320", f"s_add_u32 s{sT}, s{sT}, {PA}", "v_lshlrev_b32 v16, 10, v11", "v_bfe_u32 v17, v10, 2, 1", "v_lshl_add_u32 v16, v17, 5, v16",
      "v_and_b32 v17, 8, v10", "v_add_u32 v16, v16, v17", "v_lshl_add_u32 v16, v14, 2, v16", "v_lshl_add_u32 v16, v15, 1, v16", f"v_add_u32 v{vPW}, s{sT}, v16")
    e(f"s_and_b32 s{sT}, s{sB}, 3", f"s_lshl_b32 s{sT}, s{sT}, 2", f"s_add_u32 s{sT}, s{sT}, s{sS}", f"s_lshl_b32 s{sT}, s{sT}, 4", f"s_lshr_b32 s{sT+1}, s{sB}, 2", f"s_lshl_b32 s{sT+1}, s{sT+1}, 10",
      f"s_add_u32 s{sT}, s{sT}, s{sT+1}", f"s_lshl_b32 s{sT+1}, s{sW}, 12", f"s_add_u32 s{sT}, s{sT}, s{sT+1}",
      "v_and_b32 v16, 6, v9", "v_lshlrev_b32 v16, 1, v16", "v_lshl_add_u32 v16, v14, 14, v16", "v_lshrrev_b32 v17, 5, v9", "v_lshl_add_u32 v16, v17, 11, v16",
      "v_bfe_u32 v17, v9, 3, 2", "v_lshl_add_u32 v16, v17, 8, v16", f"v_add_u32 v{vOST}, s{sT}, v16")
    e(f"s_lshl_b32 s{sT}, s{sOH}, 14", f"s_add_u32 s{sT}, s{sT}, s{sT+1}", f"v_add_u32 v{vOLD}, s{sT}, v{vL16}")
    e("v_and_b32 v16, 7, v9", "v_lshlrev_b32 v16, 4, v16", "v_lshl_add_u32 v16, v11, 7, v16", f"s_lshl_b32 s{sT}, s{sOH}, 10", f"v_add_u32 v{vSLD}, s{sT}, v16")
    e(f"s_and_b32 s{sT}, s{sW}, 1", f"s_lshr_b32 s{sT+1}, s{sW}, 1", f"s_lshl_b32 s{sT+2}, s{sT}, 1", f"s_add_u32 s{sT+2}, s{sT+2}, s{sT+1}", f"s_lshl_b32 s{sT+2}, s{sT+2}, 8",
      f"s_add_u32 s{sT+2}, s{sT+2}, {RED}", "v_lshlrev_b32 v16, 2, v9", f"v_add_u32 v{aOR}, s{sT+2}, v16")
    e(f"s_lshl_b32 s{sT+2}, s{sNQ}, 1", f"s_add_u32 s{sT+2}, s{sT+2}, s{sT+1}", f"s_lshl_b32 s{sT+2}, s{sT+2}, 13",
      f"s_lshl_b32 s{sT+3}, s{sJ}, 1", f"s_add_u32 s{sT+3}, s{sT+3}, s{sOH}", f"s_lshl_b32 s{sT+3}, s{sT+3}, 9", f"s_add_u32 s{sT+2}, s{sT+2}, s{sT+3}",
      f"s_lshl_b32 s{sT}, s{sT}, 8", f"s_add_u32 s{sT+2}, s{sT+2}, s{sT}", "v_lshlrev_b32 v16, 2, v9", f"v_add_u32 v{vX1ST}, s{sT+2}, v16")
    e(f"s_and_b32 s{sT}, s{sB}, 3", f"s_lshl_b32 s{sT}, s{sT}, 7", f"s_lshr_b32 s{sB}, s{sB}, 2", f"s_lshl_b32 s{sB}, s{sB}, 6", f"s_add_u32 s{sB}, s{sB}, s{sT}",
      f"s_lshl_b32 s{sS}, s{sS}, 4", f"s_add_u32 s{sB}, s{sB}, s{sS}", f"s_lshr_b32 s{sT}, s{sW}, 1", f"s_lshl_b32 s{sT}, s{sT}, 9", f"s_add_u32 s{sB}, s{sB}, s{sT}",
      f"s_and_b32 s{sT}, s{sW}, 1", f"s_lshl_b32 s{sT}, s{sT}, 3", f"s_add_u32 s{sB}, s{sB}, s{sT}", f"s_mov_b32 s{sS}, {(-62*1024) & 0xffffffff}",
      f"s_mov_b32 s{sODD}, 0xaaaaaaaa", f"s_mov_b32 s{sODD+1}, 0xaaaaaaaa")
    e("v_bfe_u32 v16, v9, 1, 1", "v_lshlrev_b32 v16, 7, v16", "v_bfe_u32 v17, v9, 2, 3", "v_lshl_add_u32 v16, v17, 4, v16", "v_lshl_add_u32 v16, v14, 3, v16",
      "v_lshrrev_b32 v17, 5, v9", "v_lshl_add_u32 v16, v17, 2, v16", f"s_lshl_b32 s{sT}, s{sC}, 8",
      f"s_cmp_eq_u32 s{sW}, 0", f"s_cselect_b32 s{sT}, s{sT}, 0x40000000", f"v_add_u32 v{vX1r}, s{sT}, v16")
    for i in range(4): e(f"v_mov_b32 v{24+i}, 0")
    e(f"v_add_u32 v12, {PA}, v30", "ds_write_b128 v12, v[24:27]", f"v_mov_b32 v12, {FLAG}", "ds_write_b32 v12, v24")
    e(f"s_getreg_b32 s{sT}, hwreg(HW_REG_XCC_ID)", f"s_and_b32 s{sT}, s{sT}, 15", f"s_mul_i32 s{sT+1}, s{sT}, s{sT}", f"s_lshl_b32 s{sT}, s{sT}, 6",
      f"s_lshl_b32 s{sT+1}, s{sT+1}, 15", f"s_add_u32 s{sT}, s{sT}, s{sT+1}", f"s_add_u32 s{sT}, s{sT}, 1", f"s_lshl_b32 s{sEXP}, s{sT}, 5")
    e(f"v_mov_b32 v28, s{sT}", f"s_lshl_b32 s{sT+1}, s{sJ}, 5", f"v_mov_b32 v29, s{sT+1}")
    if "T" in ORD: pages()
    k_first(KA, NK0)
    pst0(45)
    e(f"s_mov_b32 s{sCNT}, 0", "s_branch L_Q0")
    stamp(0)

    def qsec(v, W):
        def issue():
            e(f"s_mov_b64 exec, s[{sMI8}:{sMI8+1}]")
            for d in range(4):
                e(f"buffer_load_dwordx4 {vr(8+4*d,4)}, v{vX0}, {srd(SX)}, 0 offen offset:{512*d} sc1")
            e("s_mov_b64 exec, -1")
        def first_layer():
            e.label("L_Q0")
            pump_until(max(WQA + [0]) + 2, DS)
            drain_stream(DA[0], opt.get("p0", 13))
            for _ in range(opt.get("pre0", PRE) // 2): call_pump()
            e("s_barrier", f"s_cmp_lg_u32 s{sW}, 0", "s_cbranch_scc1 L_ARR")
            e("s_mov_b64 exec, 1", "global_atomic_add v29, v28, s[30:31] sc1", "s_mov_b64 exec, -1")
            e.label("L_ARR")
            q_prep()
            e(f"s_mov_b64 exec, s[{sMI8}:{sMI8+1}]")
            for i in range(16): e(f"v_mov_b32 v{8+i}, v{40+i}")
            e("s_mov_b64 exec, -1")
            if LATE:
                for i in range(4): e(f"v_mov_b32 v{40+i}, -1")
                e(f"s_add_u32 s{sT}, s{sA0}, 0x200000", f"buffer_store_dword v40, v{vQST}, {srd(WS)}, s{sQB} offen sc1")
                if not opt.get("noclear"):
                    for r in (sA0, sA1, sT): e(f"buffer_store_dwordx4 v[40:43], v62, {srd(WS)}, s{r} offen sc1")
                for _ in range(opt.get("lx", 2) // 2): call_pump()
            wq_move(WqA, vPT)
            for _ in range(opt.get("pre1", 0) // 2): call_pump()
            if EB: wq_move(WqB, vPT, STG - 16384)
            e("v_mfma_f32_16x16x32_bf16 v[28:31], v[8:11], v[8:11], 0", "s_branch L_QAOK")
        if v == "A": ool.append(first_layer)
        poll(f"Q{v}", issue, 4, lambda: check_max(range(8, 24), 32),
             lambda: e("v_mfma_f32_16x16x32_bf16 v[28:31], v[8:11], v[8:11], 0"), q_prep,
             lambda: e("s_waitcnt vmcnt(0) lgkmcnt(0)", "s_barrier"))
        stamp(1)
        for d in range(4):
            if d: e(f"v_mfma_f32_16x16x32_bf16 v[28:31], {vr(8+4*d,4)}, {vr(8+4*d,4)}, v[28:31]")
            e(f"v_mfma_f32_16x16x32_bf16 v[24:27], {vr(8+4*d,4)}, {vr(W+4*d,4)}, {'0' if d == 0 else 'v[24:27]'}")
    qsec("A", WqA)
    e.label("L_QJ")
    def qb():
        qsec("B", WqB); e("s_branch L_QJ")
    ool.append(qb)
    if not POST: pre_issue()
    stamp(20)
    e(f"ds_write2st64_b32 v{vRW}, v28, v29 offset0:4 offset1:5", f"ds_write2st64_b32 v{vRW}, v30, v31 offset0:6 offset1:7",
      f"ds_write2st64_b32 v{vRW}, v24, v25 offset0:0 offset1:1", f"ds_write2st64_b32 v{vRW}, v26, v27 offset0:2 offset1:3", "s_waitcnt lgkmcnt(0)")
    stamp(21)
    e("s_barrier")
    stamp(22)
    e(f"ds_read_b32 v37, v{aGS} offset:{1024+128}", f"ds_read_b32 v36, v{aDG} offset:1024", f"ds_read_b64 v[32:33], v{aD}", f"ds_read_b64 v[34:35], v{aCS} offset:128")
    inv = f2u(1.0 / 448.0)
    X1_, X2_ = f"quad_perm:[1,0,3,2] {DPP}", f"quad_perm:[2,3,0,1] {DPP}"
    e("s_waitcnt lgkmcnt(2)")
    e(f"v_add_f32_dpp v37, v37, v37 {X1_}", f"v_add_f32_dpp v36, v36, v36 {X1_}", "s_waitcnt lgkmcnt(0)")
    stamp(23)
    e(f"v_add_f32_dpp v37, v37, v37 {X2_}", f"v_add_f32_dpp v36, v36, v36 {X2_}",
      f"v_mul_f32 v37, {inv}, v37", f"v_mul_f32 v36, {inv}, v36",
      "v_pk_fma_f32 v[32:33], v[34:35], v[36:37], v[32:33] op_sel:[0,1,0] op_sel_hi:[1,1,1] neg_lo:[1,0,0] neg_hi:[1,0,0]",
      "v_fma_f32 v36, -v37, v37, v36", "v_max_f32 v36, 0, v36",
      f"v_add_f32_dpp v32, v32, v32 {X1_}", f"v_add_f32_dpp v33, v33, v33 {X1_}", f"v_add_f32 v36, {f2u(1e-5)}, v36", "v_rsq_f32 v36, v36",
      f"v_add_f32_dpp v32, v32, v32 {X2_}", f"v_add_f32_dpp v33, v33, v33 {X2_}", f"v_mul_f32 v36, {f2u(1.4426950408889634/16.0)}, v36",
      f"s_mov_b64 exec, s[{sMQ}:{sMQ+1}]", "v_pk_mul_f32 v[32:33], v[32:33], v[36:37] op_sel:[0,0] op_sel_hi:[1,0]",
      "v_cvt_pk_bf16_f32 v56, v32, v33", "v_min_u32 v56, -2, v56")
    publish(f"buffer_store_dword v56, v{vQST}, {{r}}, s{sQB} offen {{fl}}")
    e("s_mov_b64 exec, -1")
    stamp(2)
    e(f"s_cmp_lt_u32 s{sLAY}, 2", "s_cbranch_scc1 L_INIT")
    e.label("L_INITD")
    def init():
        e.label("L_INIT")
        e(f"s_cmp_eq_u32 s{sLAY}, 0", "s_cbranch_scc1 L_INIT0")
        setlim(128)
        if XCC: e(f"buffer_load_dword v{vXOLD}, v{vX1r}, {srd(SX)}, 0 offen sc1")
        pump_until(103, D2)
        if opt.get("aprobe", 0):
            e(f"v_and_b32 v47, 0xf0, v{vL16}", f"v_lshlrev_b32 v47, 2, v47", f"v_bfe_u32 v46, v{vL16}, 8, 1", "v_lshl_add_u32 v47, v46, 4, v47",
              f"v_and_b32 v46, 0x1c00, v{vQLD}", "v_add_u32 v47, v47, v46")
            probe("L_APR", f"buffer_load_dword v8, v47, {srd(WS)}, s{sQB} offen sc1", "-1", "L_INITD", "AP", 8)
        e("s_branch L_INITD")
        e.label("L_INIT0")
        e(f"s_mov_b32 s{sLIM}, 64", f"s_min_u32 s{sSTOP}, s{sNSP}, s{sLIM}")
        if LATE:
            drain_stream(DS, 6)
            e("s_barrier", f"s_cmp_lg_u32 s{sW}, 0", "s_cbranch_scc1 L_ARR")
            e("s_mov_b64 exec, 1", "global_atomic_add v61, v60, s[30:31] sc1", "s_mov_b64 exec, -1")
            e.label("L_ARR")
        pump_until(26, DA[1])
        pump_until(opt.get('ipos', 38), DA[2])
        if opt.get("streamonly"):
            e(f"s_mov_b32 s{sLIM}, 128", f"s_min_u32 s{sSTOP}, s{sNSP}, s{sLIM}")
            for upto, dd in opt.get("so", [[128, DS]]):
                if upto == 66 and WL & 1: wfetch(16, False)
                if upto == 90 and WL & 2:
                    l_ = L("so"); e(f"s_cmp_ge_u32 s{sC}, 28", f"s_cbranch_scc1 {l_}"); wfetch(24, True); e.label(l_)
                pump_until(upto, dd)
            e("s_waitcnt vmcnt(0)", "s_memrealtime s[96:97]", "s_waitcnt lgkmcnt(0)", f"v_writelane_b32 v{vDBG}, s96, 28", f"s_mov_b32 s{sSTB}, 48", "s_branch L_END")
        e(f"v_lshlrev_b32 v41, 1, v{vL16}", f"v_mov_b32 v42, {FLAG}", f"s_cmp_lg_u32 s{sW}, 0", "s_cbranch_scc1 L_IWAIT")
        e.label("L_IPOLL")
        e("s_mov_b64 exec, 0xff", "global_load_dword v8, v41, s[30:31] sc1", "s_mov_b64 exec, -1")
        drain_stream(DA[3])
        e("s_mov_b64 exec, 0xff", "v_and_b32 v9, 63, v8", "v_cmp_ne_u32 vcc, 32, v9", "s_mov_b64 exec, -1", "s_cbranch_vccnz L_IFAIL")
        e(f"v_readlane_b32 s{sT}, v8, s{sJ}", f"s_cmp_eq_u32 s{sT}, s{sEXP}")
        if opt.get("forceslow"): e("s_cmp_eq_u32 0, 1")
        e(f"s_cselect_b32 s{sT}, 2, 1", f"v_mov_b32 v9, s{sT}", "ds_write_b32 v42, v9", "s_branch L_IGOT")
        e.label("L_IFAIL")
        spin_down(); e("s_branch L_IPOLL")
        e.label("L_IWAIT")
        e(f"s_waitcnt vmcnt({DA[3]-2})"); call_pump()
        e("ds_read_b32 v9, v42")
        spin_down()
        e("s_waitcnt lgkmcnt(0)", f"v_readfirstlane_b32 s{sT}, v9", f"s_cmp_eq_u32 s{sT}, 0", "s_cbranch_scc1 L_IWAIT")
        e.label("L_IGOT")
        e(f"s_mov_b32 s{sT+5}, s{sT}")
        pump_until(39, DS)
        e(f"s_mov_b32 s{sT}, s{sT+5}")
        e(f"s_cmp_eq_u32 s{sT}, 2", f"s_cselect_b32 s{SF+2}, {WSEND}, 0", f"s_cselect_b32 s{SS+2}, 0, {WSEND}")
        if opt.get("touch0", 1):
            e(f"s_cmp_lg_u32 s{sW}, 1", "s_cbranch_scc1 L_INITD")
            e(f"s_mul_i32 s{sT}, s{sC}, {13*128}", f"s_add_u32 s{sT}, s{sT}, s{sBK}", f"v_lshlrev_b32 v41, 3, v{vL16}", "s_mov_b64 exec, 0x1fff",
              f"buffer_load_dword v9, v41, {srd(WS)}, s{sT} offen sc1", "s_mov_b64 exec, -1")
        e("s_branch L_INITD")
    ool.append(init)

    def a_prep():
        for i in range(32): e(f"v_mov_b32 v{24+i}, 0")
    e(f"s_lshl_b32 s{sT}, s{sW}, 3", f"s_add_u32 s{sT}, s{sT}, {SL}", f"v_mov_b32 v61, s{sT}", f"v_add_u32 v62, {PA}, v{vL16}",
      f"v_lshrrev_b32 v63, 8, v{vL16}", f"v_lshlrev_b32 v63, 3, v63", f"v_add_u32 v63, {SL}, v63", f"v_and_b32 v60, 0x1c00, v{vQLD}", f"v_add_u32 v60, v60, v{vL16}")
    e(f"s_bitcmp1_b32 s{sLAY}, 0", "s_cbranch_scc1 L_ABP")
    def sadd1(t, h): return f"v_add_f32_dpp v{56+h}, v{24+4*t+h}, v{26+4*t+h} quad_perm:[0,1,2,3] row_mask:{1<<t} bank_mask:0xf"
    def asec(v, base):
        def issue():
            for u in range(4):
                e(f"buffer_load_dwordx4 {vr(8+4*u,4)}, v{vQLD}, {srd(WS)}, s{sQB} offen offset:{256*u} sc1")
        def sm(t, u): e(f"v_smfmac_f32_16x16x64_bf16 {vr(24+4*t,4)}, {vr(8+4*u,4)}, {ar(base+32*t+8*u,8)}, v{vIDX}")
        def l_issue(): e(f"s_mov_b32 m0, {QL}", "s_nop 0", f"buffer_load_dwordx4 v60, {srd(WS)}, s{sQB} offen sc1 lds")
        def l_check():
            e(f"v_and_b32 v59, 0x3ff, v{vQLD}", f"v_add_u32 v59, {QL}, v59")
            for u in range(4): e(f"ds_read_b128 {vr(8+4*u,4)}, v59 offset:{256*u}")
            e("s_waitcnt lgkmcnt(0)")
            check_max(range(8, 24), 58)
        def l_expand(): pass
        def undo():
            e.nop(8)
            for i in range(4): e(f"v_mov_b32 v{24+i}, 0")
        poll(f"A{v}", issue, 4, lambda: check_max(range(8, 24), 58), lambda: sm(0, 0), a_prep, lambda: e("s_waitcnt vmcnt(0)"), undo=undo,
             light=(1, l_issue, l_check, l_expand) if opt.get("alight", 1) else None)
        stamp(3)
        for t in range(4):
            for u in range(4):
                if t or u: sm(t, u)
                if t and u >= 2: e(sadd1(t - 1, u - 2))
    asec("A", 0)
    e.label("L_KJ")
    def kb():
        asec("B", 128); e("s_branch L_KJ")
    ool.append(kb)
    pre_issue()
    e(f"v_bfe_u32 v24, v{vL16}, 4, 2", f"v_lshlrev_b32 v24, 3, v24", f"v_add_u32 v24, {SL}, v24", f"s_add_u32 s{sOB2}, s{sST}, s{sB}", sadd1(3, 0), sadd1(3, 1))
    steps = ["quad_perm:[1,0,3,2] row_mask:0xf", "quad_perm:[2,3,0,1] row_mask:0xf", "row_half_mirror row_mask:0xf", "row_mirror row_mask:0xf",
             "row_bcast:15 row_mask:0xa", "row_bcast:31 row_mask:0xc"]
    fill = [f"s_cmp_lt_u32 s{sLAY}, 2", f"v_lshl_add_u32 v25, v{vL16}, 6, s{sS}"]
    for i, st in enumerate(steps):
        for h in range(2):
            s_ = 56 + h if i == 0 else 58 + h
            e(f"v_max_f32_dpp v{58+h}, v{s_}, v{s_} {st} bank_mask:0xf")
        if fill: e(fill.pop(0))
    e(f"v_readlane_b32 s{sA0}, v58, 63", f"v_readlane_b32 s{sA1}, v59, 63")
    e("s_mov_b32 exec_lo, 0", "s_mov_b32 exec_hi, 0x80000000", "ds_write_b64 v61, v[58:59]", "s_mov_b64 exec, -1")
    e(f"v_subrev_f32 v56, s{sA0}, v56", f"v_subrev_f32 v57, s{sA1}, v57", "v_exp_f32 v56, v56", "v_exp_f32 v57, v57",
      "v_cvt_pk_bf16_f32 v60, v56, v57", f"ds_write_b16 v{vPW}, v60", f"ds_write_b16_d16_hi v{vPW}, v60 offset:16")
    V = []
    for i, st in enumerate(steps):
        for h in range(2): V.append(f"v_add_f32_dpp v{56+h}, v{56+h}, v{56+h} {st} bank_mask:0xf")
    e(V.pop(0), V.pop(0), "s_cbranch_scc1 L_VEARLY", "s_waitcnt vmcnt(0)")
    e.label("L_VB")
    VREST = list(V)
    e(V.pop(0), V.pop(0), f"v_cndmask_b32 v27, v58, v59, s[{sODD}:{sODD+1}]", V.pop(0), V.pop(0), "v_min_u32 v27, -2, v27", V.pop(0), V.pop(0))
    e("s_waitcnt lgkmcnt(0)", "s_barrier")
    stamp(4)
    def vearly():
        e.label("L_VEARLY")
        e(f"s_cmp_eq_u32 s{sLAY}, 0", "s_cbranch_scc0 L_PROG")
        for k in range(4):
            if opt.get("afirst"):
                pump_until(min(40 + 8 * k + DS, 64), DS); e(f"s_waitcnt vmcnt({min(DS, 24 - 8 * k)})")
            else:
                landed(40 + 8 * k, DA[3 + k // 2])
            e("s_waitcnt lgkmcnt(0)", "s_barrier")
            if k: e(f"s_mov_b32 s{sLIM}, {64 + 8 * k}", f"s_min_u32 s{sSTOP}, s{sNSP}, s{sLIM}")
            if HG and k == HG - 1:
                l_ = L("hg")
                e(f"s_cmp_lg_u32 s{sW}, 0", f"s_cbranch_scc1 {l_}", f"s_lshl_b32 s{sT}, s2, 2", f"s_add_u32 s{sT}, s{sT}, {GFL}", "v_mov_b32 v8, 0", "s_mov_b64 exec, 1",
                  f"buffer_store_dword v8, off, {srd(WS)}, s{sT} sc1", "s_mov_b64 exec, -1")
                e.label(l_)
            if HQ and k == HQ - 1:
                e(f"s_lshl_b32 s{sT}, s{sC}, 2", f"s_add_u32 s{sT}, s{sT}, s{sBK}", "v_mov_b32 v8, 0", "s_mov_b64 exec, 1")
                publish(f"buffer_store_dword v8, off, {{r}}, s{sT} offset:{HINT & 4095} {{fl}}".replace(f"s{sT} offset:{HINT & 4095}", f"s{sT+1}"), pre=f"s_add_u32 s{sT+1}, s{sT}, {HINT}")
                e("s_mov_b64 exec, -1")
            e(f"s_call_b64 s[{sRET2}:{sRET2+1}], L_MOVEV{k}")
        if not POST:
            for _ in range(PRE // 2): call_pump()
        e("s_branch L_VB")
    ool.append(vearly)
    for k in range(4): e(f"ds_read_b128 {vr(8+4*k,4)}, v62 offset:{1024*k}")
    e("ds_read_b64 v[28:29], v24", "ds_read_b64 v[36:37], v63")
    e(V.pop(0), V.pop(0), f"s_mov_b32 s{sLIM}, s{sLIMX}", V.pop(0), V.pop(0), f"s_min_u32 s{sSTOP}, s{sNSP}, s{sLIM}",
      f"v_cndmask_b32 v26, v56, v57, s[{sODD}:{sODD+1}]", "v_min_u32 v26, -2, v26")
    publish(f"buffer_store_dwordx2 v[26:27], v25, {{r}}, s{sOB2} offen {{fl}}")
    def tpost(tau):
        return [f"v_pk_add_f32 {vr(40+4*tau,2)}, {vr(40+4*tau,2)}, {vr(42+4*tau,2)}", f"v_pk_mul_f32 {vr(40+4*tau,2)}, {vr(40+4*tau,2)}, v[38:39]"]
    V += [None, None, f"v_max_f32_dpp v28, v28, v28 {X1_}", f"v_max_f32_dpp v29, v29, v29 {X1_}",
          f"v_max_f32_dpp v28, v28, v28 {X2_}", f"v_max_f32_dpp v29, v29, v29 {X2_}", "v_sub_f32 v38, v36, v28", "v_sub_f32 v39, v37, v29", "v_exp_f32 v38, v38", "v_exp_f32 v39, v39"]
    V += ["v_add_f32 v40, v40, v42", "v_add_f32 v41, v41, v43", "v_mul_f32 v40, v40, v38", "v_mul_f32 v41, v41, v39", "v_add_f32 v48, v48, v50", "v_add_f32 v49, v49, v51"]
    FOPS = [x_ for x_ in V[:10] if x_]
    order = [0, 2, 1, 3]
    n_ = 0
    for tau in order:
        for k in range(4):
            if n_ < 2: e(f"s_waitcnt lgkmcnt({5-n_})")
            if n_ == 2: e("s_waitcnt lgkmcnt(0)")
            e(f"v_smfmac_f32_16x16x64_bf16 {vr(40+4*tau,4)}, {vr(8+4*k,4)}, {vr(AV+32*k+8*tau,8)}, v{vIDX}")
            if n_ == 0: stamp(10)
            if n_ == 3: stamp(11)
            x_ = V.pop(0)
            if x_: e(x_)
            n_ += 1
    assert not V, V
    stamp(12)
    e.label("L_POST")
    e(tpost(2)[1]); e(*tpost(1))
    e("v_permlane32_swap_b32 v40, v48", "v_permlane32_swap_b32 v41, v49")
    e(*tpost(3))
    e("v_pk_add_f32 v[40:41], v[40:41], v[48:49]")
    e("v_permlane32_swap_b32 v44, v52", "v_permlane32_swap_b32 v45, v53", "v_pk_add_f32 v[44:45], v[44:45], v[52:53]")
    e("v_permlane16_swap_b32 v40, v44", "v_permlane16_swap_b32 v41, v45", "v_pk_add_f32 v[40:41], v[40:41], v[44:45]")
    e("v_cvt_pk_bf16_f32 v40, v40, v41", f"v_mov_b32_dpp v41, v40 {X1_}", f"v_perm_b32 v40, v40, v41, v{vSEL}", "v_min_u32 v40, -2, v40")
    stamp(13)
    publish(f"buffer_store_dword v40, v{vOST}, {{r}}, s{sOB} offen {{fl}}")
    stamp(5)
    def prog():
        e.label("L_PROG")
        for _ in range(P1 // 2): call_pump()
        e(*VREST)
        e(f"v_cndmask_b32 v27, v58, v59, s[{sODD}:{sODD+1}]", f"v_cndmask_b32 v26, v56, v57, s[{sODD}:{sODD+1}]", "v_min_u32 v27, -2, v27", "v_min_u32 v26, -2, v26")
        publish(f"buffer_store_dwordx2 v[26:27], v25, {{r}}, s{sOB2} offen {{fl}}")
        e("s_waitcnt lgkmcnt(0)", "s_barrier")
        stamp(4)
        e("ds_read_b64 v[28:29], v24", "ds_read_b64 v[36:37], v63", "s_waitcnt lgkmcnt(0)")
        for x_ in FOPS: e(x_)
        e("v_mov_b32 v37, v62")
        if opt.get("fastp", 0):
            e(f"s_cmp_ge_u32 s{sIT}, 128", "s_cbranch_scc1 L_PFAST")
        for k in range(4):
            m = 104 + 8 * k
            pump_until(min(m + D3, 128), D3)
            e(f"s_waitcnt vmcnt({min(D3, 128 - m)})")
            if k == 3 and debug and opt.get("pstamps"):
                e("s_memrealtime s[96:97]", "s_waitcnt lgkmcnt(0)", f"v_writelane_b32 v{vDBG}, s96, 28")
            e(f"ds_read_b128 v[32:35], v37 offset:{1024*k}", "s_barrier")
            bases = {0: 24, 2: 56, 1: 128 - 128 + 24, 3: 56}
            def rd(tau, base):
                for r0 in range(2):
                    e(f"v_xor_b32 v36, {(tau << 5) | (r0 << 4) | ((k >> 1) << 16)}, v{vVRD}")
                    for r in (r0, r0 + 2):
                        e(f"ds_read_b64_tr_b16 {vr(base+2*r,2)}, v36 offset:{(k & 1)*32768 + (r & 1)*512 + (r >> 1)*2048}")
            def sm(tau, base): e(f"v_smfmac_f32_16x16x64_bf16 {vr(40+4*tau,4)}, v[32:35], {vr(base,8)}, v{vIDX}")
            if k < 3:
                rd(0, 24); rd(2, 56); e("s_waitcnt lgkmcnt(4)"); sm(0, 24); e.nop(4); rd(1, 24); e("s_waitcnt lgkmcnt(4)"); sm(2, 56); e.nop(4); rd(3, 56)
                e("s_waitcnt lgkmcnt(4)"); sm(1, 24); e("s_waitcnt lgkmcnt(0)"); sm(3, 56)
            else:
                rd(0, 24); rd(2, 56); rd(1, 8); rd(3, 16); e("s_waitcnt lgkmcnt(12)"); sm(0, 24)
                e("s_waitcnt lgkmcnt(8)"); sm(2, 56); e("s_waitcnt lgkmcnt(4)"); sm(1, 8); e("s_waitcnt lgkmcnt(0)"); sm(3, 16)
        e.label("L_PEND")
        e(*tpost(0), tpost(2)[0])
        e("s_branch L_POST")
    ool.append(prog)
    def pfast():
        e.label("L_PFAST")
        e("s_waitcnt vmcnt(0)")
        if debug and opt.get("pstamps"):
            e("s_memrealtime s[96:97]", "s_waitcnt lgkmcnt(0)", f"v_writelane_b32 v{vDBG}, s96, 28")
        bufs = [8, 16, 24]; pb = [32, 56]
        seq = [(k, tau) for k in range(4) for tau in (0, 2, 1, 3)]
        q_ = []
        def rp(k):
            e(f"ds_read_b128 {vr(pb[k % 2],4)}, v37 offset:{1024*k}"); q_.append(("p", k))
        def rd(i_):
            k, tau = seq[i_]; base = bufs[i_ % 3]
            for r0 in range(2):
                e(f"v_xor_b32 v36, {(tau << 5) | (r0 << 4) | ((k >> 1) << 16)}, v{vVRD}")
                for r in (r0, r0 + 2):
                    e(f"ds_read_b64_tr_b16 {vr(base+2*r,2)}, v36 offset:{(k & 1)*32768 + (r & 1)*512 + (r >> 1)*2048}"); q_.append(("v", i_))
        rp(0); rp(1)
        e("s_barrier", "s_barrier", "s_barrier", "s_barrier")
        rd(0); rd(1); rd(2)
        for i_ in range(16):
            k, tau = seq[i_]
            last = max(n for n, x in enumerate(q_) if x in (("v", i_), ("p", k)))
            e(f"s_waitcnt lgkmcnt({len(q_) - 1 - last})")
            e(f"v_smfmac_f32_16x16x64_bf16 {vr(40+4*tau,4)}, {vr(pb[k % 2],4)}, {vr(bufs[i_ % 3],8)}, v{vIDX}")
            if i_ + 3 < 16:
                e.nop(2); rd(i_ + 3)
            if i_ % 4 == 3 and k + 2 < 4: rp(k + 2)
        e.nop(4)
        e("s_branch L_PEND")
    if opt.get("fastp", 0): ool.append(pfast)

    e(f"s_cmp_ge_u32 s{sC}, 28", "s_cbranch_scc1 L_NOO0")
    def sissue():
        e(f"buffer_load_dwordx4 v[56:59], v{vSLD}, {srd(WS)}, s{sST} offen sc1", f"buffer_load_dwordx4 v[60:63], v{vSLD}, {srd(WS)}, s{sST} offen offset:512 sc1")
    def oissue():
        for mt in range(2):
            for ks in range(2):
                e(f"buffer_load_dwordx4 {vr(8+8*mt+4*ks,4)}, v{vOLD}, {srd(WS)}, s{sOB} offen offset:{2048*ks+1024*mt} sc1")
    def omf(ks, mt, nt):
        d = vr(40 + 8 * mt + 4 * nt, 4)
        e(f"v_mfma_f32_16x16x32_bf16 {d}, {vr(8+8*mt+4*ks,4)}, {vr(24+8*ks+4*nt,4)}, {'0' if ks == 0 else d}")
    ostream = f"s_cmp_lt_u32 s{sIT}, 128"
    sissue()
    e(f"s_bitcmp1_b32 s{sLAY}, 0", "s_cbranch_scc1 L_OWB")
    for i in range(16): e(f"v_mov_b32 v{24+i}, v{WoA+i}")
    def owb():
        e.label("L_OWB"); e.nop(2); wo_move(24, 55); e("s_branch L_OWJ")
    ool.append(owb)
    e.label("L_OWJ")
    e(ostream, "s_cbranch_scc1 L_OS0", "s_waitcnt vmcnt(2)")
    oissue()
    e("s_waitcnt vmcnt(4)")
    e.label("L_OSC")
    check_max([56, 58, 60, 62, 57, 59, 61, 63], 40)
    e("v_max3_f32 v41, v57, v59, v61", "s_cbranch_vccnz L_OSF", "v_max_f32 v41, v41, v63")
    e(f"v_max_f32_dpp v42, v41, v41 {X1_}", f"v_max_f32_dpp v42, v42, v42 {X2_}")
    e("v_sub_f32 v43, v57, v42", "v_sub_f32 v44, v59, v42", "v_sub_f32 v45, v61, v42", "v_sub_f32 v46, v63, v42", "v_sub_f32 v41, v41, v42",
      "v_exp_f32 v43, v43", "v_exp_f32 v44, v44", "v_exp_f32 v45, v45", "v_exp_f32 v46, v46", "v_exp_f32 v41, v41",
      "v_mul_f32 v43, v43, v56", "v_fmac_f32 v43, v44, v58", "v_fmac_f32 v43, v45, v60", "v_fmac_f32 v43, v46, v62",
      f"v_add_f32_dpp v43, v43, v43 {X1_}", f"v_add_f32_dpp v43, v43, v43 {X2_}", "v_rcp_f32 v43, v43", f"v_mul_f32 v{vPT}, v41, v43")
    e(ostream, "s_cbranch_scc1 L_OC")
    e.label("L_OR")
    if ROLL:
        oissue(); e("s_waitcnt vmcnt(4)")
    else:
        e("s_waitcnt vmcnt(0)")
    e.label("L_OC")
    check_max(range(8, 24), 48)
    omf(0, 0, 0)
    e("s_cbranch_vccnz L_OF")
    def ofail():
        e.label("L_OSF")
        spin_down(); e(ostream, "s_cbranch_scc1 L_OS1"); sissue(); e("s_waitcnt vmcnt(0)", "s_branch L_OSC")
        e.label("L_OF")
        spin_down(); e(ostream, "s_cbranch_scc1 L_OS1")
        if not ROLL: oissue()
        e("s_branch L_OR")
        e.label("L_OSA")
        check_max(range(8, 24), 48)
        e("s_cbranch_vccz L_OSC")
        spin_down()
        e("s_branch L_OS1")
        e.label("L_OS0")
        if WL & 1: wfetch(16, False)
        for _ in range(opt.get("bo", 0) // 2): call_pump()
        if HG:
            e(f"s_mov_b32 s{sT+5}, {GFL}", arm("OP"))
            e.label("L_GP")
            e(f"buffer_load_dwordx4 v[44:47], v{vL16}, {srd(WS)}, s{sT+5} offen sc1", "s_branch L_GS")
            e.label("L_GC")
            check_max([44, 45, 46, 47], 43)
            e("s_cbranch_vccz L_OPD")
            spin_down(); e("s_branch L_GP")
            stream_round("L_GS", "L_GP", "L_GC", 1, "OP")
        if HQ:
            e(f"v_lshrrev_b32 v47, 2, v{vL16}", f"s_add_u32 s{sT}, s{sBK}, {HINT}", f"v_add_u32 v47, s{sT}, v47", f"v_lshlrev_b32 v46, 3, v{vL16}",
              f"v_add_u32 v46, {GFL - 32 * 128}, v46", "s_mov_b32 exec_lo, 0", "v_mov_b32 v47, v46", "s_mov_b64 exec, -1",
              f"s_and_b32 s{sT+5}, s{sC}, 7", f"s_or_b32 s{sT+5}, s{sT+5}, s{sW}")
            HL = opt.get("hlocal", 0)
            def hload(): e(f"s_mov_b32 exec_hi, {0 if HL else 0xff}", f"buffer_load_dword v46, v47, {srd(WS)}, 0 offen sc1", "s_mov_b64 exec, -1")
            if HL == 2:
                e(arm("OP"))
            else:
                hload(); e("s_waitcnt vmcnt(0)", arm("OP"), "s_branch L_HC0")
            e.label("L_HP")
            hload(); e("s_branch L_HS")
            e.label("L_HC")
            e(f"s_mov_b32 s{sCNT}, 0")
            e.label("L_HC0")
            if HL:
                e("s_mov_b32 exec_hi, 0", "v_cmp_eq_u32 vcc, -1, v46", "s_mov_b64 exec, -1", "s_cbranch_vccz L_OPD")
                spin_down(); e("s_branch L_HP")
            e("s_mov_b32 exec_hi, 0xff", "v_cmp_eq_u32 vcc, -1, v46", "s_mov_b64 exec, -1", "s_nop 2", "s_cmp_eq_u32 vcc_hi, 0", "s_cbranch_scc1 L_OPD")
            spin_down()
            e(f"s_or_b32 s{sT}, vcc_lo, s{sT+5}", "s_cbranch_scc1 L_HP")
            e(f"s_lshl_b32 s{sT}, s{sJ}, 7", f"s_add_u32 s{sT}, s{sT}, {GFL}", "v_mov_b32 v45, 0", "s_mov_b64 exec, 1",
              f"buffer_store_dword v45, off, {srd(WS)}, s{sT} sc1", "s_mov_b64 exec, -1", f"s_mov_b32 s{sT+5}, 1", "s_branch L_HP")
            stream_round("L_HS", "L_HP", "L_HC", 1, "OP")
        e(f"v_and_b32 v47, 0xf0, v{vL16}", f"v_and_b32 v46, 0x100, v{vL16}", "v_lshl_add_u32 v47, v46, 2, v47", f"v_sub_u32 v46, v{vOLD}, v{vL16}", "v_add_u32 v47, v47, v46")
        probe("L_OPR", f"buffer_load_dword v46, v47, {srd(WS)}, s{sOB} offen sc1", "-1", "L_OPD", "OP")
        e.label("L_NOO0")
        e(f"s_cmp_eq_u32 s{sLAY}, 0", "s_cbranch_scc0 L_NOO")
        setlim(max(CAP[0], WQH[3] + 10))
        if SPLITB: pump_until(WQH[3] + 9, DS)
        e("s_branch L_NOO" if opt.get("c28", 1) and not XCC else "s_branch L_OS0")
        e.label("L_OPD")
        if RW:
            e(f"s_mov_b32 s{sT+3}, s{KV}", f"s_mov_b32 s{sT+4}, s{KV+1}",
              f"s_lshl_b32 s{sT}, s{sJ}, 19", f"s_lshl_b32 s{sT+1}, s{sC}, 14", f"s_add_u32 s{sT}, s{sT}, s{sT+1}", f"s_add_u32 s{sT}, s{sT}, {WX}",
              f"s_add_u32 s{KV}, s32, s{sT}", f"s_addc_u32 s{KV+1}, s33, 0", f"s_mov_b32 s{KV+2}, 14336", f"s_lshl_b32 s{sT}, s{sW}, 12")
            for d in range(4):
                e(f"s_add_u32 m0, s{sT}, {STG+1024*d}", f"s_add_u32 s{sT+1}, s{sT}, {1024*d}", f"buffer_load_dwordx4 v{vL16}, {srd(KV)}, s{sT+1} offen sc1 lds")
            e(f"s_mov_b32 s{KV}, s{sT+3}", f"s_mov_b32 s{KV+1}, s{sT+4}", f"s_mov_b32 s{KV+2}, 0x20000")
        e(arm("OR"), f"s_cmp_ge_u32 s{sC}, 28", "s_cbranch_scc0 L_OS2" if WL & 1 else "s_cbranch_scc0 L_OS1")
        if RW: drain_stream(DC, 4)
        e("s_branch L_NOO")
        if WL & 1:
            e.label("L_OS2")
            sissue(); oissue()
            wo_move(WoA, vPT); wo_move(24, vPT)
            e("s_branch L_OS3")
        e.label("L_OS1")
        if debug and 14 in sset:
            e(f"s_cmp_lg_u32 s{SP[sset.index(14)]}, 0", "s_cbranch_scc1 L_OS1b"); stamp(14); e("s_waitcnt lgkmcnt(0)"); e.label("L_OS1b")
        sissue()
        oissue()
        e.label("L_OS3")
        if OROLL:
            e("s_branch L_ORS")
            stream_round("L_ORS", "L_OS1", "L_OSA", 6, "OR")
        else:
            if DO: drain_stream(DO, 6, DM)
            else: e("s_waitcnt vmcnt(0)")
            e("s_branch L_OSA")
    ool.append(ofail)
    stamp(6)
    def ws(o, mt, nt, s_, first):
        d = 40 + 8 * mt + 4 * nt
        return f"v_{'mul' if first else 'fmac'}_f32_dpp v{o}, v{vPT}, v{d+s_} row_newbcast:{4*mt+s_} {DPP}"
    omf(1, 0, 0); omf(0, 0, 1); omf(1, 0, 1); omf(0, 1, 0); omf(1, 1, 0)
    e(ws(24, 0, 0, 0, 1), ws(25, 0, 1, 0, 1)); omf(0, 1, 1)
    e(ws(24, 0, 0, 1, 0), ws(25, 0, 1, 1, 0)); omf(1, 1, 1)
    e(ws(24, 0, 0, 2, 0), ws(25, 0, 1, 2, 0), ws(26, 1, 0, 0, 1), ws(28, 1, 0, 2, 1), ws(24, 0, 0, 3, 0), ws(25, 0, 1, 3, 0), ws(26, 1, 0, 1, 0), ws(28, 1, 0, 3, 0))
    e(ws(27, 1, 1, 0, 1), ws(29, 1, 1, 2, 1), f"ds_write2st64_b32 v{vRW}, v24, v25 offset0:0 offset1:1", ws(27, 1, 1, 1, 0), ws(29, 1, 1, 3, 0),
      "v_pk_add_f32 v[26:27], v[26:27], v[28:29]", f"ds_write2st64_b32 v{vRW}, v26, v27 offset0:2 offset1:3")
    if not POST: pre_issue()
    e("s_waitcnt lgkmcnt(0)", "s_barrier")
    e(f"ds_read_b32 v28, v{aOR}", f"ds_read_b32 v29, v{aOR} offset:{RS}", f"ds_read_b32 v30, v{aOR} offset:{2*RS}", f"ds_read_b32 v31, v{aOR} offset:{3*RS}", "s_waitcnt lgkmcnt(0)")
    e("v_pk_add_f32 v[28:29], v[28:29], v[30:31]", "v_add_f32 v28, v28, v29", "v_min_u32 v28, -2, v28")
    e(f"buffer_store_dword v28, v{vX1ST}, {srd(WS)}, s{sX1} offen sc1")
    e.label("L_NOO")
    stamp(7)
    e(f"s_add_u32 s{sBK}, s{sBK}, {8*BSZ}", f"s_mov_b32 s{sXO}, s{sBK}", f"s_add_u32 s{sOB2}, s{sX1L}, 4096")
    e(f"s_cmp_eq_u32 s{sLAY}, 3", "s_cbranch_scc1 L_LAST")
    def last():
        e.label("L_LAST")
        e(f"s_cmp_ge_u32 s{sC}, 28", f"s_cselect_b32 s{sT}, 1, s{sW}", f"s_or_b32 s{sT}, s{sT}, s{sJ}", "s_cbranch_scc1 L_ENDW" if WBE else "s_cbranch_scc1 L_END")
        e(f"s_mov_b32 s{SF}, s28", f"s_mov_b32 s{SF+1}, s29", f"s_mov_b32 s{SF+2}, 7168", f"s_mov_b32 s{SS+2}, 0", f"s_mov_b32 s{sXO}, 0")
        x2_voff(vX1r, 41)
        e("s_branch L_XGO")
    ool.append(last)
    if opt.get("touch", 1):
        e(f"s_cmp_lg_u32 s{sW}, 1", "s_cbranch_scc1 L_NOTOUCH")
        e(f"s_mul_i32 s{sT}, s{sC}, {13*128}", f"s_add_u32 s{sT}, s{sT}, s{sBK}", f"v_lshlrev_b32 v32, 3, v{vL16}", "s_mov_b64 exec, 0x1fff",
          f"buffer_load_dword v63, v32, {srd(WS)}, s{sT} offen sc1", "s_mov_b64 exec, -1")
        e.label("L_NOTOUCH")
    def preload():
        for nm in ("A", "B"):
            e.label("L_PRELOAD" + nm)
            for k in range(4): e(f"s_call_b64 s[{sRET2}:{sRET2+1}], L_MOVEV{k}")
            e(f"s_mov_b32 s{sA0}, 0", "s_branch L_PRELD" + nm)
    ool.append(preload)
    e(f"s_mov_b32 s{sA0}, s{sLAY}", f"s_mov_b32 s{sA1}, 0")
    e(f"s_cmp_ge_u32 s{sC}, 28", f"s_cselect_b32 s{sT}, 7, s{sW}", f"s_cmp_eq_u32 s{sLAY}, 0", "s_cbranch_scc1 L_X0", f"s_cmp_lg_u32 s{sT}, 0", "s_cbranch_scc1 L_NOX")
    e.label("L_XGO")
    if not opt.get("xnoack"): e("s_waitcnt vmcnt(0)")
    if opt.get("xdelay"): e(f"s_sleep {opt['xdelay']}")
    def xissue():
        for i in range(8):
            e(f"buffer_load_dwordx4 {vr(24+4*i,4)}, v{vL16}, {srd(WS)}, s{sX1L if i < 4 else sOB2} offen offset:{1024*(i&3)} sc1")
    def xprep(): e(f"v_lshlrev_b32 v58, 16, v{vXOLD}", f"v_and_b32 v59, 0xffff0000, v{vXOLD}")
    e.label("L_XPOLL")
    xissue(); xprep()
    e(f"s_cmp_eq_u32 s{sA0}, 2", "s_cbranch_scc1 L_PRELOADA")
    if XR: e(f"s_sleep {XR}")
    e.label("L_PRELDA")
    if XR:
        e.label("L_XROLL"); xissue()
    for i in range(1, 8):
        e(f"s_waitcnt vmcnt({7-i+(8 if XR else 0)})")
        for r in range(2):
            e(f"v_pk_add_f32 {vr(60+2*r,2)}, {vr((24 if i == 1 else 60)+2*r,2)}, {vr(24+4*i+2*r,2)}")
    e.label("L_XSUM")
    e("v_permlane32_swap_b32 v60, v62", "v_permlane32_swap_b32 v61, v63", "v_pk_add_f32 v[60:61], v[60:61], v[62:63]")
    e("v_cmp_u_f32 vcc, v60, v61", "v_cvt_pk_bf16_f32 v62, v60, v61", "s_cbranch_vccnz L_XNAN")
    e.label("L_XOK")
    def wqb_in():
        if RW:
            wq_move(WqB, vPT)
            e(f"s_mov_b32 s{sLIMX}, 128", f"s_mov_b32 s{sLIM}, 128", f"s_min_u32 s{sSTOP}, s{sNSP}, s{sLIM}")
    def xool():
        e.label("L_XNAN")
        check_max(range(24, 56), 57)
        if XR:
            e(f"s_cbranch_vccnz L_XRF", f"s_cmp_eq_u32 s{sA1}, 77", "s_cbranch_scc1 L_XOK", f"s_mov_b32 s{sA1}, 77", "s_branch L_XADD")
            e.label("L_XRF")
            spin_down(); e("s_branch L_XROLL")
        else:
            e("s_cbranch_vccz L_XOK")
            spin_down(); e("s_branch L_XPOLL")
        e.label("L_XS2")
        spin_down()
        if XW2:
            def setflag(v): e(f"v_mov_b32 v57, {FLAG}", f"v_mov_b32 v58, {v}", "ds_write_b32 v57, v58")
            setflag(3)
            e(f"v_lshlrev_b32 v9, 4, v{vL16}")
            e(arm("XW"))
            e.label("L_XWP")
            e("s_mov_b32 exec_hi, 0", f"buffer_load_dword v8, v9, {srd(WS)}, s{sX1L} offen sc1", "s_mov_b64 exec, -1", "s_branch L_XWS")
            e.label("L_XWC")
            e("s_mov_b32 exec_hi, 0", "v_cmp_eq_u32 vcc, -1, v8", "s_mov_b64 exec, -1", "s_cbranch_vccz L_XWD")
            spin_down(); e("s_branch L_XWP")
            stream_round("L_XWS", "L_XWP", "L_XWC", 1, "XW")
            e.label("L_XWD")
            setflag(4)
            e("s_branch L_XS1")
        elif SITE["X"][0] == 0:
            for _ in range(BF // 2): call_pump()
            e("s_branch L_XS1")
        e.label("L_XS0")
        if SITE["X"][0] == 0: e("s_waitcnt vmcnt(0)")
        e.label("L_XS1")
        xissue(); e("s_branch L_XS")
        e.label("L_XSC")
        check_max(range(24, 56), 57)
        e("s_cbranch_vccnz L_XS2")
        xprep()
        e.label("L_XADD")
        for i in range(1, 8):
            for r in range(2):
                e(f"v_pk_add_f32 {vr(60+2*r,2)}, {vr((24 if i == 1 else 60)+2*r,2)}, {vr(24+4*i+2*r,2)}")
        e.nop(2); e("s_branch L_XSUM")
        e.label("L_X0")
        setlim(max(CAP[1], WQH[3] + 10))
        e(f"s_mov_b32 s{sT+5}, s{sT}")
        for _ in range(BX // 2): call_pump()
        if XCC:
            e(f"s_cmp_ge_u32 s{sC}, 28", "s_cbranch_scc0 L_X0W" if WL & 2 else "s_cbranch_scc0 L_NODR2")
            for _ in range(XCC - 1): drain_stream(DC, 0)
            e(f"s_sub_u32 s{sT}, s{sC}, 28", f"s_lshl_b32 s{sT}, s{sT}, 2", f"s_add_u32 s{sT}, s{sT}, s{sW}",
              f"v_lshrrev_b32 v60, 9, v{vL16}", f"v_lshl_add_u32 v60, v60, 4, s{sT}",
              f"v_and_b32 v61, 0x1f0, v{vL16}", "v_lshl_add_u32 v61, v60, 13, v61",
              f"v_bfe_u32 v62, v{vL16}, 6, 3", "v_mul_u32_u24 v62, 896, v62", f"v_bfe_u32 v63, v{vL16}, 4, 2", "v_lshl_add_u32 v62, v63, 3, v62", "v_lshl_add_u32 v62, v60, 5, v62",
              f"v_bfe_u32 v{vXOLD}, v{vL16}, 5, 1", f"v_lshlrev_b32 v{vXOLD}, 7, v{vXOLD}", f"v_bfe_u32 v63, v{vL16}, 6, 3", f"v_lshl_add_u32 v{vXOLD}, v63, 4, v{vXOLD}",
              f"v_bfe_u32 v63, v{vL16}, 4, 1", f"v_lshl_add_u32 v{vXOLD}, v63, 3, v{vXOLD}", f"v_lshl_add_u32 v{vXOLD}, v60, 8, v{vXOLD}",
              "v_cmp_le_u32 vcc, 28, v60", "v_mov_b32 v60, 0x40000000", "v_cndmask_b32 v61, v61, v60, vcc", f"v_cndmask_b32 v{vXOLD}, v{vXOLD}, v60, vcc",
              f"buffer_load_dwordx2 v[62:63], v62, {srd(SX)}, 0 offen", f"s_add_u32 s{sT+5}, s{sX1}, 4096")
            e.label("L_CXP")
            def cx(p_, r_): e(f"buffer_load_dwordx4 {vr(r_,4)}, v61, {srd(WS)}, s{sX1 if p_ < 8 else sT+5} offen offset:{512*(p_&7)} sc1")
            def acc(r_, first=False):
                e(f"v_max3_u32 v60, v{r_}, v{r_+1}, v{r_+2 if first else 60}", f"v_max3_u32 v60, v{r_+2}, v{r_+3}, v60")
                if first: e(f"v_mov_b32 v56, v{r_}", f"v_mov_b32 v57, v{r_+1}", f"v_mov_b32 v58, v{r_+2}", f"v_mov_b32 v59, v{r_+3}")
                else: e(f"v_pk_add_f32 v[56:57], v[56:57], {vr(r_,2)}", f"v_pk_add_f32 v[58:59], v[58:59], {vr(r_+2,2)}")
            for p_ in range(12): cx(p_, 8 + 4 * p_)
            e("s_waitcnt vmcnt(8)")
            for p_ in range(4): acc(8 + 4 * p_, p_ == 0)
            for p_ in range(12, 16): cx(p_, 8 + 4 * (p_ - 12))
            e("s_waitcnt vmcnt(4)")
            for p_ in range(4, 12): acc(8 + 4 * p_)
            e("s_waitcnt vmcnt(0)")
            for p_ in range(4): acc(8 + 4 * p_)
            e("v_cmp_eq_u32 vcc, -1, v60", "s_cbranch_vccz L_CXD")
            spin_down(); e("s_branch L_CXP")
            e.label("L_CXD")
            e("v_cvt_pk_bf16_f32 v56, v56, v57", "v_cvt_pk_bf16_f32 v57, v58, v59",
              "v_lshlrev_b32 v8, 16, v56", "v_and_b32 v9, 0xffff0000, v56", "v_lshlrev_b32 v10, 16, v57", "v_and_b32 v11, 0xffff0000, v57",
              "v_lshlrev_b32 v12, 16, v62", "v_and_b32 v13, 0xffff0000, v62", "v_lshlrev_b32 v14, 16, v63", "v_and_b32 v15, 0xffff0000, v63",
              "v_pk_add_f32 v[8:9], v[8:9], v[12:13]", "v_pk_add_f32 v[10:11], v[10:11], v[14:15]",
              "v_cvt_pk_bf16_f32 v56, v8, v9", "v_cvt_pk_bf16_f32 v57, v10, v11", "v_min_u32 v56, -2, v56", "v_min_u32 v57, -2, v57")
            publish(f"buffer_store_dwordx2 v[56:57], v{vXOLD}, {{r}}, s{sBK} offen {{fl}}")
            e("s_branch L_NODR2")
        if WL & 2:
            e.label("L_X0W")
            wfetch(24, True)
            drain_stream(opt.get("dw", 8), 4)
            wq_move(WqB, vPT)
            e("s_branch L_NODR2")
        if opt.get("c28", 1): e(f"s_cmp_ge_u32 s{sC}, 28", "s_cbranch_scc1 L_NODR2")
        e(arm("X"), f"s_cmp_eq_u32 s{sT+5}, 0", "s_cbranch_scc1 L_XS0", f"s_cmp_eq_u32 s{sW}, 0", "s_cbranch_scc1 L_X0P")
        wqb_in()
        if OROLL: drain_stream(DC, 12)
        flag_wait("L_XFW", 4)
        e("s_branch L_NODR2")
        e.label("L_X0P")
        if XW2 and SITE["XP"][0]: e(f"v_mov_b32 v57, {FLAG}", "v_mov_b32 v58, 3", "ds_write_b32 v57, v58")
        e(f"v_lshlrev_b32 v47, 4, v{vL16}")
        probe("L_XPR", f"buffer_load_dword v46, v47, {srd(WS)}, s{sBK} offen sc1", "0x0fffffff", "L_X0F", "XP")
        e.label("L_X0F")
        e(f"v_mov_b32 v57, {FLAG}", "v_mov_b32 v58, 5", "ds_write_b32 v57, v58")
        wqb_in()
        e("s_branch L_NODR2")
    ool.append(xool)
    stream_round("L_XS", "L_XS1", "L_XSC", 8, "X")
    e("v_lshlrev_b32 v60, 16, v62", "v_and_b32 v61, 0xffff0000, v62", "v_pk_add_f32 v[58:59], v[58:59], v[60:61]",
      f"v_cvt_pk_bf16_f32 v{vXOLD}, v58, v59", f"v_min_u32 v57, -2, v{vXOLD}")
    publish(f"buffer_store_dword v57, v{vX1r}, {{r}}, s{sXO} offen {{fl}}")
    stamp(8)
    e(f"s_cmp_eq_u32 s{sLAY}, 3", "s_cbranch_scc1 L_END", f"s_cmp_eq_u32 s{sLAY}, 0", "s_cbranch_scc1 L_X0F", "s_branch L_NODR2")
    e.label("L_NOX")
    if opt.get("wb"):
        e(f"s_cmp_lg_u32 s{sW}, 3", "s_cbranch_scc1 L_NOWB", f"s_cmp_lt_u32 s{sC}, {32 - opt['wb']}", "s_cbranch_scc1 L_NOWB", "buffer_wbl2 sc1")
        e.label("L_NOWB")
    e(f"s_cmp_eq_u32 s{sA0}, 2", "s_cbranch_scc1 L_PRELOADB")
    e.label("L_PRELDB")
    e.label("L_NODR2")
    e(f"s_add_u32 s{SX}, s32, s{sBK}", f"s_addc_u32 s{SX+1}, s33, 0")
    e(f"s_add_u32 s{sQB}, s{sBK}, 0x2000", f"s_add_u32 s{sOB}, s{sBK}, 0x4000", f"s_add_u32 s{sST}, s{sBK}, 0xC000",
      f"s_add_u32 s{sX1}, s{sX1}, 0x38000", f"s_add_u32 s{sX1L}, s{sX1L}, 0x38000", f"s_add_u32 s{sLAY}, s{sLAY}, 1")
    collect()
    if debug: e(f"s_add_u32 s{sSTB}, s{sSTB}, 16")
    stamp(0)
    e(f"s_cmp_eq_u32 s{sLAY}, 2", "s_cbranch_scc1 L_QAP", f"s_cmp_eq_u32 s{sLAY}, 3", "s_cbranch_scc1 L_QBP")
    setlim(CAP[2])
    if opt.get("qprobe", 0):
        e(f"v_lshlrev_b32 v47, 4, v{vL16}", f"s_lshl_b32 s{sT}, s{sW}, 11", f"v_add_u32 v47, s{sT}, v47", arm("QP"))
        e.label("L_QPR")
        e("s_mov_b64 exec, 15", f"buffer_load_dword v46, v47, {srd(SX)}, 0 offen sc1", "s_mov_b64 exec, -1", "s_branch L_QPRS")
        e.label("L_QPRC")
        e("s_mov_b64 exec, 15", "v_cmp_ne_u32 vcc, -1, v46", "s_mov_b64 exec, -1", "s_cbranch_vccnz L_QBP")
        spin_down(); e("s_branch L_QPR")
        stream_round("L_QPRS", "L_QPR", "L_QPRC", 1, "QP")
    if not EB and not RW and not MB: pump_until(WQBM + 1, DS)
    e("s_branch L_QBP")
    if WBE:
        e.label("L_ENDW")
        e(f"s_cmp_lg_u32 s{sW}, 3", "s_cbranch_scc1 L_END", f"s_cmp_lg_u32 s{sC}, 27", "s_cbranch_scc1 L_END", "buffer_wbl2 sc1")
    e.label("L_END")
    if debug:
        e("s_mov_b64 exec, -1"); collect(); stamp(9); e("s_waitcnt vmcnt(0)")
        e(f"s_lshl_b32 s{sT}, s2, 2", f"s_add_u32 s{sT}, s{sT}, s{sW}", f"s_lshl_b32 s{sT}, s{sT}, 8", f"s_add_u32 s{sT}, s{sT}, {STAMPS}",
          f"v_lshrrev_b32 v8, 2, v{vL16}", f"v_add_u32 v8, s{sT}, v8", f"global_store_dword v8, v{vDBG}, s[32:33]")
    e.label("L_EXIT")
    e("s_endpgm")

    e.label("L_PUMP")
    e(f"s_cmp_ge_u32 s{sIT}, s{sSTOP}", "s_cbranch_scc1 L_PSPEC")
    e.label("L_PGEN")
    pair()
    e.label("L_PRET")
    e(f"s_setpc_b64 s[{sRET}:{sRET+1}]")

    i = 0
    while i < len(ool):
        ool[i](); i += 1

    for k in range(4):
        e.label(f"L_MOVEV{k}")
        for tau in range(4):
            for r0 in range(2):
                e(f"v_xor_b32 v{vPT}, {(tau << 5) | (r0 << 4) | ((k >> 1) << 16)}, v{vVRD}")
                for r in (r0, r0 + 2):
                    e(f"ds_read_b64_tr_b16 {vr(AV+32*k+8*tau+2*r,2)}, v{vPT} offset:{(k & 1)*32768 + (r & 1)*512 + (r >> 1)*2048}")
        e(f"s_setpc_b64 s[{sRET2}:{sRET2+1}]")

    def kmove(base, t):
        if opt.get("nokmove"): return
        e("s_waitcnt vmcnt(6)")
        for jj in range(4):
            e(f"v_xor_b32 v{vPT}, {(jj << 6) | ((t >> 1) << 16)}, v{vKRD}")
            e(f"ds_read_b128 {ar(base+32*t+4*jj,4)}, v{vPT} offset:{(t & 1)*32768}", f"ds_read_b128 {ar(base+32*t+16+4*jj,4)}, v{vPT} offset:{(t & 1)*32768+256}")
        e("s_waitcnt lgkmcnt(0)")
    def pst(l):
        if debug and opt.get("pstamps"):
            e("s_memrealtime s[96:97]", "s_waitcnt lgkmcnt(0)", f"v_writelane_b32 v{vDBG}, s96, {l}")
    def wone(ptr, isQ, d):
        e(f"s_mov_b32 s{sT+3}, s{KV}", f"s_mov_b32 s{sT+4}, s{KV+1}")
        wdma_addr(isQ, vPT); wdma_issue(ptr, isQ, vPT, [d])
        e(f"s_mov_b32 s{KV}, s{sT+3}", f"s_mov_b32 s{KV+1}, s{sT+4}", f"s_mov_b32 s{KV+2}, 0x20000")
    act = {}
    def at(k, f): act.setdefault(k, []).append(f)
    for t in range(4):
        at(14 + 8 * t, lambda t=t: kmove(0, t)); at(78 + 8 * t, lambda t=t: kmove(128, t))
    at(32, lambda: switch(12, False)); at(64, lambda: switch(20, True)); at(96, lambda: switch(22, False))
    if not WL & 1: at(WOA[3] + 8, lambda: (e("s_waitcnt vmcnt(6)"), wo_move(WoA, vPT)))
    def kv_save(): e(f"s_mov_b32 s{sT+3}, s{KV}", f"s_mov_b32 s{sT+4}, s{KV+1}")
    def kv_back(): e(f"s_mov_b32 s{KV}, s{sT+3}", f"s_mov_b32 s{KV+1}, s{sT+4}", f"s_mov_b32 s{KV+2}, 0x20000")
    def row0():
        e(f"s_lshl_b32 s{sT}, s{sC}, 2", f"s_add_u32 s{sT}, s{sT}, s{sW}", f"s_lshl_b32 s{sT}, s{sT}, 2")
    def brow(d):
        kv_save(); row0()
        e(f"s_add_u32 s{sT}, s{sT}, {d}", f"s_lshl_b32 s{sT}, s{sT}, 13", f"s_lshl_b32 s{sT+1}, s{sJ}, 10", f"s_add_u32 s{sT}, s{sT}, s{sT+1}", f"s_lshl_b32 s{sT+1}, s{sW}, 12",
          f"s_add_u32 m0, s{sT+1}, {STG+1024*d}", f"s_mov_b32 s{KV}, s24", f"s_mov_b32 s{KV+1}, s25", f"s_mov_b32 s{KV+2}, 3670016",
          f"buffer_load_dwordx4 v{vL16}, {srd(KV)}, s{sT} offen {WFL} lds")
        kv_back()
    def bstore():
        e("s_waitcnt vmcnt(6)", f"s_cmp_ge_u32 s{sC}, 28", "s_cbranch_scc1 L_BSTX")
        e(f"v_bfe_u32 v{vPT}, v{vL16}, 5, 2", f"v_lshlrev_b32 v{vPT}, 10, v{vPT}", f"v_and_or_b32 v{vPT}, v{vL16}, 16, v{vPT}", f"v_lshrrev_b32 v{WqB}, 7, v{vL16}",
          f"v_lshl_add_u32 v{vPT}, v{WqB}, 5, v{vPT}", f"s_lshl_b32 s{sT}, s{sW}, 12", f"s_add_u32 s{sT}, s{sT}, {STG}", f"v_add_u32 v{vPT}, s{sT}, v{vPT}")
        for k in range(4): e(f"ds_read_b128 {ar(200+4*k,4)}, v{vPT} offset:{256*k}")
        kv_save()
        e(f"s_lshl_b32 s{sT}, s{sJ}, 19", f"s_add_u32 s{sT}, s{sT}, {WX}", f"s_add_u32 s{KV}, s32, s{sT}", f"s_addc_u32 s{KV+1}, s33, 0", f"s_mov_b32 s{KV+2}, 0x80000",
          f"v_lshlrev_b32 v{WqB}, 14, v{WqB}", f"v_and_b32 v{vPT}, 0x70, v{vL16}", f"v_add_u32 v{vPT}, v{vPT}, v{WqB}")
        row0()
        e(f"s_lshl_b32 s{sT}, s{sT}, 5", "s_waitcnt lgkmcnt(0)")
        for k in range(4):
            e(f"buffer_store_dwordx4 {ar(200+4*k,4)}, v{vPT}, {srd(KV)}, s{sT} offen {opt.get('bsf', 'sc1')}", f"s_add_u32 s{sT}, s{sT}, 0x20000")
        kv_back()
        e.label("L_BSTX")
    if RW:
        for d in range(4): at(26 + 2 * d, lambda d=d: brow(d))
        at(40, bstore)
    def only(lo, f):
        l_ = L("on")
        e(f"s_cmp_ge_u32 s{sC}, 28", f"s_cbranch_scc{1 if lo else 0} {l_}"); f(); e.label(l_)
    if SPLITB:
        if not WL & 2: at(WQBM, lambda: only(True, lambda: (e("s_waitcnt vmcnt(6)"), wq_move(WqB, vPT))))
        for d in range(4):
            if not WL & 2: at(WQB[d], lambda d=d: only(True, lambda: wone(24, True, d)))
            at(WQH[d], lambda d=d: only(False, lambda: wone(24, True, d)))
        at(WQH[3] + 8, lambda: only(False, lambda: (e("s_waitcnt vmcnt(6)"), wq_move(WqB, vPT))))
    elif not EB and not RW: at(WQBM, lambda: (e("s_waitcnt vmcnt(6)"), wq_move(WqB, vPT)))
    for i, k in enumerate(WQA): at(k, lambda d=W0 + i: wone(14, True, d))
    for d in range(4):
        (at(WOA[d], lambda d=d: wone(16, False, d)) if not WL & 1 else None); (at(WQB[d], lambda d=d: wone(24, True, d)) if WQB and not SPLITB else None); at(WOB[d], lambda d=d: wone(26, False, d))
    specials = sorted(act)
    wq_items = set(WQA) | (set() if WL & 2 else set(WQB))
    XW = opt.get("xw", 1)
    PST = {14: 10, 32: 11, 42: 12, 40: 12, 64: 13, 78: 14, 96: 26, 102: 27}
    e.label("L_PSPEC")
    e(f"s_cmp_ge_u32 s{sIT}, s{sLIM}", "s_cbranch_scc1 L_PRET")
    half = len(specials) // 2
    e(f"s_cmp_ge_u32 s{sIT}, {specials[half]}", "s_cbranch_scc1 L_PSPEC2")
    for k in specials[:half]:
        e(f"s_cmp_eq_u32 s{sIT}, {k}", f"s_cbranch_scc1 L_SP{k}")
    e.label("L_PSPEC2")
    for k in specials[half:-1]:
        e(f"s_cmp_eq_u32 s{sIT}, {k}", f"s_cbranch_scc1 L_SP{k}")
    for k in [specials[-1]] + specials[:-1]:
        e.label(f"L_SP{k}")
        if k in PST: pst(PST[k])
        for f in act[k]: f()
        nxt = specials[specials.index(k) + 1] if k != specials[-1] else 999
        e(f"s_mov_b32 s{sNSP}, {nxt}", f"s_min_u32 s{sSTOP}, s{sNSP}, s{sLIM}")
        if k in wq_items and XW:
            for x in range(XW):
                if x: e(f"s_cmp_ge_u32 s{sIT}, s{sSTOP}", "s_cbranch_scc1 L_PRET")
                pair()
            e("s_branch L_PUMP")
        else:
            e("s_branch L_PGEN")
    e.raw('.section .rodata,"a"'); e.raw(".p2align 6"); e.raw(f".amdhsa_kernel {KNAME}")
    for l in (".amdhsa_next_free_vgpr 512", ".amdhsa_next_free_sgpr 102", ".amdhsa_accum_offset 256", ".amdhsa_group_segment_fixed_size 0",
              ".amdhsa_kernarg_size 104", ".amdhsa_user_sgpr_count 2", ".amdhsa_user_sgpr_kernarg_segment_ptr 1", ".amdhsa_system_sgpr_workgroup_id_x 1",
              ".amdhsa_float_denorm_mode_32 3"):
        e.raw("  " + l)
    e.raw(".end_amdhsa_kernel")
    return e.text()

if __name__ == "__main__":
    dbg = "--debug" in sys.argv
    out = [a for a in sys.argv[1:] if not a.startswith("--")]
    txt = gen(dbg)
    open(out[0] if out else "k.s", "w").write(txt)
```

```python
import sys, struct
sys.path.insert(0, "gen")
from asmlib import Asm

KNAME = "interleave_layers__sliding_block_cached__sliding_block_cached__decode_kernel"
HEADER = open("interleave_layers__sliding_block_cached__sliding_block_cached__decode.s.ref").read().split("; Override launch")[0]

def f2u(x): return struct.unpack("<I", struct.pack("<f", x))[0]

STG = 131072
SCR = 147456
PA = SCR
SL = SCR + 4096
FLAG = SCR + 4160
QL = SCR + 13312
RED = SCR + 4608
RS = 2048 + 64
QB0 = 0x0
BLK = 0x10000
BSZ = 0xD000
X1 = BLK + 32 * BSZ
GFL = X1 + 4 * 0x38000
WSEND = GFL + 1024
HINT = 0xC800
STAMPS = 0x300000
WX = 0x400000
assert WSEND <= STAMPS
sJ, sC = 34, 35
KV, SF, WS, SX, SS = 36, 40, 44, 48, 4
sW, sSL, sRM, sIT, sLIM = 52, 53, 54, 55, 56
sSTOP, sNSP = 57, 59
sRET, sRET2 = 60, 62
sY, sCNT = 64, 65
sLAY, sSPIN = 66, 68
sQB, sOB, sOB2, sST, sX1, sBK = 69, 70, 71, 72, 73, 74
sA0, sA1 = 75, 76
sT = 77
sMI8, sMQ = 86, 88
sB, sS, sOH, sNQ, sEXP = 90, 91, 92, 93, 94
sX1L = 95
sSTB = 98
sODD = 8
sLIMX = 58
sXO = 67
vL16, vXOLD, vDBG, vB, vKRD, vPT, vVRD, vIDX = 0, 1, 2, 3, 4, 5, 6, 7
WqA, WoA, WqB = 64, 80, 96
vX0, vX1r, vRW, aD, aCS, aDG, aGS, vQST, vQLD, vPW, vOST, vOLD, vSLD, aOR, vX1ST, vSEL = range(112, 128)
AV = 128

def srd(r): return f"s[{r}:{r+3}]"
def vr(a, n): return f"v[{a}:{a+n-1}]"
def ar(a, n): return f"a[{a}:{a+n-1}]"
DPP = "row_mask:0xf bank_mask:0xf"

def gen(debug=False, opt=None):
    opt = opt or {}
    KFL = opt.get("kvflag", "nt"); WFL = opt.get("wflag", "nt")
    DS = opt.get("ds", 6)
    DP = opt.get("dp", 4)
    PRE = opt.get("pre", 4)
    XPRE = opt.get("xpre", 8)
    ROLL = opt.get("roll", 1)
    W0 = opt.get("w0", 4)
    WQA = opt.get("wqa", [])
    WQB = opt.get("wqb", [66, 70, 74, 78])
    EB = opt.get("eb", 0)
    if EB: WQB = []
    SPEC0 = min(WQA + [14])
    LIM0 = 26
    HG = opt.get("hg", 0)
    HQ = opt.get("hq", 0)
    QROT = opt.get("qrot", 16)
    RW = opt.get("rw", 0)
    WOA = [44, 48, 52, 56] if RW else [26, 34, 42, 50]
    WOB = [112, 116, 120, 124] if RW else [90, 98, 106, 114]
    if RW: WQB = []
    MB = opt.get("mb", 1)
    if MB:
        WQB = opt.get("wqb", [26, 30, 34, 38]); WOA = [WQB[3] + 10 + 2 * d for d in range(4)]
    WQBM = WQB[3] + 8 if WQB else 0
    SPLITB = opt.get("splitb", 1) and MB
    WL = opt.get("wl", 3)
    if WL & 2: WOB = [104, 110, 116, 122]
    if WL == 2: WOA = [26, 34, 42, 50]
    if WL == 3: LIM0 = 64
    WQH = opt.get("wqh", [66, 68, 70, 72])
    e = Asm()
    uid = [0]
    def L(p):
        uid[0] += 1; return f"L_{p}_{uid[0]}"
    ool = []
    SP = [0, 18, 84, 96, 100]
    sset = opt.get("stamps", [])
    clk = opt.get("clk", "s_memrealtime")
    def stamp(i):
        if not debug: return
        if i in (15, 9):
            e("s_memrealtime s[96:97]", f"s_add_u32 m0, s{sSTB}, {i}", "s_waitcnt lgkmcnt(0)", f"v_writelane_b32 v{vDBG}, s96, m0")
        elif i in sset:
            p = SP[sset.index(i)]
            e(f"{clk} s[{p}:{p+1}]")
    def collect():
        if not debug or not sset: return
        e("s_waitcnt lgkmcnt(0)")
        for n_, i in enumerate(sset):
            e(f"s_add_u32 m0, s{sSTB}, {i if i < 15 else i - 10}", "s_nop 0", f"v_writelane_b32 v{vDBG}, s{SP[n_]}, m0", f"s_mov_b32 s{SP[n_]}, 0")
    def pair():
        e(f"s_lshr_b32 s{sY}, s{sRM}, 7", f"s_mov_b32 m0, s{sRM}", f"s_and_b32 s{sY}, s{sY}, 0xc0", f"v_xor_b32 v{vPT}, s{sY}, v{vB}",
          f"buffer_load_dwordx4 v{vPT}, {srd(KV)}, m0 offen {KFL} lds", f"s_add_u32 m0, s{sRM}, 4096", f"v_xor_b32 v{vPT}, 32, v{vPT}", f"s_add_u32 s{sRM}, s{sRM}, 8192",
          f"buffer_load_dwordx4 v{vPT}, {srd(KV)}, m0 offen {KFL} lds", f"s_add_u32 s{sIT}, s{sIT}, 2")
    def pst0(l):
        if debug and opt.get("start"):
            e("s_memrealtime s[96:97]", "s_waitcnt lgkmcnt(0)", f"v_writelane_b32 v{vDBG}, s96, {l}")
    def spin_down(): e(f"s_sub_u32 s{sSPIN}, s{sSPIN}, 1", "s_cbranch_scc1 L_END")
    def call_pump():
        e(f"s_call_b64 s[{sRET}:{sRET+1}], L_PUMP")
    def pump_until(n, D):
        a, b = L("pu"), L("pud")
        e.label(a)
        e(f"s_cmp_ge_u32 s{sIT}, {n}", f"s_cbranch_scc1 {b}", f"s_waitcnt vmcnt({D-2})")
        call_pump()
        e(f"s_branch {a}")
        e.label(b)
    def landed(m, D):
        pump_until(m + D, D); e(f"s_waitcnt vmcnt({D})")
    DM = opt.get("dm", 0); XCC = opt.get("xcc", 2)
    CAP = opt.get("cap", [104, 104, 128] if WL & 2 else [128, 128, 128])
    def setlim(v): e(f"s_mov_b32 s{sLIM}, {v}", f"s_min_u32 s{sSTOP}, s{sNSP}, s{sLIM}")
    DA = opt.get("da", [8, 10, 8, 8, 6])
    XW2 = opt.get("xw2", 0); OROLL = opt.get("oroll", 0)
    XR = opt.get("xr", 0); WBE = opt.get("wbend", 0)
    D3 = opt.get("d3", 12); P1 = opt.get("p1", 4)
    DC = opt.get("dc", 6)
    DO = opt.get("do", 6); BX = opt.get("bx", 0); BF = opt.get("bf", 2); D2 = opt.get("d2", 10)
    POST = opt.get("post", 1)
    IPR = opt.get("ipr", 2)
    NR = opt.get("nr", 3)
    SITE = dict(QA=(IPR, NR), Q=(IPR, NR), A=(IPR, NR), OP=(IPR, NR), X=(IPR, NR), XP=(IPR, NR), XW=(IPR, NR), AP=(2, 4), QP=(IPR, NR), OR=(4, 2), AB=(2, 4), AA=(2, 4))
    SITE.update({k: tuple(v) for k, v in opt.get("site", {}).items()})
    def stream_round(a, again, chk, P, site):
        ipr, nr = SITE[site]
        def f():
            e.label(a)
            if ipr == 0:
                e("s_waitcnt vmcnt(0)", f"s_branch {chk}"); return
            for _ in range(ipr // 2):
                e(f"s_waitcnt vmcnt({ipr*nr-2+nr*P-(DM if site in ('OP', 'X', 'Q', 'XP') else 0)})"); call_pump()
            e(f"s_waitcnt vmcnt({(nr-1)*(P+ipr)+ipr})", f"s_cmp_lt_u32 s{sIT}, s{sLIM}", f"s_cbranch_scc1 {a}_w", "s_waitcnt vmcnt(0)", f"s_branch {chk}")
            e.label(a + "_w")
            e(f"s_sub_u32 s{sCNT}, s{sCNT}, 1", f"s_cbranch_scc0 {again}", f"s_mov_b32 s{sCNT}, 0", f"s_branch {chk}")
        ool.append(f)
    def arm(site): return f"s_mov_b32 s{sCNT}, {SITE[site][1]-1}"
    def probe(name, load, lanes, done, site, data=46):
        e(arm(site))
        e.label(name)
        e(f"s_mov_b32 exec_lo, {lanes}", "s_mov_b32 exec_hi, 0", load, "s_mov_b64 exec, -1", f"s_branch {name}S")
        e.label(name + "C")
        e(f"s_mov_b32 exec_lo, {lanes}", "s_mov_b32 exec_hi, 0", f"v_cmp_eq_u32 vcc, -1, v{data}", "s_mov_b64 exec, -1", f"s_cbranch_vccz {done}")
        spin_down(); e(f"s_branch {name}")
        stream_round(name + "S", name, name + "C", 1, site)
    def flag_wait(name, val):
        e(f"v_mov_b32 v47, {FLAG}")
        e.label(name)
        if XW2:
            e("ds_read_b32 v46, v47")
            spin_down()
            e("s_waitcnt lgkmcnt(0)", f"v_readfirstlane_b32 s{sT}, v46", f"s_cmp_ge_u32 s{sT}, 5", f"s_cbranch_scc1 {name}x", f"s_cmp_lg_u32 s{sT}, 3", f"s_cbranch_scc1 {name}")
            e(f"s_waitcnt vmcnt({DC-2})"); call_pump(); e(f"s_branch {name}")
            e.label(name + "x")
            return
        if DC:
            e(f"s_waitcnt vmcnt({DC-2-DM})"); call_pump()
        e("ds_read_b32 v46, v47")
        spin_down()
        e("s_waitcnt lgkmcnt(0)", f"v_readfirstlane_b32 s{sT}, v46", f"s_cmp_lt_u32 s{sT}, {val}", f"s_cbranch_scc1 {name}")
    def drain_stream(D=None, P=8, dm=0):
        D = D or DS
        b_ = L("dr")
        for _ in range(D // 2):
            e(f"s_waitcnt vmcnt({D-2+P-dm})"); call_pump()
        e(f"s_waitcnt vmcnt({D})", f"s_cmp_lt_u32 s{sIT}, s{sLIM}", f"s_cbranch_scc1 {b_}", "s_waitcnt vmcnt(0)")
        e.label(b_)
    def poll(name, issue, P, check, first, filler, gate, undo=None, special=None, cond=f"s_cmp_lt_u32 s{sLAY}, 2", light=None):
        e.label(f"L_{name}P")
        e(cond, f"s_cbranch_scc1 L_{name}S0")
        gate()
        issue()
        filler()
        e.label(f"L_{name}R")
        if ROLL:
            issue(); e(f"s_waitcnt vmcnt({P})")
        else:
            e("s_waitcnt vmcnt(0)")
        e.label(f"L_{name}C")
        check()
        first()
        e(f"s_cbranch_vccnz L_{name}F")
        e.label(f"L_{name}OK")
        def f():
            e.label(f"L_{name}F")
            if special: special()
            if undo: undo()
            spin_down()
            e(cond)
            if ROLL:
                e(f"s_cbranch_scc0 L_{name}R", f"s_branch L_{name}S1")
            else:
                e(f"s_cbranch_scc1 L_{name}S1"); issue(); e(f"s_branch L_{name}R")
            e.label(f"L_{name}S0")
            e(arm(name if name in SITE else name[0]))
            filler()
            if light:
                e(f"s_branch L_{name}S1")
                e.label(f"L_{name}LC")
                light[2](); e(f"s_cbranch_vccnz L_{name}LF")
                light[3](); first(); e(f"s_branch L_{name}OK")
                e.label(f"L_{name}LF")
                spin_down()
            e.label(f"L_{name}S1")
            (light[1] if light else issue)()
        ool.append(f)
        stream_round(f"L_{name}S", f"L_{name}S1", f"L_{name}LC" if light else f"L_{name}C", light[0] if light else P, name if name in SITE else name[0])
    def pre_issue(n=None):
        n = PRE if n is None else n
        if n == 0: return
        a, b = L("pn"), L("pnd")
        e(f"s_cmp_lt_u32 s{sIT}, s{sLIM}", f"s_cbranch_scc1 {a}")
        e.label(b)
        def f():
            e.label(a)
            for _ in range(n // 2): call_pump()
            e(f"s_branch {b}")
        ool.append(f)
    def publish(fmt, pre=None):
        if pre: e(pre)
        e(fmt.format(r=srd(SF), fl=""), fmt.format(r=srd(SS), fl="sc1"))
    def check_max(rs, t):
        rs = list(rs)
        e(f"v_max3_u32 v{t}, v{rs[0]}, v{rs[1]}, v{rs[2]}")
        rest = rs[3:]
        while len(rest) >= 2:
            e(f"v_max3_u32 v{t}, v{t}, v{rest[0]}, v{rest[1]}"); rest = rest[2:]
        if rest: e(f"v_max_u32 v{t}, v{t}, v{rest[0]}")
        e(f"v_cmp_eq_u32 vcc, -1, v{t}")
    def switch(ptr, isK):
        e(f"s_add_u32 s{KV}, s{ptr}, s{sSL}", f"s_addc_u32 s{KV+1}, s{ptr+1}, 0", f"s_mov_b32 s{KV+2}, 0x20000", f"s_lshl_b32 s{sRM}, s{sW}, 10")
        e(f"v_lshrrev_b32 v{vPT}, 5, v{vL16}", f"v_and_b32 v{vPT}, 16, v{vPT}", f"v_xor_b32 v{vB}, v{vPT}, v{vL16}")
    def wdma_addr(isQ, t0):
        if isQ:
            e(f"v_lshrrev_b32 v{t0}, 5, v{vL16}", f"v_lshlrev_b32 v{t0}, 13, v{t0}", f"v_and_or_b32 v{t0}, v{vL16}, 16, v{t0}",
              f"s_lshl_b32 s{sT}, s{sW}, 20", f"s_lshl_b32 s{sT+1}, s{sJ}, 10", f"s_add_u32 s{sT}, s{sT}, s{sT+1}", f"s_xor_b32 s{sT+1}, s{sC}, {QROT}", f"s_lshl_b32 s{sT+1}, s{sT+1}, 5", f"s_add_u32 s{sT}, s{sT}, s{sT+1}")
        else:
            e(f"v_lshrrev_b32 v{t0}, 6, v{vL16}", f"v_mul_u32_u24 v{t0}, 896, v{t0}", f"v_and_or_b32 v{t0}, v{vL16}, 48, v{t0}",
              f"s_lshl_b32 s{sT}, s{sJ}, 9", f"s_lshl_b32 s{sT+1}, s{sOH}, 8", f"s_add_u32 s{sT}, s{sT}, s{sT+1}", f"s_lshl_b32 s{sT+1}, s{sW}, 6", f"s_add_u32 s{sT}, s{sT}, s{sT+1}",
              f"s_mul_i32 s{sT}, s{sT}, 896", f"s_lshl_b32 s{sT+1}, s{sNQ}, 6", f"s_add_u32 s{sT}, s{sT}, s{sT+1}",
              f"s_cmp_ge_u32 s{sC}, 28", f"s_cselect_b32 s{sT}, 0x40000000, s{sT}")
        e(f"s_lshl_b32 s{sT+1}, s{sW}, 12", f"s_add_u32 s{sT+1}, s{sT+1}, {STG}")
    def wdma_issue(ptr, isQ, t0, ds):
        step = 262144 if isQ else 14336
        e(f"s_mov_b32 s{KV}, s{ptr}", f"s_mov_b32 s{KV+1}, s{ptr+1}", f"s_mov_b32 s{KV+2}, {0 if (opt.get('now') or (opt.get('nowqb') and ptr == 24) or ptr in opt.get('nop', [])) else 3670016}")
        for d in ds:
            e(f"s_add_u32 m0, s{sT+1}, {1024*d}", f"s_add_u32 s{sT+2}, s{sT}, {step*d}")
            e(f"buffer_load_dwordx4 v{t0}, {srd(KV)}, s{sT+2} offen {WFL} lds")
    def wfetch(ptr, isQ):
        e(f"s_mov_b32 s{sT+3}, s{KV}", f"s_mov_b32 s{sT+4}, s{KV+1}")
        wdma_addr(isQ, vPT); wdma_issue(ptr, isQ, vPT, range(4))
        e(f"s_mov_b32 s{KV}, s{sT+3}", f"s_mov_b32 s{KV+1}, s{sT+4}", f"s_mov_b32 s{KV+2}, 0x20000")
    def wq_move(dst, t, stg=STG):
        e(f"v_lshrrev_b32 v{t}, 8, v{vL16}", f"v_lshlrev_b32 v{t}, 8, v{t}", f"v_bfe_u32 v{dst}, v{vL16}, 4, 4", f"v_lshl_add_u32 v{t}, v{dst}, 3, v{t}",
          f"s_lshl_b32 s{sT}, s{sW}, 12", f"s_add_u32 s{sT}, s{sT}, {stg}", f"v_add_u32 v{t}, s{sT}, v{t}")
        for d in range(4):
            for hh in range(2):
                e(f"ds_read_b64_tr_b16 {vr(dst+4*d+2*hh,2)}, v{t} offset:{d*1024+hh*128}")
        e("s_waitcnt lgkmcnt(0)")
    def wo_move(dst, t):
        e(f"v_lshrrev_b32 v{t}, 8, v{vL16}", f"v_lshlrev_b32 v{t}, 3, v{t}", f"v_bfe_u32 v{dst}, v{vL16}, 6, 2", f"v_add_u32 v{t}, v{t}, v{dst}", f"v_lshlrev_b32 v{t}, 6, v{t}",
          f"v_bfe_u32 v{dst}, v{vL16}, 4, 2", f"v_lshl_add_u32 v{t}, v{dst}, 3, v{t}",
          f"s_lshl_b32 s{sT}, s{sW}, 12", f"s_add_u32 s{sT}, s{sT}, {STG}", f"v_add_u32 v{t}, s{sT}, v{t}")
        for ks in range(2):
            for nt in range(2):
                for hh in range(2):
                    e(f"ds_read_b64_tr_b16 {vr(dst+8*ks+4*nt+2*hh,2)}, v{t} offset:{ks*2048+hh*256+nt*32}")
        e("s_waitcnt lgkmcnt(0)")
    def x2_voff(d, t):
        e(f"v_bfe_u32 v{d}, v{vL16}, 6, 3", f"v_mul_u32_u24 v{d}, 896, v{d}", f"v_bfe_u32 v{t}, v{vL16}, 4, 2", f"v_lshl_add_u32 v{d}, v{t}, 3, v{d}",
          f"v_lshrrev_b32 v{t}, 9, v{vL16}", f"v_lshl_add_u32 v{d}, v{t}, 2, v{d}", f"s_lshl_b32 s{sT}, s{sC}, 5", f"v_add_u32 v{d}, s{sT}, v{d}")
    def q_prep():
        e(f"s_not_b64 exec, s[{sMI8}:{sMI8+1}]")
        for i in range(16): e(f"v_mov_b32 v{8+i}, 0x3f803f80")
        e("s_mov_b64 exec, -1")

    e.raw(HEADER.rstrip())
    e.raw("; @launch grid=(256,1,1) block=(256,1,1) lds=163840")
    e.raw('.amdgcn_target "amdgcn-amd-amdhsa--gfx950"')
    e.raw(".text"); e.raw(f".globl {KNAME}"); e.raw(".p2align 8"); e.raw(f".type {KNAME},@function")
    e.label(KNAME)
    if debug and opt.get("start"): e("s_memrealtime s[100:101]")
    e("s_cmp_ge_u32 s2, 256", "s_cbranch_scc1 L_EXIT")
    e("s_load_dwordx16 s[8:23], s[0:1], 0", "s_load_dwordx8 s[24:31], s[0:1], 64", "s_load_dwordx2 s[32:33], s[0:1], 96")
    e("s_getpc_b64 s[80:81]")
    e.label("L_PC")
    if debug:
        e(f"v_mov_b32 v{vDBG}, 0", f"s_mov_b32 s{sSTB}, 0")
        if not opt.get("start"): stamp(15)
    e("v_lshrrev_b32 v8, 6, v0", "v_and_b32 v9, 63, v0", "v_lshlrev_b32 v30, 4, v0")
    e(f"s_and_b32 s{sJ}, s2, 7", f"s_lshr_b32 s{sC}, s2, 3")
    e(f"v_readfirstlane_b32 s{sW}, v8")
    e(f"v_lshlrev_b32 v{vL16}, 4, v9")
    for i_ in range(opt.get("codepf", 5)):
        if i_: e(f"v_add_u32 v11, {4096*i_}, v30", "v_min_u32 v11, L_CODE_END-L_PC-16, v11")
        e(f"global_load_dwordx4 a[{200+4*i_}:{203+4*i_}], v{11 if i_ else 30}, s[80:81]")
    e(f"s_and_b32 s{sB}, s{sC}, 7", f"s_lshr_b32 s{sS}, s{sC}, 3")
    e(f"s_lshl_b32 s{sSL}, s{sB}, 3", f"s_add_u32 s{sSL}, s{sSL}, s{sJ}", f"s_lshl_b32 s{sSL}, s{sSL}, 21",
      f"s_lshl_b32 s{sT}, s{sS}, 17", f"s_add_u32 s{sSL}, s{sSL}, s{sT}", f"s_add_u32 s{sSL}, s{sSL}, 0x180000")
    e(f"s_mov_b32 s{KV+3}, 0x20000")
    wdma_addr(True, 12)
    e(f"v_lshrrev_b32 v{vPT}, 5, v{vL16}", f"v_and_b32 v{vPT}, 16, v{vPT}", f"v_xor_b32 v{vB}, v{vPT}, v{vL16}",
      f"s_lshl_b32 s{sRM}, s{sW}, 10")
    for i in range(4): e(f"v_mov_b32 v{24+i}, -1")
    e(f"s_lshl_b32 s{sA0}, s2, 12", f"s_add_u32 s{sA0}, s{sA0}, {BLK}", f"s_add_u32 s{sA1}, s{sA0}, 0x100000", f"s_add_u32 s{sCNT}, s{sA0}, 0x200000",
      f"s_mov_b32 s{WS+2}, {WSEND}", f"s_mov_b32 s{WS+3}, 0x20000")
    e("v_bfe_u32 v13, v9, 2, 3", "v_lshrrev_b32 v14, 5, v9", f"v_lshl_add_u32 v14, v8, 1, v14",
      f"s_and_b32 s{sY}, s{sC}, 16", f"s_xor_b32 s{sY}, s{sY}, {QROT}", f"s_and_b32 s{sIT}, s{sC}, 15", f"s_lshl_b32 s{sIT}, s{sIT}, 6", f"s_add_u32 s{sY}, s{sY}, s{sIT}",
      "v_lshlrev_b32 v15, 10, v14", "v_and_b32 v16, 1, v13", "v_lshl_add_u32 v15, v16, 5, v15", "v_lshrrev_b32 v16, 1, v13", "v_lshl_add_u32 v15, v16, 2, v15", f"v_add_u32 v{vQST}, s{sY}, v15",
      f"s_lshl_b32 s{sQB}, s{sJ}, 13")
    e("s_waitcnt lgkmcnt(0)")
    pst0(43)
    if debug and opt.get("start"): e(f"v_writelane_b32 v{vDBG}, s100, 15")
    LATE = 0
    NK0 = opt.get("nk0", 8)
    KA = opt.get("ka", 2)
    def k_first(q0, q1):
        e(f"s_add_u32 s{KV}, s10, s{sSL}", f"s_addc_u32 s{KV+1}, s11, 0", f"s_mov_b32 s{KV+2}, 0x20000")
        for q in range(q0, q1):
            e(f"s_mov_b32 m0, s{sRM}", f"s_add_u32 s{sRM}, s{sRM}, 4096")
            if q & 7: e(f"v_xor_b32 v{vPT}, {(q & 7) << 5}, v{vB}")
            e(f"buffer_load_dwordx4 v{vPT if q & 7 else vB}, {srd(KV)}, m0 offen {KFL} lds")
            if q == 0: pst0(46)
    def clears():
        e(f"s_mov_b32 s{WS}, s32", f"s_mov_b32 s{WS+1}, s33")
        if not opt.get("noclear"):
            for r in (sA0, sA1, sCNT)[:opt.get("nclr", 3)]: e(f"buffer_store_dwordx4 v[24:27], v30, {srd(WS)}, s{r} offen sc1")
        e(f"buffer_store_dword v24, v{vQST}, {srd(WS)}, s{sQB} offen sc1")
    def pages():
        e(f"v_mov_b32 v13, s{sSL}", "v_mov_b32 v14, 0", "v_mov_b32 v15, 0x300000", "s_mov_b64 exec, 1")
        for p_ in (12, 20, 22): e(f"global_load_dword a199, v13, s[{p_}:{p_+1}] nt")
        if opt.get("tlb") == 2:
            for p_ in (16, 24, 26): e(f"global_load_dword a199, v14, s[{p_}:{p_+1}] nt", f"global_load_dword a199, v15, s[{p_}:{p_+1}] nt")
        e("s_mov_b64 exec, -1")
    ORD = opt.get("ord", "cwk")
    for ch in ORD:
        if ch == "k": k_first(0, KA)
        if ch == "w": wdma_issue(14, True, 12, range(W0))
        if ch == "c": clears()
        if ch == "t": pages()
    pst0(44)
    if debug:
        for p in SP: e(f"s_mov_b32 s{p}, 0")
    e(f"s_mov_b32 s{sIT}, {NK0}", f"s_mov_b32 s{sLIM}, {LIM0}", f"s_mov_b32 s{sNSP}, {SPEC0}", f"s_mov_b32 s{sSTOP}, {SPEC0}", f"s_mov_b32 s{sLIMX}, {CAP[0]}")
    for r, n in ((SF, 0), (SS, WSEND)):
        e(f"s_mov_b32 s{r}, s32", f"s_mov_b32 s{r+1}, s33", f"s_mov_b32 s{r+2}, {n}", f"s_mov_b32 s{r+3}, 0x20000")
    e(f"s_mov_b32 s{SX}, s8", f"s_mov_b32 s{SX+1}, s9", f"s_mov_b32 s{SX+2}, 7168", f"s_mov_b32 s{SX+3}, 0x20000")
    x2_voff(28, 29)
    e(f"buffer_load_dword v{vXOLD}, v28, {srd(SX)}, 0 offen")
    e(f"s_cmp_ge_u32 s{sC}, 14", f"s_cselect_b32 s{sOH}, 1, 0", f"s_mul_i32 s{sT}, s{sOH}, 14", f"s_sub_u32 s{sNQ}, s{sC}, s{sT}")
    e("v_and_b32 v10, 15, v9", "v_lshrrev_b32 v11, 4, v9")
    e(f"s_lshl_b32 s{sT}, s{sW}, 10")
    e("v_mul_u32_u24 v12, 896, v10", "v_lshl_add_u32 v12, v11, 4, v12", f"s_lshl_b32 s{sT+1}, s{sW}, 8", f"v_add_u32 v12, s{sT+1}, v12")
    e(f"s_cmp_eq_u32 s{sW}, 3", f"s_cselect_b32 s{sT+1}, 0x40000000, 0", f"v_add_u32 v13, s{sT+1}, v12")
    e("s_mov_b32 exec_lo, 0x00ff00ff", "s_mov_b32 exec_hi, 0x00ff00ff")
    for d in range(4): e(f"buffer_load_dwordx4 {vr(40+4*d,4)}, v{12 if d < 2 else 13}, {srd(SX)}, 0 offen offset:{64*d}")
    e("s_mov_b64 exec, -1")
    e("v_lshlrev_b32 v12, 4, v10", "v_lshl_add_u32 v12, v11, 7, v12", f"s_lshl_b32 s{sT+1}, s{sW}, 11", f"v_add_u32 v{vX0}, s{sT+1}, v12")
    e("v_lshrrev_b32 v12, 1, v10", "v_lshlrev_b32 v12, 12, v12", "v_and_b32 v13, 1, v10", "v_lshl_add_u32 v12, v13, 9, v12",
      "v_xor_b32 v14, v11, v10", "v_lshl_add_u32 v12, v14, 4, v12", f"v_add_u32 v{vKRD}, s{sT}, v12")
    e(f"s_mul_i32 s{sT+1}, s{sW}, {RS}", f"s_add_u32 s{sT+1}, s{sT+1}, {RED}", "v_lshlrev_b32 v12, 2, v9", f"v_add_u32 v{vRW}, s{sT+1}, v12")
    e("v_and_b32 v12, 3, v9", f"v_mul_u32_u24 v12, {RS}, v12", f"v_add_u32 v12, {RED}, v12",
      "v_bfe_u32 v13, v9, 2, 3", "v_lshrrev_b32 v14, 5, v9", f"s_lshl_b32 s{sT+1}, s{sW}, 1", f"v_add_u32 v14, s{sT+1}, v14")
    e("v_lshrrev_b32 v15, 2, v14", "v_lshlrev_b32 v15, 6, v15", "v_and_b32 v16, 3, v14", "v_lshl_add_u32 v15, v16, 8, v15", "v_add_u32 v15, v15, v12")
    e(f"v_lshl_add_u32 v{aD}, v13, 3, v15")
    e(f"v_lshl_add_u32 v{aCS}, v13, 3, v12")
    e(f"v_lshl_add_u32 v{aDG}, v14, 2, v15")
    e(f"v_lshl_add_u32 v{aGS}, v14, 2, v12")
    e(f"s_mov_b32 s{sMI8}, 0x00ff00ff", f"s_mov_b32 s{sMI8+1}, 0x00ff00ff", f"s_mov_b32 s{sMQ}, 0x11111111", f"s_mov_b32 s{sMQ+1}, 0x11111111")
    e(f"s_mov_b32 s{sLAY}, 0", f"s_mov_b32 s{sSPIN}, 2000000")
    e(f"s_mul_i32 s{sBK}, s{sJ}, {BSZ}", f"s_add_u32 s{sBK}, s{sBK}, {BLK}", f"s_add_u32 s{sOB}, s{sBK}, 0x4000",
      f"s_add_u32 s{sST}, s{sBK}, 0xC000", f"s_mov_b32 s{sX1}, {X1}", f"s_lshl_b32 s{sX1L}, s{sC}, 13", f"s_add_u32 s{sX1L}, s{sX1L}, {X1}")
    e("v_lshrrev_b32 v12, 2, v10", "v_and_b32 v13, 3, v9", "v_and_b32 v14, 1, v11", "v_lshrrev_b32 v17, 1, v11")
    e("v_lshlrev_b32 v18, 5, v14", "v_lshl_add_u32 v18, v12, 3, v18", "v_lshl_add_u32 v18, v17, 1, v18")
    e("v_lshlrev_b32 v19, 3, v14", "v_lshl_add_u32 v19, v12, 1, v19")
    e(f"s_lshl_b32 s{sT}, s{sW}, 3", "v_lshrrev_b32 v20, 1, v13", f"v_add_u32 v20, s{sT}, v20", "v_xor_b32 v20, v20, v19",
      "v_lshlrev_b32 v18, 9, v18", "v_lshl_add_u32 v18, v20, 4, v18", "v_and_b32 v20, 1, v13", f"v_lshl_add_u32 v{vVRD}, v20, 3, v18")
    e("v_and_b32 v14, 1, v9", "v_bfe_u32 v15, v10, 1, 1", "v_cmp_eq_u32 vcc, 1, v15", "v_mov_b32 v16, 0x4444", "v_mov_b32 v17, 0xeeee", f"v_cndmask_b32 v{vIDX}, v16, v17, vcc",
      "v_cmp_eq_u32 vcc, 1, v14", "v_mov_b32 v16, 0x01000504", "v_mov_b32 v17, 0x07060302", f"v_cndmask_b32 v{vSEL}, v16, v17, vcc")
    e("v_lshlrev_b32 v16, 4, v13", "v_lshl_add_u32 v16, v11, 6, v16", f"s_lshl_b32 s{sT}, s{sB}, 10", f"v_add_u32 v{vQLD}, s{sT}, v16")
    e(f"s_mul_i32 s{sT}, s{sW}, 320", f"s_add_u32 s{sT}, s{sT}, {PA}", "v_lshlrev_b32 v16, 10, v11", "v_bfe_u32 v17, v10, 2, 1", "v_lshl_add_u32 v16, v17, 5, v16",
      "v_and_b32 v17, 8, v10", "v_add_u32 v16, v16, v17", "v_lshl_add_u32 v16, v14, 2, v16", "v_lshl_add_u32 v16, v15, 1, v16", f"v_add_u32 v{vPW}, s{sT}, v16")
    e(f"s_and_b32 s{sT}, s{sB}, 3", f"s_lshl_b32 s{sT}, s{sT}, 2", f"s_add_u32 s{sT}, s{sT}, s{sS}", f"s_lshl_b32 s{sT}, s{sT}, 4", f"s_lshr_b32 s{sT+1}, s{sB}, 2", f"s_lshl_b32 s{sT+1}, s{sT+1}, 10",
      f"s_add_u32 s{sT}, s{sT}, s{sT+1}", f"s_lshl_b32 s{sT+1}, s{sW}, 12", f"s_add_u32 s{sT}, s{sT}, s{sT+1}",
      "v_and_b32 v16, 6, v9", "v_lshlrev_b32 v16, 1, v16", "v_lshl_add_u32 v16, v14, 14, v16", "v_lshrrev_b32 v17, 5, v9", "v_lshl_add_u32 v16, v17, 11, v16",
      "v_bfe_u32 v17, v9, 3, 2", "v_lshl_add_u32 v16, v17, 8, v16", f"v_add_u32 v{vOST}, s{sT}, v16")
    e(f"s_lshl_b32 s{sT}, s{sOH}, 14", f"s_add_u32 s{sT}, s{sT}, s{sT+1}", f"v_add_u32 v{vOLD}, s{sT}, v{vL16}")
    e("v_and_b32 v16, 7, v9", "v_lshlrev_b32 v16, 4, v16", "v_lshl_add_u32 v16, v11, 7, v16", f"s_lshl_b32 s{sT}, s{sOH}, 10", f"v_add_u32 v{vSLD}, s{sT}, v16")
    e(f"s_and_b32 s{sT}, s{sW}, 1", f"s_lshr_b32 s{sT+1}, s{sW}, 1", f"s_lshl_b32 s{sT+2}, s{sT}, 1", f"s_add_u32 s{sT+2}, s{sT+2}, s{sT+1}", f"s_lshl_b32 s{sT+2}, s{sT+2}, 8",
      f"s_add_u32 s{sT+2}, s{sT+2}, {RED}", "v_lshlrev_b32 v16, 2, v9", f"v_add_u32 v{aOR}, s{sT+2}, v16")
    e(f"s_lshl_b32 s{sT+2}, s{sNQ}, 1", f"s_add_u32 s{sT+2}, s{sT+2}, s{sT+1}", f"s_lshl_b32 s{sT+2}, s{sT+2}, 13",
      f"s_lshl_b32 s{sT+3}, s{sJ}, 1", f"s_add_u32 s{sT+3}, s{sT+3}, s{sOH}", f"s_lshl_b32 s{sT+3}, s{sT+3}, 9", f"s_add_u32 s{sT+2}, s{sT+2}, s{sT+3}",
      f"s_lshl_b32 s{sT}, s{sT}, 8", f"s_add_u32 s{sT+2}, s{sT+2}, s{sT}", "v_lshlrev_b32 v16, 2, v9", f"v_add_u32 v{vX1ST}, s{sT+2}, v16")
    e(f"s_and_b32 s{sT}, s{sB}, 3", f"s_lshl_b32 s{sT}, s{sT}, 7", f"s_lshr_b32 s{sB}, s{sB}, 2", f"s_lshl_b32 s{sB}, s{sB}, 6", f"s_add_u32 s{sB}, s{sB}, s{sT}",
      f"s_lshl_b32 s{sS}, s{sS}, 4", f"s_add_u32 s{sB}, s{sB}, s{sS}", f"s_lshr_b32 s{sT}, s{sW}, 1", f"s_lshl_b32 s{sT}, s{sT}, 9", f"s_add_u32 s{sB}, s{sB}, s{sT}",
      f"s_and_b32 s{sT}, s{sW}, 1", f"s_lshl_b32 s{sT}, s{sT}, 3", f"s_add_u32 s{sB}, s{sB}, s{sT}", f"s_mov_b32 s{sS}, {(-62*1024) & 0xffffffff}",
      f"s_mov_b32 s{sODD}, 0xaaaaaaaa", f"s_mov_b32 s{sODD+1}, 0xaaaaaaaa")
    e("v_bfe_u32 v16, v9, 1, 1", "v_lshlrev_b32 v16, 7, v16", "v_bfe_u32 v17, v9, 2, 3", "v_lshl_add_u32 v16, v17, 4, v16", "v_lshl_add_u32 v16, v14, 3, v16",
      "v_lshrrev_b32 v17, 5, v9", "v_lshl_add_u32 v16, v17, 2, v16", f"s_lshl_b32 s{sT}, s{sC}, 8",
      f"s_cmp_eq_u32 s{sW}, 0", f"s_cselect_b32 s{sT}, s{sT}, 0x40000000", f"v_add_u32 v{vX1r}, s{sT}, v16")
    for i in range(4): e(f"v_mov_b32 v{24+i}, 0")
    e(f"v_add_u32 v12, {PA}, v30", "ds_write_b128 v12, v[24:27]", f"v_mov_b32 v12, {FLAG}", "ds_write_b32 v12, v24")
    e(f"s_getreg_b32 s{sT}, hwreg(HW_REG_XCC_ID)", f"s_and_b32 s{sT}, s{sT}, 15", f"s_mul_i32 s{sT+1}, s{sT}, s{sT}", f"s_lshl_b32 s{sT}, s{sT}, 6",
      f"s_lshl_b32 s{sT+1}, s{sT+1}, 15", f"s_add_u32 s{sT}, s{sT}, s{sT+1}", f"s_add_u32 s{sT}, s{sT}, 1", f"s_lshl_b32 s{sEXP}, s{sT}, 5")
    e(f"v_mov_b32 v28, s{sT}", f"s_lshl_b32 s{sT+1}, s{sJ}, 5", f"v_mov_b32 v29, s{sT+1}")
    if "T" in ORD: pages()
    k_first(KA, NK0)
    pst0(45)
    e(f"s_mov_b32 s{sCNT}, 0", "s_branch L_Q0")
    stamp(0)

    def qsec(v, W):
        def issue():
            e(f"s_mov_b64 exec, s[{sMI8}:{sMI8+1}]")
            for d in range(4):
                e(f"buffer_load_dwordx4 {vr(8+4*d,4)}, v{vX0}, {srd(SX)}, 0 offen offset:{512*d} sc1")
            e("s_mov_b64 exec, -1")
        def first_layer():
            e.label("L_Q0")
            pump_until(max(WQA + [0]) + 2, DS)
            drain_stream(DA[0], opt.get("p0", 13))
            for _ in range(opt.get("pre0", 6) // 2): call_pump()
            e("s_barrier", f"s_cmp_lg_u32 s{sW}, 0", "s_cbranch_scc1 L_ARR")
            e("s_mov_b64 exec, 1", "global_atomic_add v29, v28, s[30:31] sc1", "s_mov_b64 exec, -1")
            e.label("L_ARR")
            q_prep()
            e(f"s_mov_b64 exec, s[{sMI8}:{sMI8+1}]")
            for i in range(16): e(f"v_mov_b32 v{8+i}, v{40+i}")
            e("s_mov_b64 exec, -1")
            if LATE:
                for i in range(4): e(f"v_mov_b32 v{40+i}, -1")
                e(f"s_add_u32 s{sT}, s{sA0}, 0x200000", f"buffer_store_dword v40, v{vQST}, {srd(WS)}, s{sQB} offen sc1")
                if not opt.get("noclear"):
                    for r in (sA0, sA1, sT): e(f"buffer_store_dwordx4 v[40:43], v62, {srd(WS)}, s{r} offen sc1")
                for _ in range(opt.get("lx", 2) // 2): call_pump()
            wq_move(WqA, vPT)
            for _ in range(opt.get("pre1", 4) // 2): call_pump()
            if EB: wq_move(WqB, vPT, STG - 16384)
            e("v_mfma_f32_16x16x32_bf16 v[28:31], v[8:11], v[8:11], 0", "s_branch L_QAOK")
        if v == "A": ool.append(first_layer)
        poll(f"Q{v}", issue, 4, lambda: check_max(range(8, 24), 32),
             lambda: e("v_mfma_f32_16x16x32_bf16 v[28:31], v[8:11], v[8:11], 0"), q_prep,
             lambda: e("s_waitcnt vmcnt(0) lgkmcnt(0)", "s_barrier"))
        stamp(1)
        for d in range(4):
            if d: e(f"v_mfma_f32_16x16x32_bf16 v[28:31], {vr(8+4*d,4)}, {vr(8+4*d,4)}, v[28:31]")
            e(f"v_mfma_f32_16x16x32_bf16 v[24:27], {vr(8+4*d,4)}, {vr(W+4*d,4)}, {'0' if d == 0 else 'v[24:27]'}")
    qsec("A", WqA)
    e.label("L_QJ")
    def qb():
        qsec("B", WqB); e("s_branch L_QJ")
    ool.append(qb)
    if not POST: pre_issue()
    stamp(20)
    e(f"ds_write2st64_b32 v{vRW}, v28, v29 offset0:4 offset1:5", f"ds_write2st64_b32 v{vRW}, v30, v31 offset0:6 offset1:7",
      f"ds_write2st64_b32 v{vRW}, v24, v25 offset0:0 offset1:1", f"ds_write2st64_b32 v{vRW}, v26, v27 offset0:2 offset1:3", "s_waitcnt lgkmcnt(0)")
    stamp(21)
    e("s_barrier")
    stamp(22)
    e(f"ds_read_b32 v37, v{aGS} offset:{1024+128}", f"ds_read_b32 v36, v{aDG} offset:1024", f"ds_read_b64 v[32:33], v{aD}", f"ds_read_b64 v[34:35], v{aCS} offset:128")
    inv = f2u(1.0 / 448.0)
    X1_, X2_ = f"quad_perm:[1,0,3,2] {DPP}", f"quad_perm:[2,3,0,1] {DPP}"
    e("s_waitcnt lgkmcnt(2)")
    e(f"v_add_f32_dpp v37, v37, v37 {X1_}", f"v_add_f32_dpp v36, v36, v36 {X1_}", "s_waitcnt lgkmcnt(0)")
    stamp(23)
    e(f"v_add_f32_dpp v37, v37, v37 {X2_}", f"v_add_f32_dpp v36, v36, v36 {X2_}",
      f"v_mul_f32 v37, {inv}, v37", f"v_mul_f32 v36, {inv}, v36",
      "v_pk_fma_f32 v[32:33], v[34:35], v[36:37], v[32:33] op_sel:[0,1,0] op_sel_hi:[1,1,1] neg_lo:[1,0,0] neg_hi:[1,0,0]",
      "v_fma_f32 v36, -v37, v37, v36", "v_max_f32 v36, 0, v36",
      f"v_add_f32_dpp v32, v32, v32 {X1_}", f"v_add_f32_dpp v33, v33, v33 {X1_}", f"v_add_f32 v36, {f2u(1e-5)}, v36", "v_rsq_f32 v36, v36",
      f"v_add_f32_dpp v32, v32, v32 {X2_}", f"v_add_f32_dpp v33, v33, v33 {X2_}", f"v_mul_f32 v36, {f2u(1.4426950408889634/16.0)}, v36",
      f"s_mov_b64 exec, s[{sMQ}:{sMQ+1}]", "v_pk_mul_f32 v[32:33], v[32:33], v[36:37] op_sel:[0,0] op_sel_hi:[1,0]",
      "v_cvt_pk_bf16_f32 v56, v32, v33", "v_min_u32 v56, -2, v56")
    publish(f"buffer_store_dword v56, v{vQST}, {{r}}, s{sQB} offen {{fl}}")
    e("s_mov_b64 exec, -1")
    stamp(2)
    e(f"s_cmp_lt_u32 s{sLAY}, 2", "s_cbranch_scc1 L_INIT")
    e.label("L_INITD")
    def init():
        e.label("L_INIT")
        e(f"s_cmp_eq_u32 s{sLAY}, 0", "s_cbranch_scc1 L_INIT0")
        setlim(128)
        if XCC: e(f"buffer_load_dword v{vXOLD}, v{vX1r}, {srd(SX)}, 0 offen sc1")
        pump_until(103, D2)
        if opt.get("aprobe", 0):
            e(f"v_and_b32 v47, 0xf0, v{vL16}", f"v_lshlrev_b32 v47, 2, v47", f"v_bfe_u32 v46, v{vL16}, 8, 1", "v_lshl_add_u32 v47, v46, 4, v47",
              f"v_and_b32 v46, 0x1c00, v{vQLD}", "v_add_u32 v47, v47, v46")
            probe("L_APR", f"buffer_load_dword v8, v47, {srd(WS)}, s{sQB} offen sc1", "-1", "L_INITD", "AP", 8)
        e("s_branch L_INITD")
        e.label("L_INIT0")
        e(f"s_mov_b32 s{sLIM}, 64", f"s_min_u32 s{sSTOP}, s{sNSP}, s{sLIM}")
        if LATE:
            drain_stream(DS, 6)
            e("s_barrier", f"s_cmp_lg_u32 s{sW}, 0", "s_cbranch_scc1 L_ARR")
            e("s_mov_b64 exec, 1", "global_atomic_add v61, v60, s[30:31] sc1", "s_mov_b64 exec, -1")
            e.label("L_ARR")
        pump_until(26, DA[1])
        pump_until(opt.get('ipos', 38), DA[2])
        if opt.get("streamonly"):
            e(f"s_mov_b32 s{sLIM}, 128", f"s_min_u32 s{sSTOP}, s{sNSP}, s{sLIM}")
            for upto, dd in opt.get("so", [[128, DS]]):
                if upto == 66 and WL & 1: wfetch(16, False)
                if upto == 90 and WL & 2:
                    l_ = L("so"); e(f"s_cmp_ge_u32 s{sC}, 28", f"s_cbranch_scc1 {l_}"); wfetch(24, True); e.label(l_)
                pump_until(upto, dd)
            e("s_waitcnt vmcnt(0)", "s_memrealtime s[96:97]", "s_waitcnt lgkmcnt(0)", f"v_writelane_b32 v{vDBG}, s96, 28", f"s_mov_b32 s{sSTB}, 48", "s_branch L_END")
        e(f"v_lshlrev_b32 v41, 1, v{vL16}", f"v_mov_b32 v42, {FLAG}", f"s_cmp_lg_u32 s{sW}, 0", "s_cbranch_scc1 L_IWAIT")
        e.label("L_IPOLL")
        e("s_mov_b64 exec, 0xff", "global_load_dword v8, v41, s[30:31] sc1", "s_mov_b64 exec, -1")
        drain_stream(DA[3])
        e("s_mov_b64 exec, 0xff", "v_and_b32 v9, 63, v8", "v_cmp_ne_u32 vcc, 32, v9", "s_mov_b64 exec, -1", "s_cbranch_vccnz L_IFAIL")
        e(f"v_readlane_b32 s{sT}, v8, s{sJ}", f"s_cmp_eq_u32 s{sT}, s{sEXP}")
        if opt.get("forceslow"): e("s_cmp_eq_u32 0, 1")
        e(f"s_cselect_b32 s{sT}, 2, 1", f"v_mov_b32 v9, s{sT}", "ds_write_b32 v42, v9", "s_branch L_IGOT")
        e.label("L_IFAIL")
        spin_down(); e("s_branch L_IPOLL")
        e.label("L_IWAIT")
        e(f"s_waitcnt vmcnt({DA[3]-2})"); call_pump()
        e("ds_read_b32 v9, v42")
        spin_down()
        e("s_waitcnt lgkmcnt(0)", f"v_readfirstlane_b32 s{sT}, v9", f"s_cmp_eq_u32 s{sT}, 0", "s_cbranch_scc1 L_IWAIT")
        e.label("L_IGOT")
        e(f"s_mov_b32 s{sT+5}, s{sT}")
        pump_until(39, DS)
        e(f"s_mov_b32 s{sT}, s{sT+5}")
        e(f"s_cmp_eq_u32 s{sT}, 2", f"s_cselect_b32 s{SF+2}, {WSEND}, 0", f"s_cselect_b32 s{SS+2}, 0, {WSEND}")
        if opt.get("touch0", 1):
            e(f"s_cmp_lg_u32 s{sW}, 1", "s_cbranch_scc1 L_INITD")
            e(f"s_mul_i32 s{sT}, s{sC}, {13*128}", f"s_add_u32 s{sT}, s{sT}, s{sBK}", f"v_lshlrev_b32 v41, 3, v{vL16}", "s_mov_b64 exec, 0x1fff",
              f"buffer_load_dword v9, v41, {srd(WS)}, s{sT} offen sc1", "s_mov_b64 exec, -1")
        e("s_branch L_INITD")
    ool.append(init)

    def a_prep():
        for i in range(32): e(f"v_mov_b32 v{24+i}, 0")
    e(f"s_lshl_b32 s{sT}, s{sW}, 3", f"s_add_u32 s{sT}, s{sT}, {SL}", f"v_mov_b32 v61, s{sT}", f"v_add_u32 v62, {PA}, v{vL16}",
      f"v_lshrrev_b32 v63, 8, v{vL16}", f"v_lshlrev_b32 v63, 3, v63", f"v_add_u32 v63, {SL}, v63", f"v_and_b32 v60, 0x1c00, v{vQLD}", f"v_add_u32 v60, v60, v{vL16}")
    e(f"s_bitcmp1_b32 s{sLAY}, 0", "s_cbranch_scc1 L_ABP")
    def sadd1(t, h): return f"v_add_f32_dpp v{56+h}, v{24+4*t+h}, v{26+4*t+h} quad_perm:[0,1,2,3] row_mask:{1<<t} bank_mask:0xf"
    def asec(v, base):
        def issue():
            for u in range(4):
                e(f"buffer_load_dwordx4 {vr(8+4*u,4)}, v{vQLD}, {srd(WS)}, s{sQB} offen offset:{256*u} sc1")
        def sm(t, u): e(f"v_smfmac_f32_16x16x64_bf16 {vr(24+4*t,4)}, {vr(8+4*u,4)}, {ar(base+32*t+8*u,8)}, v{vIDX}")
        def l_issue(): e(f"s_mov_b32 m0, {QL}", "s_nop 0", f"buffer_load_dwordx4 v60, {srd(WS)}, s{sQB} offen sc1 lds")
        def l_check():
            e(f"v_and_b32 v59, 0x3ff, v{vQLD}", f"v_add_u32 v59, {QL}, v59")
            for u in range(4): e(f"ds_read_b128 {vr(8+4*u,4)}, v59 offset:{256*u}")
            e("s_waitcnt lgkmcnt(0)")
            check_max(range(8, 24), 58)
        def l_expand(): pass
        def undo():
            e.nop(8)
            for i in range(4): e(f"v_mov_b32 v{24+i}, 0")
        poll(f"A{v}", issue, 4, lambda: check_max(range(8, 24), 58), lambda: sm(0, 0), a_prep, lambda: e("s_waitcnt vmcnt(0)"), undo=undo,
             light=(1, l_issue, l_check, l_expand) if opt.get("alight", 1) else None)
        stamp(3)
        for t in range(4):
            for u in range(4):
                if t or u: sm(t, u)
                if t and u >= 2: e(sadd1(t - 1, u - 2))
    asec("A", 0)
    e.label("L_KJ")
    def kb():
        asec("B", 128); e("s_branch L_KJ")
    ool.append(kb)
    pre_issue()
    e(f"v_bfe_u32 v24, v{vL16}, 4, 2", f"v_lshlrev_b32 v24, 3, v24", f"v_add_u32 v24, {SL}, v24", f"s_add_u32 s{sOB2}, s{sST}, s{sB}", sadd1(3, 0), sadd1(3, 1))
    steps = ["quad_perm:[1,0,3,2] row_mask:0xf", "quad_perm:[2,3,0,1] row_mask:0xf", "row_half_mirror row_mask:0xf", "row_mirror row_mask:0xf",
             "row_bcast:15 row_mask:0xa", "row_bcast:31 row_mask:0xc"]
    fill = [f"s_cmp_lt_u32 s{sLAY}, 2", f"v_lshl_add_u32 v25, v{vL16}, 6, s{sS}"]
    for i, st in enumerate(steps):
        for h in range(2):
            s_ = 56 + h if i == 0 else 58 + h
            e(f"v_max_f32_dpp v{58+h}, v{s_}, v{s_} {st} bank_mask:0xf")
        if fill: e(fill.pop(0))
    e(f"v_readlane_b32 s{sA0}, v58, 63", f"v_readlane_b32 s{sA1}, v59, 63")
    e("s_mov_b32 exec_lo, 0", "s_mov_b32 exec_hi, 0x80000000", "ds_write_b64 v61, v[58:59]", "s_mov_b64 exec, -1")
    e(f"v_subrev_f32 v56, s{sA0}, v56", f"v_subrev_f32 v57, s{sA1}, v57", "v_exp_f32 v56, v56", "v_exp_f32 v57, v57",
      "v_cvt_pk_bf16_f32 v60, v56, v57", f"ds_write_b16 v{vPW}, v60", f"ds_write_b16_d16_hi v{vPW}, v60 offset:16")
    V = []
    for i, st in enumerate(steps):
        for h in range(2): V.append(f"v_add_f32_dpp v{56+h}, v{56+h}, v{56+h} {st} bank_mask:0xf")
    e(V.pop(0), V.pop(0), "s_cbranch_scc1 L_VEARLY", "s_waitcnt vmcnt(0)")
    e.label("L_VB")
    VREST = list(V)
    e(V.pop(0), V.pop(0), f"v_cndmask_b32 v27, v58, v59, s[{sODD}:{sODD+1}]", V.pop(0), V.pop(0), "v_min_u32 v27, -2, v27", V.pop(0), V.pop(0))
    e("s_waitcnt lgkmcnt(0)", "s_barrier")
    stamp(4)
    def vearly():
        e.label("L_VEARLY")
        e(f"s_cmp_eq_u32 s{sLAY}, 0", "s_cbranch_scc0 L_PROG")
        for k in range(4):
            if opt.get("afirst"):
                pump_until(min(40 + 8 * k + DS, 64), DS); e(f"s_waitcnt vmcnt({min(DS, 24 - 8 * k)})")
            else:
                landed(40 + 8 * k, DA[3 + k // 2])
            e("s_waitcnt lgkmcnt(0)", "s_barrier")
            if k: e(f"s_mov_b32 s{sLIM}, {64 + 8 * k}", f"s_min_u32 s{sSTOP}, s{sNSP}, s{sLIM}")
            if HG and k == HG - 1:
                l_ = L("hg")
                e(f"s_cmp_lg_u32 s{sW}, 0", f"s_cbranch_scc1 {l_}", f"s_lshl_b32 s{sT}, s2, 2", f"s_add_u32 s{sT}, s{sT}, {GFL}", "v_mov_b32 v8, 0", "s_mov_b64 exec, 1",
                  f"buffer_store_dword v8, off, {srd(WS)}, s{sT} sc1", "s_mov_b64 exec, -1")
                e.label(l_)
            if HQ and k == HQ - 1:
                e(f"s_lshl_b32 s{sT}, s{sC}, 2", f"s_add_u32 s{sT}, s{sT}, s{sBK}", "v_mov_b32 v8, 0", "s_mov_b64 exec, 1")
                publish(f"buffer_store_dword v8, off, {{r}}, s{sT} offset:{HINT & 4095} {{fl}}".replace(f"s{sT} offset:{HINT & 4095}", f"s{sT+1}"), pre=f"s_add_u32 s{sT+1}, s{sT}, {HINT}")
                e("s_mov_b64 exec, -1")
            e(f"s_call_b64 s[{sRET2}:{sRET2+1}], L_MOVEV{k}")
        if not POST:
            for _ in range(PRE // 2): call_pump()
        e("s_branch L_VB")
    ool.append(vearly)
    for k in range(4): e(f"ds_read_b128 {vr(8+4*k,4)}, v62 offset:{1024*k}")
    e("ds_read_b64 v[28:29], v24", "ds_read_b64 v[36:37], v63")
    e(V.pop(0), V.pop(0), f"s_mov_b32 s{sLIM}, s{sLIMX}", V.pop(0), V.pop(0), f"s_min_u32 s{sSTOP}, s{sNSP}, s{sLIM}",
      f"v_cndmask_b32 v26, v56, v57, s[{sODD}:{sODD+1}]", "v_min_u32 v26, -2, v26")
    publish(f"buffer_store_dwordx2 v[26:27], v25, {{r}}, s{sOB2} offen {{fl}}")
    def tpost(tau):
        return [f"v_pk_add_f32 {vr(40+4*tau,2)}, {vr(40+4*tau,2)}, {vr(42+4*tau,2)}", f"v_pk_mul_f32 {vr(40+4*tau,2)}, {vr(40+4*tau,2)}, v[38:39]"]
    V += [None, None, f"v_max_f32_dpp v28, v28, v28 {X1_}", f"v_max_f32_dpp v29, v29, v29 {X1_}",
          f"v_max_f32_dpp v28, v28, v28 {X2_}", f"v_max_f32_dpp v29, v29, v29 {X2_}", "v_sub_f32 v38, v36, v28", "v_sub_f32 v39, v37, v29", "v_exp_f32 v38, v38", "v_exp_f32 v39, v39"]
    V += ["v_add_f32 v40, v40, v42", "v_add_f32 v41, v41, v43", "v_mul_f32 v40, v40, v38", "v_mul_f32 v41, v41, v39", "v_add_f32 v48, v48, v50", "v_add_f32 v49, v49, v51"]
    FOPS = [x_ for x_ in V[:10] if x_]
    order = [0, 2, 1, 3]
    n_ = 0
    for tau in order:
        for k in range(4):
            if n_ < 2: e(f"s_waitcnt lgkmcnt({5-n_})")
            if n_ == 2: e("s_waitcnt lgkmcnt(0)")
            e(f"v_smfmac_f32_16x16x64_bf16 {vr(40+4*tau,4)}, {vr(8+4*k,4)}, {vr(AV+32*k+8*tau,8)}, v{vIDX}")
            if n_ == 0: stamp(10)
            if n_ == 3: stamp(11)
            x_ = V.pop(0)
            if x_: e(x_)
            n_ += 1
    assert not V, V
    stamp(12)
    e.label("L_POST")
    e(tpost(2)[1]); e(*tpost(1))
    e("v_permlane32_swap_b32 v40, v48", "v_permlane32_swap_b32 v41, v49")
    e(*tpost(3))
    e("v_pk_add_f32 v[40:41], v[40:41], v[48:49]")
    e("v_permlane32_swap_b32 v44, v52", "v_permlane32_swap_b32 v45, v53", "v_pk_add_f32 v[44:45], v[44:45], v[52:53]")
    e("v_permlane16_swap_b32 v40, v44", "v_permlane16_swap_b32 v41, v45", "v_pk_add_f32 v[40:41], v[40:41], v[44:45]")
    e("v_cvt_pk_bf16_f32 v40, v40, v41", f"v_mov_b32_dpp v41, v40 {X1_}", f"v_perm_b32 v40, v40, v41, v{vSEL}", "v_min_u32 v40, -2, v40")
    stamp(13)
    publish(f"buffer_store_dword v40, v{vOST}, {{r}}, s{sOB} offen {{fl}}")
    stamp(5)
    def prog():
        e.label("L_PROG")
        for _ in range(P1 // 2): call_pump()
        e(*VREST)
        e(f"v_cndmask_b32 v27, v58, v59, s[{sODD}:{sODD+1}]", f"v_cndmask_b32 v26, v56, v57, s[{sODD}:{sODD+1}]", "v_min_u32 v27, -2, v27", "v_min_u32 v26, -2, v26")
        publish(f"buffer_store_dwordx2 v[26:27], v25, {{r}}, s{sOB2} offen {{fl}}")
        e("s_waitcnt lgkmcnt(0)", "s_barrier")
        stamp(4)
        e("ds_read_b64 v[28:29], v24", "ds_read_b64 v[36:37], v63", "s_waitcnt lgkmcnt(0)")
        for x_ in FOPS: e(x_)
        e("v_mov_b32 v37, v62")
        if opt.get("fastp", 0):
            e(f"s_cmp_ge_u32 s{sIT}, 128", "s_cbranch_scc1 L_PFAST")
        for k in range(4):
            m = 104 + 8 * k
            pump_until(min(m + D3, 128), D3)
            e(f"s_waitcnt vmcnt({min(D3, 128 - m)})")
            if k == 3 and debug and opt.get("pstamps"):
                e("s_memrealtime s[96:97]", "s_waitcnt lgkmcnt(0)", f"v_writelane_b32 v{vDBG}, s96, 28")
            e(f"ds_read_b128 v[32:35], v37 offset:{1024*k}", "s_barrier")
            bases = {0: 24, 2: 56, 1: 128 - 128 + 24, 3: 56}
            def rd(tau, base):
                for r0 in range(2):
                    e(f"v_xor_b32 v36, {(tau << 5) | (r0 << 4) | ((k >> 1) << 16)}, v{vVRD}")
                    for r in (r0, r0 + 2):
                        e(f"ds_read_b64_tr_b16 {vr(base+2*r,2)}, v36 offset:{(k & 1)*32768 + (r & 1)*512 + (r >> 1)*2048}")
            def sm(tau, base): e(f"v_smfmac_f32_16x16x64_bf16 {vr(40+4*tau,4)}, v[32:35], {vr(base,8)}, v{vIDX}")
            if k < 3:
                rd(0, 24); rd(2, 56); e("s_waitcnt lgkmcnt(4)"); sm(0, 24); e.nop(4); rd(1, 24); e("s_waitcnt lgkmcnt(4)"); sm(2, 56); e.nop(4); rd(3, 56)
                e("s_waitcnt lgkmcnt(4)"); sm(1, 24); e("s_waitcnt lgkmcnt(0)"); sm(3, 56)
            else:
                rd(0, 24); rd(2, 56); rd(1, 8); rd(3, 16); e("s_waitcnt lgkmcnt(12)"); sm(0, 24)
                e("s_waitcnt lgkmcnt(8)"); sm(2, 56); e("s_waitcnt lgkmcnt(4)"); sm(1, 8); e("s_waitcnt lgkmcnt(0)"); sm(3, 16)
        e.label("L_PEND")
        e(*tpost(0), tpost(2)[0])
        e("s_branch L_POST")
    ool.append(prog)
    def pfast():
        e.label("L_PFAST")
        e("s_waitcnt vmcnt(0)")
        if debug and opt.get("pstamps"):
            e("s_memrealtime s[96:97]", "s_waitcnt lgkmcnt(0)", f"v_writelane_b32 v{vDBG}, s96, 28")
        bufs = [8, 16, 24]; pb = [32, 56]
        seq = [(k, tau) for k in range(4) for tau in (0, 2, 1, 3)]
        q_ = []
        def rp(k):
            e(f"ds_read_b128 {vr(pb[k % 2],4)}, v37 offset:{1024*k}"); q_.append(("p", k))
        def rd(i_):
            k, tau = seq[i_]; base = bufs[i_ % 3]
            for r0 in range(2):
                e(f"v_xor_b32 v36, {(tau << 5) | (r0 << 4) | ((k >> 1) << 16)}, v{vVRD}")
                for r in (r0, r0 + 2):
                    e(f"ds_read_b64_tr_b16 {vr(base+2*r,2)}, v36 offset:{(k & 1)*32768 + (r & 1)*512 + (r >> 1)*2048}"); q_.append(("v", i_))
        rp(0); rp(1)
        e("s_barrier", "s_barrier", "s_barrier", "s_barrier")
        rd(0); rd(1); rd(2)
        for i_ in range(16):
            k, tau = seq[i_]
            last = max(n for n, x in enumerate(q_) if x in (("v", i_), ("p", k)))
            e(f"s_waitcnt lgkmcnt({len(q_) - 1 - last})")
            e(f"v_smfmac_f32_16x16x64_bf16 {vr(40+4*tau,4)}, {vr(pb[k % 2],4)}, {vr(bufs[i_ % 3],8)}, v{vIDX}")
            if i_ + 3 < 16:
                e.nop(2); rd(i_ + 3)
            if i_ % 4 == 3 and k + 2 < 4: rp(k + 2)
        e.nop(4)
        e("s_branch L_PEND")
    if opt.get("fastp", 0): ool.append(pfast)

    e(f"s_cmp_ge_u32 s{sC}, 28", "s_cbranch_scc1 L_NOO0")
    def sissue():
        e(f"buffer_load_dwordx4 v[56:59], v{vSLD}, {srd(WS)}, s{sST} offen sc1", f"buffer_load_dwordx4 v[60:63], v{vSLD}, {srd(WS)}, s{sST} offen offset:512 sc1")
    def oissue():
        for mt in range(2):
            for ks in range(2):
                e(f"buffer_load_dwordx4 {vr(8+8*mt+4*ks,4)}, v{vOLD}, {srd(WS)}, s{sOB} offen offset:{2048*ks+1024*mt} sc1")
    def omf(ks, mt, nt):
        d = vr(40 + 8 * mt + 4 * nt, 4)
        e(f"v_mfma_f32_16x16x32_bf16 {d}, {vr(8+8*mt+4*ks,4)}, {vr(24+8*ks+4*nt,4)}, {'0' if ks == 0 else d}")
    ostream = f"s_cmp_lt_u32 s{sIT}, 128"
    sissue()
    e(f"s_bitcmp1_b32 s{sLAY}, 0", "s_cbranch_scc1 L_OWB")
    for i in range(16): e(f"v_mov_b32 v{24+i}, v{WoA+i}")
    def owb():
        e.label("L_OWB"); e.nop(2); wo_move(24, 55); e("s_branch L_OWJ")
    ool.append(owb)
    e.label("L_OWJ")
    e(ostream, "s_cbranch_scc1 L_OS0", "s_waitcnt vmcnt(2)")
    oissue()
    e("s_waitcnt vmcnt(4)")
    e.label("L_OSC")
    check_max([56, 58, 60, 62, 57, 59, 61, 63], 40)
    e("v_max3_f32 v41, v57, v59, v61", "s_cbranch_vccnz L_OSF", "v_max_f32 v41, v41, v63")
    e(f"v_max_f32_dpp v42, v41, v41 {X1_}", f"v_max_f32_dpp v42, v42, v42 {X2_}")
    e("v_sub_f32 v43, v57, v42", "v_sub_f32 v44, v59, v42", "v_sub_f32 v45, v61, v42", "v_sub_f32 v46, v63, v42", "v_sub_f32 v41, v41, v42",
      "v_exp_f32 v43, v43", "v_exp_f32 v44, v44", "v_exp_f32 v45, v45", "v_exp_f32 v46, v46", "v_exp_f32 v41, v41",
      "v_mul_f32 v43, v43, v56", "v_fmac_f32 v43, v44, v58", "v_fmac_f32 v43, v45, v60", "v_fmac_f32 v43, v46, v62",
      f"v_add_f32_dpp v43, v43, v43 {X1_}", f"v_add_f32_dpp v43, v43, v43 {X2_}", "v_rcp_f32 v43, v43", f"v_mul_f32 v{vPT}, v41, v43")
    e(ostream, "s_cbranch_scc1 L_OC")
    e.label("L_OR")
    if ROLL:
        oissue(); e("s_waitcnt vmcnt(4)")
    else:
        e("s_waitcnt vmcnt(0)")
    e.label("L_OC")
    check_max(range(8, 24), 48)
    omf(0, 0, 0)
    e("s_cbranch_vccnz L_OF")
    def ofail():
        e.label("L_OSF")
        spin_down(); e(ostream, "s_cbranch_scc1 L_OS1"); sissue(); e("s_waitcnt vmcnt(0)", "s_branch L_OSC")
        e.label("L_OF")
        spin_down(); e(ostream, "s_cbranch_scc1 L_OS1")
        if not ROLL: oissue()
        e("s_branch L_OR")
        e.label("L_OSA")
        check_max(range(8, 24), 48)
        e("s_cbranch_vccz L_OSC")
        spin_down()
        e("s_branch L_OS1")
        e.label("L_OS0")
        if WL & 1: wfetch(16, False)
        for _ in range(opt.get("bo", 0) // 2): call_pump()
        if HG:
            e(f"s_mov_b32 s{sT+5}, {GFL}", arm("OP"))
            e.label("L_GP")
            e(f"buffer_load_dwordx4 v[44:47], v{vL16}, {srd(WS)}, s{sT+5} offen sc1", "s_branch L_GS")
            e.label("L_GC")
            check_max([44, 45, 46, 47], 43)
            e("s_cbranch_vccz L_OPD")
            spin_down(); e("s_branch L_GP")
            stream_round("L_GS", "L_GP", "L_GC", 1, "OP")
        if HQ:
            e(f"v_lshrrev_b32 v47, 2, v{vL16}", f"s_add_u32 s{sT}, s{sBK}, {HINT}", f"v_add_u32 v47, s{sT}, v47", f"v_lshlrev_b32 v46, 3, v{vL16}",
              f"v_add_u32 v46, {GFL - 32 * 128}, v46", "s_mov_b32 exec_lo, 0", "v_mov_b32 v47, v46", "s_mov_b64 exec, -1",
              f"s_and_b32 s{sT+5}, s{sC}, 7", f"s_or_b32 s{sT+5}, s{sT+5}, s{sW}")
            HL = opt.get("hlocal", 0)
            def hload(): e(f"s_mov_b32 exec_hi, {0 if HL else 0xff}", f"buffer_load_dword v46, v47, {srd(WS)}, 0 offen sc1", "s_mov_b64 exec, -1")
            if HL == 2:
                e(arm("OP"))
            else:
                hload(); e("s_waitcnt vmcnt(0)", arm("OP"), "s_branch L_HC0")
            e.label("L_HP")
            hload(); e("s_branch L_HS")
            e.label("L_HC")
            e(f"s_mov_b32 s{sCNT}, 0")
            e.label("L_HC0")
            if HL:
                e("s_mov_b32 exec_hi, 0", "v_cmp_eq_u32 vcc, -1, v46", "s_mov_b64 exec, -1", "s_cbranch_vccz L_OPD")
                spin_down(); e("s_branch L_HP")
            e("s_mov_b32 exec_hi, 0xff", "v_cmp_eq_u32 vcc, -1, v46", "s_mov_b64 exec, -1", "s_nop 2", "s_cmp_eq_u32 vcc_hi, 0", "s_cbranch_scc1 L_OPD")
            spin_down()
            e(f"s_or_b32 s{sT}, vcc_lo, s{sT+5}", "s_cbranch_scc1 L_HP")
            e(f"s_lshl_b32 s{sT}, s{sJ}, 7", f"s_add_u32 s{sT}, s{sT}, {GFL}", "v_mov_b32 v45, 0", "s_mov_b64 exec, 1",
              f"buffer_store_dword v45, off, {srd(WS)}, s{sT} sc1", "s_mov_b64 exec, -1", f"s_mov_b32 s{sT+5}, 1", "s_branch L_HP")
            stream_round("L_HS", "L_HP", "L_HC", 1, "OP")
        e(f"v_and_b32 v47, 0xf0, v{vL16}", f"v_and_b32 v46, 0x100, v{vL16}", "v_lshl_add_u32 v47, v46, 2, v47", f"v_sub_u32 v46, v{vOLD}, v{vL16}", "v_add_u32 v47, v47, v46")
        probe("L_OPR", f"buffer_load_dword v46, v47, {srd(WS)}, s{sOB} offen sc1", "-1", "L_OPD", "OP")
        e.label("L_NOO0")
        e(f"s_cmp_eq_u32 s{sLAY}, 0", "s_cbranch_scc0 L_NOO")
        setlim(max(CAP[0], WQH[3] + 10))
        if SPLITB: pump_until(WQH[3] + 9, DS)
        e("s_branch L_NOO" if opt.get("c28", 1) and not XCC else "s_branch L_OS0")
        e.label("L_OPD")
        if RW:
            e(f"s_mov_b32 s{sT+3}, s{KV}", f"s_mov_b32 s{sT+4}, s{KV+1}",
              f"s_lshl_b32 s{sT}, s{sJ}, 19", f"s_lshl_b32 s{sT+1}, s{sC}, 14", f"s_add_u32 s{sT}, s{sT}, s{sT+1}", f"s_add_u32 s{sT}, s{sT}, {WX}",
              f"s_add_u32 s{KV}, s32, s{sT}", f"s_addc_u32 s{KV+1}, s33, 0", f"s_mov_b32 s{KV+2}, 14336", f"s_lshl_b32 s{sT}, s{sW}, 12")
            for d in range(4):
                e(f"s_add_u32 m0, s{sT}, {STG+1024*d}", f"s_add_u32 s{sT+1}, s{sT}, {1024*d}", f"buffer_load_dwordx4 v{vL16}, {srd(KV)}, s{sT+1} offen sc1 lds")
            e(f"s_mov_b32 s{KV}, s{sT+3}", f"s_mov_b32 s{KV+1}, s{sT+4}", f"s_mov_b32 s{KV+2}, 0x20000")
        e(arm("OR"), f"s_cmp_ge_u32 s{sC}, 28", "s_cbranch_scc0 L_OS2" if WL & 1 else "s_cbranch_scc0 L_OS1")
        if RW: drain_stream(DC, 4)
        e("s_branch L_NOO")
        if WL & 1:
            e.label("L_OS2")
            sissue(); oissue()
            wo_move(WoA, vPT); wo_move(24, vPT)
            e("s_branch L_OS3")
        e.label("L_OS1")
        if debug and 14 in sset:
            e(f"s_cmp_lg_u32 s{SP[sset.index(14)]}, 0", "s_cbranch_scc1 L_OS1b"); stamp(14); e("s_waitcnt lgkmcnt(0)"); e.label("L_OS1b")
        sissue()
        oissue()
        e.label("L_OS3")
        if OROLL:
            e("s_branch L_ORS")
            stream_round("L_ORS", "L_OS1", "L_OSA", 6, "OR")
        else:
            if DO: drain_stream(DO, 6, DM)
            else: e("s_waitcnt vmcnt(0)")
            e("s_branch L_OSA")
    ool.append(ofail)
    stamp(6)
    def ws(o, mt, nt, s_, first):
        d = 40 + 8 * mt + 4 * nt
        return f"v_{'mul' if first else 'fmac'}_f32_dpp v{o}, v{vPT}, v{d+s_} row_newbcast:{4*mt+s_} {DPP}"
    omf(1, 0, 0); omf(0, 0, 1); omf(1, 0, 1); omf(0, 1, 0); omf(1, 1, 0)
    e(ws(24, 0, 0, 0, 1), ws(25, 0, 1, 0, 1)); omf(0, 1, 1)
    e(ws(24, 0, 0, 1, 0), ws(25, 0, 1, 1, 0)); omf(1, 1, 1)
    e(ws(24, 0, 0, 2, 0), ws(25, 0, 1, 2, 0), ws(26, 1, 0, 0, 1), ws(28, 1, 0, 2, 1), ws(24, 0, 0, 3, 0), ws(25, 0, 1, 3, 0), ws(26, 1, 0, 1, 0), ws(28, 1, 0, 3, 0))
    e(ws(27, 1, 1, 0, 1), ws(29, 1, 1, 2, 1), f"ds_write2st64_b32 v{vRW}, v24, v25 offset0:0 offset1:1", ws(27, 1, 1, 1, 0), ws(29, 1, 1, 3, 0),
      "v_pk_add_f32 v[26:27], v[26:27], v[28:29]", f"ds_write2st64_b32 v{vRW}, v26, v27 offset0:2 offset1:3")
    if not POST: pre_issue()
    e("s_waitcnt lgkmcnt(0)", "s_barrier")
    e(f"ds_read_b32 v28, v{aOR}", f"ds_read_b32 v29, v{aOR} offset:{RS}", f"ds_read_b32 v30, v{aOR} offset:{2*RS}", f"ds_read_b32 v31, v{aOR} offset:{3*RS}", "s_waitcnt lgkmcnt(0)")
    e("v_pk_add_f32 v[28:29], v[28:29], v[30:31]", "v_add_f32 v28, v28, v29", "v_min_u32 v28, -2, v28")
    e(f"buffer_store_dword v28, v{vX1ST}, {srd(WS)}, s{sX1} offen sc1")
    e.label("L_NOO")
    stamp(7)
    e(f"s_add_u32 s{sBK}, s{sBK}, {8*BSZ}", f"s_mov_b32 s{sXO}, s{sBK}", f"s_add_u32 s{sOB2}, s{sX1L}, 4096")
    if opt.get("flush"):
        e(f"s_cmp_lg_u32 s{sW}, 2", "s_cbranch_scc1 L_NOFL", f"s_cmp_eq_u32 s{sLAY}, 0", "s_cbranch_scc1 L_NOFL",
          f"s_mul_i32 s{sT}, s{sC}, {13*128}", f"s_add_u32 s{sT}, s{sT}, s{sBK}", f"s_sub_u32 s{sT}, s{sT}, {16*BSZ}", f"v_lshlrev_b32 v32, 3, v{vL16}", "s_mov_b64 exec, 0x1fff",
          f"buffer_store_dword v32, v32, {srd(WS)}, s{sT} offen sc1", "s_mov_b64 exec, -1")
        e.label("L_NOFL")
    e(f"s_cmp_eq_u32 s{sLAY}, 3", "s_cbranch_scc1 L_LAST")
    def last():
        e.label("L_LAST")
        e(f"s_cmp_ge_u32 s{sC}, 28", f"s_cselect_b32 s{sT}, 1, s{sW}", f"s_or_b32 s{sT}, s{sT}, s{sJ}", "s_cbranch_scc1 L_ENDW" if WBE else "s_cbranch_scc1 L_END")
        e(f"s_mov_b32 s{SF}, s28", f"s_mov_b32 s{SF+1}, s29", f"s_mov_b32 s{SF+2}, {0 if opt.get('outsc') else 7168}", f"s_mov_b32 s{SS}, s28", f"s_mov_b32 s{SS+1}, s29", f"s_mov_b32 s{SS+2}, {7168 if opt.get('outsc') else 0}", f"s_mov_b32 s{sXO}, 0")
        x2_voff(vX1r, 41)
        e("s_branch L_XGO")
    ool.append(last)
    if opt.get("touch", 1):
        e(f"s_cmp_lg_u32 s{sW}, 1", "s_cbranch_scc1 L_NOTOUCH")
        e(f"s_mul_i32 s{sT}, s{sC}, {13*128}", f"s_add_u32 s{sT}, s{sT}, s{sBK}", f"v_lshlrev_b32 v32, 3, v{vL16}", "s_mov_b64 exec, 0x1fff",
          f"buffer_load_dword v63, v32, {srd(WS)}, s{sT} offen sc1", "s_mov_b64 exec, -1")
        e.label("L_NOTOUCH")
    def preload():
        for nm in ("A", "B"):
            e.label("L_PRELOAD" + nm)
            for k in range(4): e(f"s_call_b64 s[{sRET2}:{sRET2+1}], L_MOVEV{k}")
            e(f"s_mov_b32 s{sA0}, 0", "s_branch L_PRELD" + nm)
    ool.append(preload)
    e(f"s_mov_b32 s{sA0}, s{sLAY}", f"s_mov_b32 s{sA1}, 0")
    e(f"s_cmp_ge_u32 s{sC}, 28", f"s_cselect_b32 s{sT}, 7, s{sW}", f"s_cmp_eq_u32 s{sLAY}, 0", "s_cbranch_scc1 L_X0", f"s_cmp_lg_u32 s{sT}, 0", "s_cbranch_scc1 L_NOX")
    e.label("L_XGO")
    if not opt.get("xnoack"): e("s_waitcnt vmcnt(0)")
    if opt.get("xdelay"): e(f"s_sleep {opt['xdelay']}")
    def xissue():
        for i in range(8):
            e(f"buffer_load_dwordx4 {vr(24+4*i,4)}, v{vL16}, {srd(WS)}, s{sX1L if i < 4 else sOB2} offen offset:{1024*(i&3)} sc1")
    def xprep(): e(f"v_lshlrev_b32 v58, 16, v{vXOLD}", f"v_and_b32 v59, 0xffff0000, v{vXOLD}")
    e.label("L_XPOLL")
    xissue(); xprep()
    e(f"s_cmp_eq_u32 s{sA0}, 2", "s_cbranch_scc1 L_PRELOADA")
    if XR: e(f"s_sleep {XR}")
    e.label("L_PRELDA")
    if XR:
        e.label("L_XROLL"); xissue()
    for i in range(1, 8):
        e(f"s_waitcnt vmcnt({7-i+(8 if XR else 0)})")
        for r in range(2):
            e(f"v_pk_add_f32 {vr(60+2*r,2)}, {vr((24 if i == 1 else 60)+2*r,2)}, {vr(24+4*i+2*r,2)}")
    e.label("L_XSUM")
    e("v_permlane32_swap_b32 v60, v62", "v_permlane32_swap_b32 v61, v63", "v_pk_add_f32 v[60:61], v[60:61], v[62:63]")
    e("v_cmp_u_f32 vcc, v60, v61", "v_cvt_pk_bf16_f32 v62, v60, v61", "s_cbranch_vccnz L_XNAN")
    e.label("L_XOK")
    def wqb_in():
        if RW:
            wq_move(WqB, vPT)
            e(f"s_mov_b32 s{sLIMX}, 128", f"s_mov_b32 s{sLIM}, 128", f"s_min_u32 s{sSTOP}, s{sNSP}, s{sLIM}")
    def xool():
        e.label("L_XNAN")
        check_max(range(24, 56), 57)
        if XR:
            e(f"s_cbranch_vccnz L_XRF", f"s_cmp_eq_u32 s{sA1}, 77", "s_cbranch_scc1 L_XOK", f"s_mov_b32 s{sA1}, 77", "s_branch L_XADD")
            e.label("L_XRF")
            spin_down(); e("s_branch L_XROLL")
        else:
            e("s_cbranch_vccz L_XOK")
            spin_down(); e("s_branch L_XPOLL")
        e.label("L_XS2")
        spin_down()
        if XW2:
            def setflag(v): e(f"v_mov_b32 v57, {FLAG}", f"v_mov_b32 v58, {v}", "ds_write_b32 v57, v58")
            setflag(3)
            e(f"v_lshlrev_b32 v9, 4, v{vL16}")
            e(arm("XW"))
            e.label("L_XWP")
            e("s_mov_b32 exec_hi, 0", f"buffer_load_dword v8, v9, {srd(WS)}, s{sX1L} offen sc1", "s_mov_b64 exec, -1", "s_branch L_XWS")
            e.label("L_XWC")
            e("s_mov_b32 exec_hi, 0", "v_cmp_eq_u32 vcc, -1, v8", "s_mov_b64 exec, -1", "s_cbranch_vccz L_XWD")
            spin_down(); e("s_branch L_XWP")
            stream_round("L_XWS", "L_XWP", "L_XWC", 1, "XW")
            e.label("L_XWD")
            setflag(4)
            e("s_branch L_XS1")
        elif SITE["X"][0] == 0:
            for _ in range(BF // 2): call_pump()
            e("s_branch L_XS1")
        e.label("L_XS0")
        if SITE["X"][0] == 0: e("s_waitcnt vmcnt(0)")
        e.label("L_XS1")
        xissue(); e("s_branch L_XS")
        e.label("L_XSC")
        check_max(range(24, 56), 57)
        e("s_cbranch_vccnz L_XS2")
        xprep()
        e.label("L_XADD")
        for i in range(1, 8):
            for r in range(2):
                e(f"v_pk_add_f32 {vr(60+2*r,2)}, {vr((24 if i == 1 else 60)+2*r,2)}, {vr(24+4*i+2*r,2)}")
        e.nop(2); e("s_branch L_XSUM")
        e.label("L_X0")
        setlim(max(CAP[1], WQH[3] + 10))
        e(f"s_mov_b32 s{sT+5}, s{sT}")
        for _ in range(BX // 2): call_pump()
        if XCC:
            e(f"s_cmp_ge_u32 s{sC}, 28", "s_cbranch_scc0 L_X0W" if WL & 2 else "s_cbranch_scc0 L_NODR2")
            for _ in range(XCC - 1): drain_stream(DC, 0)
            e(f"s_sub_u32 s{sT}, s{sC}, 28", f"s_lshl_b32 s{sT}, s{sT}, 2", f"s_add_u32 s{sT}, s{sT}, s{sW}",
              f"v_lshrrev_b32 v60, 9, v{vL16}", f"v_lshl_add_u32 v60, v60, 4, s{sT}",
              f"v_and_b32 v61, 0x1f0, v{vL16}", "v_lshl_add_u32 v61, v60, 13, v61",
              f"v_bfe_u32 v62, v{vL16}, 6, 3", "v_mul_u32_u24 v62, 896, v62", f"v_bfe_u32 v63, v{vL16}, 4, 2", "v_lshl_add_u32 v62, v63, 3, v62", "v_lshl_add_u32 v62, v60, 5, v62",
              f"v_bfe_u32 v{vXOLD}, v{vL16}, 5, 1", f"v_lshlrev_b32 v{vXOLD}, 7, v{vXOLD}", f"v_bfe_u32 v63, v{vL16}, 6, 3", f"v_lshl_add_u32 v{vXOLD}, v63, 4, v{vXOLD}",
              f"v_bfe_u32 v63, v{vL16}, 4, 1", f"v_lshl_add_u32 v{vXOLD}, v63, 3, v{vXOLD}", f"v_lshl_add_u32 v{vXOLD}, v60, 8, v{vXOLD}",
              "v_cmp_le_u32 vcc, 28, v60", "v_mov_b32 v60, 0x40000000", "v_cndmask_b32 v61, v61, v60, vcc", f"v_cndmask_b32 v{vXOLD}, v{vXOLD}, v60, vcc",
              f"buffer_load_dwordx2 v[62:63], v62, {srd(SX)}, 0 offen", f"s_add_u32 s{sT+5}, s{sX1}, 4096")
            e.label("L_CXP")
            def cx(p_, r_): e(f"buffer_load_dwordx4 {vr(r_,4)}, v61, {srd(WS)}, s{sX1 if p_ < 8 else sT+5} offen offset:{512*(p_&7)} sc1")
            def acc(r_, first=False):
                e(f"v_max3_u32 v60, v{r_}, v{r_+1}, v{r_+2 if first else 60}", f"v_max3_u32 v60, v{r_+2}, v{r_+3}, v60")
                if first: e(f"v_mov_b32 v56, v{r_}", f"v_mov_b32 v57, v{r_+1}", f"v_mov_b32 v58, v{r_+2}", f"v_mov_b32 v59, v{r_+3}")
                else: e(f"v_pk_add_f32 v[56:57], v[56:57], {vr(r_,2)}", f"v_pk_add_f32 v[58:59], v[58:59], {vr(r_+2,2)}")
            for p_ in range(12): cx(p_, 8 + 4 * p_)
            e("s_waitcnt vmcnt(8)")
            for p_ in range(4): acc(8 + 4 * p_, p_ == 0)
            for p_ in range(12, 16): cx(p_, 8 + 4 * (p_ - 12))
            e("s_waitcnt vmcnt(4)")
            for p_ in range(4, 12): acc(8 + 4 * p_)
            e("s_waitcnt vmcnt(0)")
            for p_ in range(4): acc(8 + 4 * p_)
            e("v_cmp_eq_u32 vcc, -1, v60", "s_cbranch_vccz L_CXD")
            spin_down(); e("s_branch L_CXP")
            e.label("L_CXD")
            e("v_cvt_pk_bf16_f32 v56, v56, v57", "v_cvt_pk_bf16_f32 v57, v58, v59",
              "v_lshlrev_b32 v8, 16, v56", "v_and_b32 v9, 0xffff0000, v56", "v_lshlrev_b32 v10, 16, v57", "v_and_b32 v11, 0xffff0000, v57",
              "v_lshlrev_b32 v12, 16, v62", "v_and_b32 v13, 0xffff0000, v62", "v_lshlrev_b32 v14, 16, v63", "v_and_b32 v15, 0xffff0000, v63",
              "v_pk_add_f32 v[8:9], v[8:9], v[12:13]", "v_pk_add_f32 v[10:11], v[10:11], v[14:15]",
              "v_cvt_pk_bf16_f32 v56, v8, v9", "v_cvt_pk_bf16_f32 v57, v10, v11", "v_min_u32 v56, -2, v56", "v_min_u32 v57, -2, v57")
            publish(f"buffer_store_dwordx2 v[56:57], v{vXOLD}, {{r}}, s{sBK} offen {{fl}}")
            e("s_branch L_NODR2")
        if WL & 2:
            e.label("L_X0W")
            wfetch(24, True)
            drain_stream(opt.get("dw", 8), 4)
            wq_move(WqB, vPT)
            e("s_branch L_NODR2")
        if opt.get("c28", 1): e(f"s_cmp_ge_u32 s{sC}, 28", "s_cbranch_scc1 L_NODR2")
        e(arm("X"), f"s_cmp_eq_u32 s{sT+5}, 0", "s_cbranch_scc1 L_XS0", f"s_cmp_eq_u32 s{sW}, 0", "s_cbranch_scc1 L_X0P")
        wqb_in()
        if OROLL: drain_stream(DC, 12)
        flag_wait("L_XFW", 4)
        e("s_branch L_NODR2")
        e.label("L_X0P")
        if XW2 and SITE["XP"][0]: e(f"v_mov_b32 v57, {FLAG}", "v_mov_b32 v58, 3", "ds_write_b32 v57, v58")
        e(f"v_lshlrev_b32 v47, 4, v{vL16}")
        probe("L_XPR", f"buffer_load_dword v46, v47, {srd(WS)}, s{sBK} offen sc1", "0x0fffffff", "L_X0F", "XP")
        e.label("L_X0F")
        e(f"v_mov_b32 v57, {FLAG}", "v_mov_b32 v58, 5", "ds_write_b32 v57, v58")
        wqb_in()
        e("s_branch L_NODR2")
    ool.append(xool)
    stream_round("L_XS", "L_XS1", "L_XSC", 8, "X")
    e("v_lshlrev_b32 v60, 16, v62", "v_and_b32 v61, 0xffff0000, v62", "v_pk_add_f32 v[58:59], v[58:59], v[60:61]",
      f"v_cvt_pk_bf16_f32 v{vXOLD}, v58, v59", f"v_min_u32 v57, -2, v{vXOLD}")
    publish(f"buffer_store_dword v57, v{vX1r}, {{r}}, s{sXO} offen {{fl}}")
    stamp(8)
    e(f"s_cmp_eq_u32 s{sLAY}, 3", "s_cbranch_scc1 L_END", f"s_cmp_eq_u32 s{sLAY}, 0", "s_cbranch_scc1 L_X0F", "s_branch L_NODR2")
    e.label("L_NOX")
    if opt.get("wb"):
        e(f"s_cmp_lg_u32 s{sW}, 3", "s_cbranch_scc1 L_NOWB", f"s_cmp_lt_u32 s{sC}, {32 - opt['wb']}", "s_cbranch_scc1 L_NOWB", "buffer_wbl2 sc1")
        e.label("L_NOWB")
    e(f"s_cmp_eq_u32 s{sA0}, 2", "s_cbranch_scc1 L_PRELOADB")
    e.label("L_PRELDB")
    e.label("L_NODR2")
    e(f"s_add_u32 s{SX}, s32, s{sBK}", f"s_addc_u32 s{SX+1}, s33, 0")
    e(f"s_add_u32 s{sQB}, s{sBK}, 0x2000", f"s_add_u32 s{sOB}, s{sBK}, 0x4000", f"s_add_u32 s{sST}, s{sBK}, 0xC000",
      f"s_add_u32 s{sX1}, s{sX1}, 0x38000", f"s_add_u32 s{sX1L}, s{sX1L}, 0x38000", f"s_add_u32 s{sLAY}, s{sLAY}, 1")
    collect()
    if debug: e(f"s_add_u32 s{sSTB}, s{sSTB}, 16")
    stamp(0)
    e(f"s_cmp_eq_u32 s{sLAY}, 2", "s_cbranch_scc1 L_QAP", f"s_cmp_eq_u32 s{sLAY}, 3", "s_cbranch_scc1 L_QBP")
    setlim(CAP[2])
    if opt.get("qprobe", 0):
        e(f"v_lshlrev_b32 v47, 4, v{vL16}", f"s_lshl_b32 s{sT}, s{sW}, 11", f"v_add_u32 v47, s{sT}, v47", arm("QP"))
        e.label("L_QPR")
        e("s_mov_b64 exec, 15", f"buffer_load_dword v46, v47, {srd(SX)}, 0 offen sc1", "s_mov_b64 exec, -1", "s_branch L_QPRS")
        e.label("L_QPRC")
        e("s_mov_b64 exec, 15", "v_cmp_ne_u32 vcc, -1, v46", "s_mov_b64 exec, -1", "s_cbranch_vccnz L_QBP")
        spin_down(); e("s_branch L_QPR")
        stream_round("L_QPRS", "L_QPR", "L_QPRC", 1, "QP")
    if not EB and not RW and not MB: pump_until(WQBM + 1, DS)
    e("s_branch L_QBP")
    if WBE:
        e.label("L_ENDW")
        e(f"s_cmp_lg_u32 s{sW}, 3", "s_cbranch_scc1 L_END", f"s_cmp_lg_u32 s{sC}, 27", "s_cbranch_scc1 L_END", "buffer_wbl2 sc1")
    e.label("L_END")
    if debug:
        e("s_mov_b64 exec, -1"); collect(); stamp(9); e("s_waitcnt vmcnt(0)")
        e(f"s_lshl_b32 s{sT}, s2, 2", f"s_add_u32 s{sT}, s{sT}, s{sW}", f"s_lshl_b32 s{sT}, s{sT}, 8", f"s_add_u32 s{sT}, s{sT}, {STAMPS}",
          f"v_lshrrev_b32 v8, 2, v{vL16}", f"v_add_u32 v8, s{sT}, v8", f"global_store_dword v8, v{vDBG}, s[32:33]")
    e.label("L_EXIT")
    e("s_endpgm")

    e.label("L_PUMP")
    e(f"s_cmp_ge_u32 s{sIT}, s{sSTOP}", "s_cbranch_scc1 L_PSPEC")
    e.label("L_PGEN")
    pair()
    e.label("L_PRET")
    e(f"s_setpc_b64 s[{sRET}:{sRET+1}]")

    i = 0
    while i < len(ool):
        ool[i](); i += 1

    for k in range(4):
        e.label(f"L_MOVEV{k}")
        for tau in range(4):
            for r0 in range(2):
                e(f"v_xor_b32 v{vPT}, {(tau << 5) | (r0 << 4) | ((k >> 1) << 16)}, v{vVRD}")
                for r in (r0, r0 + 2):
                    e(f"ds_read_b64_tr_b16 {vr(AV+32*k+8*tau+2*r,2)}, v{vPT} offset:{(k & 1)*32768 + (r & 1)*512 + (r >> 1)*2048}")
        e(f"s_setpc_b64 s[{sRET2}:{sRET2+1}]")

    def kmove(base, t):
        if opt.get("nokmove"): return
        e("s_waitcnt vmcnt(6)")
        for jj in range(4):
            e(f"v_xor_b32 v{vPT}, {(jj << 6) | ((t >> 1) << 16)}, v{vKRD}")
            e(f"ds_read_b128 {ar(base+32*t+4*jj,4)}, v{vPT} offset:{(t & 1)*32768}", f"ds_read_b128 {ar(base+32*t+16+4*jj,4)}, v{vPT} offset:{(t & 1)*32768+256}")
        e("s_waitcnt lgkmcnt(0)")
    def pst(l):
        if debug and opt.get("pstamps"):
            e("s_memrealtime s[96:97]", "s_waitcnt lgkmcnt(0)", f"v_writelane_b32 v{vDBG}, s96, {l}")
    def wone(ptr, isQ, d):
        e(f"s_mov_b32 s{sT+3}, s{KV}", f"s_mov_b32 s{sT+4}, s{KV+1}")
        wdma_addr(isQ, vPT); wdma_issue(ptr, isQ, vPT, [d])
        e(f"s_mov_b32 s{KV}, s{sT+3}", f"s_mov_b32 s{KV+1}, s{sT+4}", f"s_mov_b32 s{KV+2}, 0x20000")
    act = {}
    def at(k, f): act.setdefault(k, []).append(f)
    for t in range(4):
        at(14 + 8 * t, lambda t=t: kmove(0, t)); at(78 + 8 * t, lambda t=t: kmove(128, t))
    at(32, lambda: switch(12, False)); at(64, lambda: switch(20, True)); at(96, lambda: switch(22, False))
    if not WL & 1: at(WOA[3] + 8, lambda: (e("s_waitcnt vmcnt(6)"), wo_move(WoA, vPT)))
    def kv_save(): e(f"s_mov_b32 s{sT+3}, s{KV}", f"s_mov_b32 s{sT+4}, s{KV+1}")
    def kv_back(): e(f"s_mov_b32 s{KV}, s{sT+3}", f"s_mov_b32 s{KV+1}, s{sT+4}", f"s_mov_b32 s{KV+2}, 0x20000")
    def row0():
        e(f"s_lshl_b32 s{sT}, s{sC}, 2", f"s_add_u32 s{sT}, s{sT}, s{sW}", f"s_lshl_b32 s{sT}, s{sT}, 2")
    def brow(d):
        kv_save(); row0()
        e(f"s_add_u32 s{sT}, s{sT}, {d}", f"s_lshl_b32 s{sT}, s{sT}, 13", f"s_lshl_b32 s{sT+1}, s{sJ}, 10", f"s_add_u32 s{sT}, s{sT}, s{sT+1}", f"s_lshl_b32 s{sT+1}, s{sW}, 12",
          f"s_add_u32 m0, s{sT+1}, {STG+1024*d}", f"s_mov_b32 s{KV}, s24", f"s_mov_b32 s{KV+1}, s25", f"s_mov_b32 s{KV+2}, 3670016",
          f"buffer_load_dwordx4 v{vL16}, {srd(KV)}, s{sT} offen {WFL} lds")
        kv_back()
    def bstore():
        e("s_waitcnt vmcnt(6)", f"s_cmp_ge_u32 s{sC}, 28", "s_cbranch_scc1 L_BSTX")
        e(f"v_bfe_u32 v{vPT}, v{vL16}, 5, 2", f"v_lshlrev_b32 v{vPT}, 10, v{vPT}", f"v_and_or_b32 v{vPT}, v{vL16}, 16, v{vPT}", f"v_lshrrev_b32 v{WqB}, 7, v{vL16}",
          f"v_lshl_add_u32 v{vPT}, v{WqB}, 5, v{vPT}", f"s_lshl_b32 s{sT}, s{sW}, 12", f"s_add_u32 s{sT}, s{sT}, {STG}", f"v_add_u32 v{vPT}, s{sT}, v{vPT}")
        for k in range(4): e(f"ds_read_b128 {ar(200+4*k,4)}, v{vPT} offset:{256*k}")
        kv_save()
        e(f"s_lshl_b32 s{sT}, s{sJ}, 19", f"s_add_u32 s{sT}, s{sT}, {WX}", f"s_add_u32 s{KV}, s32, s{sT}", f"s_addc_u32 s{KV+1}, s33, 0", f"s_mov_b32 s{KV+2}, 0x80000",
          f"v_lshlrev_b32 v{WqB}, 14, v{WqB}", f"v_and_b32 v{vPT}, 0x70, v{vL16}", f"v_add_u32 v{vPT}, v{vPT}, v{WqB}")
        row0()
        e(f"s_lshl_b32 s{sT}, s{sT}, 5", "s_waitcnt lgkmcnt(0)")
        for k in range(4):
            e(f"buffer_store_dwordx4 {ar(200+4*k,4)}, v{vPT}, {srd(KV)}, s{sT} offen {opt.get('bsf', 'sc1')}", f"s_add_u32 s{sT}, s{sT}, 0x20000")
        kv_back()
        e.label("L_BSTX")
    if RW:
        for d in range(4): at(26 + 2 * d, lambda d=d: brow(d))
        at(40, bstore)
    def only(lo, f):
        l_ = L("on")
        e(f"s_cmp_ge_u32 s{sC}, 28", f"s_cbranch_scc{1 if lo else 0} {l_}"); f(); e.label(l_)
    if SPLITB:
        if not WL & 2: at(WQBM, lambda: only(True, lambda: (e("s_waitcnt vmcnt(6)"), wq_move(WqB, vPT))))
        for d in range(4):
            if not WL & 2: at(WQB[d], lambda d=d: only(True, lambda: wone(24, True, d)))
            at(WQH[d], lambda d=d: only(False, lambda: wone(24, True, d)))
        at(WQH[3] + 8, lambda: only(False, lambda: (e("s_waitcnt vmcnt(6)"), wq_move(WqB, vPT))))
    elif not EB and not RW: at(WQBM, lambda: (e("s_waitcnt vmcnt(6)"), wq_move(WqB, vPT)))
    for i, k in enumerate(WQA): at(k, lambda d=W0 + i: wone(14, True, d))
    for d in range(4):
        (at(WOA[d], lambda d=d: wone(16, False, d)) if not WL & 1 else None); (at(WQB[d], lambda d=d: wone(24, True, d)) if WQB and not SPLITB else None); at(WOB[d], lambda d=d: wone(26, False, d))
    specials = sorted(act)
    wq_items = set(WQA) | (set() if WL & 2 else set(WQB))
    XW = opt.get("xw", 1)
    PST = {14: 10, 32: 11, 42: 12, 40: 12, 64: 13, 78: 14, 96: 26, 102: 27}
    e.label("L_PSPEC")
    e(f"s_cmp_ge_u32 s{sIT}, s{sLIM}", "s_cbranch_scc1 L_PRET")
    half = len(specials) // 2
    e(f"s_cmp_ge_u32 s{sIT}, {specials[half]}", "s_cbranch_scc1 L_PSPEC2")
    for k in specials[:half]:
        e(f"s_cmp_eq_u32 s{sIT}, {k}", f"s_cbranch_scc1 L_SP{k}")
    e.label("L_PSPEC2")
    for k in specials[half:-1]:
        e(f"s_cmp_eq_u32 s{sIT}, {k}", f"s_cbranch_scc1 L_SP{k}")
    for k in [specials[-1]] + specials[:-1]:
        e.label(f"L_SP{k}")
        if k in PST: pst(PST[k])
        for f in act[k]: f()
        nxt = specials[specials.index(k) + 1] if k != specials[-1] else 999
        e(f"s_mov_b32 s{sNSP}, {nxt}", f"s_min_u32 s{sSTOP}, s{sNSP}, s{sLIM}")
        if k in wq_items and XW:
            for x in range(XW):
                if x: e(f"s_cmp_ge_u32 s{sIT}, s{sSTOP}", "s_cbranch_scc1 L_PRET")
                pair()
            e("s_branch L_PUMP")
        else:
            e("s_branch L_PGEN")
    e.label("L_CODE_END")
    e.raw('.section .rodata,"a"'); e.raw(".p2align 6"); e.raw(f".amdhsa_kernel {KNAME}")
    for l in (".amdhsa_next_free_vgpr 512", ".amdhsa_next_free_sgpr 102", ".amdhsa_accum_offset 256", ".amdhsa_group_segment_fixed_size 0",
              ".amdhsa_kernarg_size 104", ".amdhsa_user_sgpr_count 2", ".amdhsa_user_sgpr_kernarg_segment_ptr 1", ".amdhsa_system_sgpr_workgroup_id_x 1",
              ".amdhsa_float_denorm_mode_32 3"):
        e.raw("  " + l)
    e.raw(".end_amdhsa_kernel")
    return e.text()

if __name__ == "__main__":
    dbg = "--debug" in sys.argv
    out = [a for a in sys.argv[1:] if not a.startswith("--")]
    txt = gen(dbg)
    open(out[0] if out else "k.s", "w").write(txt)
```
